```python
import torch

def _softmax(x, axis=-1):
    return torch.softmax(x, dim=axis)
def _gelu(x):
    return torch.nn.functional.gelu(x, approximate="tanh")
def _silu(x):
    return torch.nn.functional.silu(x)
def _sigmoid(x):
    return torch.sigmoid(x)
def _layernorm(x, axis=-1, eps=1e-5):
    m = x.mean(dim=axis, keepdim=True)
    v = x.var(dim=axis, keepdim=True, unbiased=False)
    return (x - m) / torch.sqrt(v + eps)
def _scatter_add(tgt, idx, src, axis=0):
    return tgt.clone().index_add_(axis, idx, src)
def _segment_sum(src, seg, n):
    out = torch.zeros((n,) + src.shape[1:], dtype=src.dtype)
    return out.index_add_(0, seg, src)
def _pad(x, pw):
    flat = tuple(v for pair in reversed(pw) for v in pair)
    return torch.nn.functional.pad(x, flat)

kernel_name = 'sequential_preLN__compressed_kv_cla__swiglu_ffn__decode'

def setup_inputs():

    _w = (lambda a: (lambda t: t.to(torch.bfloat16) if t.is_floating_point() else t)(torch.as_tensor(a)))
    def _A_setup():
        B, H, Sq, Sk, D, M = 4, 32, 1, 4096, 128, 512
        Dc = 4 * D
        return {
            "x": _w((lambda *s: torch.randn(*s, dtype=torch.bfloat16) * 0.05)(B, Sq, M)),
            "c_kv": _w((lambda *s: torch.randn(*s, dtype=torch.bfloat16) * 0.4)(B, Sk, Dc)),
            "w_q": _w((lambda *s: torch.randn(*s, dtype=torch.bfloat16) * 3.2)(M, H, D) * (M ** -0.5)),
            "w_uk": _w((lambda *s: torch.randn(*s, dtype=torch.bfloat16) * 3.2)(Dc, H, D) * (Dc ** -0.5)),
            "w_uv": _w((lambda *s: torch.randn(*s, dtype=torch.bfloat16) * 0.4)(Dc, H, D) * (Dc ** -0.5)),
            "w_o": _w((lambda *s: torch.randn(*s, dtype=torch.bfloat16) * 0.4)(H, D, M) * ((H * D) ** -0.5)),
        }
    _A_in = _A_setup()

    def _B_setup():
        B, S, D, F = 4, 1, 512, 1376
        return {
            "x": _w((lambda *s: torch.randn(*s, dtype=torch.bfloat16) * 0.05)(B, S, D)),
            "w_gate": _w((lambda *s: torch.randn(*s, dtype=torch.bfloat16) * 0.05)(D, F)),
            "w_up": _w((lambda *s: torch.randn(*s, dtype=torch.bfloat16) * 0.05)(D, F)),
            "w_down": _w((lambda *s: torch.randn(*s, dtype=torch.bfloat16) * 0.05)(F, D)),
        }
    _B_in = _B_setup()

    return {
        "A_x": _A_in["x"],
        "A_c_kv": _A_in["c_kv"],
        "A_w_q": _A_in["w_q"],
        "A_w_uk": _A_in["w_uk"],
        "A_w_uv": _A_in["w_uv"],
        "A_w_o": _A_in["w_o"],
        "B_x": _B_in["x"],
        "B_w_gate": _B_in["w_gate"],
        "B_w_up": _B_in["w_up"],
        "B_w_down": _B_in["w_down"],
    }

def reference(A_x, A_c_kv, A_w_q, A_w_uk, A_w_uv, A_w_o, B_x, B_w_gate, B_w_up, B_w_down):
    def _A_ref(x, c_kv, w_q, w_uk, w_uv, w_o):
        B, Sq, M = x.shape[0], x.shape[1], x.shape[2]
        Sk = c_kv.shape[1]
        H, D = w_q.shape[1], w_q.shape[2]
        q = torch.einsum("bqm,mhd->bhqd", x, w_q)
        k = torch.einsum("bkc,chd->bhkd", c_kv, w_uk)
        v = torch.einsum("bkc,chd->bhkd", c_kv, w_uv)
        scores = torch.einsum("bhqd,bhkd->bhqk", q, k) * (D ** -0.5)
        off = Sk - Sq
        qi = torch.arange(Sq)[:, None]
        kj = torch.arange(Sk)[None, :]
        cmask = kj <= (qi + off)
        scores = torch.where(cmask[None, None], scores, -1e9)
        p = _softmax(scores, axis=-1)
        ctx = torch.einsum("bhqk,bhkd->bhqd", p, v)
        return torch.einsum("bhqd,hdm->bqm", ctx, w_o)

    def _B_ref(x, w_gate, w_up, w_down):
        g = _silu(x @ w_gate)
        u = x @ w_up
        return (g * u) @ w_down

    x = A_x
    h = x + _A_ref(_layernorm(x, axis=-1), A_c_kv, A_w_q, A_w_uk, A_w_uv, A_w_o)
    h2 = h + _B_ref(_layernorm(h, axis=-1), B_w_gate, B_w_up, B_w_down)
    return h2
```

```python
import re

_REG = re.compile(r"^(-|abs\()?([vsa])(\d+)\)?$")
_RNG = re.compile(r"^(-|abs\()?([vsa])\[(\d+):(\d+)\]\)?$")

TRANS = ("v_exp_f32", "v_log_f32", "v_rcp_f32", "v_rsq_f32", "v_sqrt_f32", "v_sin_f32", "v_cos_f32")


def regs_of(tok):
    tok = tok.strip()
    m = _REG.match(tok)
    if m:
        return [(m.group(2), int(m.group(3)))]
    m = _RNG.match(tok)
    if m:
        return [(m.group(2), i) for i in range(int(m.group(3)), int(m.group(4)) + 1)]
    if tok == "vcc":
        return [("s", 106), ("s", 107)]
    if tok == "vcc_lo":
        return [("s", 106)]
    if tok == "vcc_hi":
        return [("s", 107)]
    if tok == "exec":
        return [("s", 126), ("s", 127)]
    if tok == "exec_lo":
        return [("s", 126)]
    if tok == "exec_hi":
        return [("s", 127)]
    if tok == "m0":
        return [("s", 124)]
    return []


def split_ops(s):
    out, depth, cur = [], 0, ""
    for ch in s:
        if ch in "[(":
            depth += 1
        if ch in "])":
            depth -= 1
        if ch == "," and depth == 0:
            out.append(cur.strip())
            cur = ""
        else:
            cur += ch
    if cur.strip():
        out.append(cur.strip())
    return out


class Ins:
    __slots__ = ("text", "mn", "defs", "uses", "kind", "passes", "srcc", "srcab", "dpp", "wide_store", "ldsdma", "data")

    def __init__(self, text):
        self.text = text
        t = text.split(";")[0].strip()
        parts = t.split(None, 1)
        mn = parts[0]
        self.mn = mn
        rest = parts[1] if len(parts) > 1 else ""
        ops = split_ops(rest)
        mods = ""
        if ops:
            last = ops[-1].split(None, 1)
            ops[-1] = last[0]
            mods = last[1] if len(last) > 1 else ""
        self.defs, self.uses = [], []
        self.passes = 0
        self.srcc, self.srcab, self.data = [], [], []
        self.dpp = ("_dpp" in mn) or ("row_" in mods) or ("quad_perm" in mods)
        self.wide_store = False
        self.ldsdma = False
        base = mn.replace("_e32", "").replace("_e64", "").replace("_dpp", "").replace("_sdwa", "")
        R = [regs_of(o) for o in ops]
        if base.startswith("v_mfma"):
            self.kind = "mfma"
            self.passes = 8 if "32x32x16" in base else 4
            self.defs = R[0]
            self.srcab = R[1] + R[2]
            self.srcc = R[3]
            self.uses = R[1] + R[2] + R[3]
        elif base.startswith("v_"):
            self.kind = "valu"
            if base.startswith("v_permlane"):
                self.defs = R[0] + R[1]
                self.uses = R[0] + R[1]
            elif base in ("v_add_co_u32", "v_sub_co_u32", "v_addc_co_u32", "v_subb_co_u32", "v_mad_u64_u32"):
                self.defs = R[0] + R[1]
                self.uses = sum(R[2:], [])
            else:
                self.defs = R[0]
                self.uses = sum(R[1:], [])
                if base in ("v_fmac_f32", "v_dot2c_f32_bf16", "v_writelane_b32") or self.dpp:
                    self.uses = self.uses + R[0]
                if base.startswith("v_cmpx"):
                    self.defs = self.defs + regs_of("exec")
        elif base.startswith("ds_"):
            self.kind = "ds"
            if base.startswith("ds_read") or base.startswith("ds_bpermute") or base.startswith("ds_swizzle"):
                self.defs = R[0]
                self.uses = sum(R[1:], [])
            else:
                self.uses = sum(R, [])
        elif base.startswith("global_") or base.startswith("buffer_"):
            self.kind = "vmem"
            is_lds = (" lds" in (" " + mods)) or ("_lds_" in base)
            if "load" in base and not is_lds:
                self.defs = R[0]
                self.uses = sum(R[1:], [])
            else:
                self.uses = sum(R, [])
                if is_lds:
                    self.ldsdma = True
                    self.uses = self.uses + regs_of("m0")
                if "store" in base and ("x4" in base or "x3" in base):
                    self.wide_store = True
                    self.data = R[0] if base.startswith("buffer_") else R[1]
        elif base.startswith("s_"):
            self.kind = "salu"
            nodef = ("s_cmp", "s_waitcnt", "s_branch", "s_cbranch", "s_barrier", "s_nop", "s_setprio", "s_endpgm",
                     "s_sleep", "s_bitcmp", "s_setpc")
            if base.startswith(nodef):
                self.uses = sum(R, [])
            else:
                self.defs = R[0] if R else []
                self.uses = sum(R[1:], [])
                if "saveexec" in base:
                    self.defs = self.defs + regs_of("exec")
        else:
            raise ValueError("unknown instruction: " + text)

    def states(self):
        if self.mn == "s_nop":
            return int(self.text.split(";")[0].split()[1], 0) + 1
        return 1


def _ov(a, b):
    return bool(set(a) & set(b))


def need(p, c):
    n = 0
    pv = [r for r in p.defs if r[0] == "v"]
    ps = [r for r in p.defs if r[0] == "s"]
    cbase = c.mn.replace("_e32", "").replace("_e64", "").replace("_dpp", "")
    pbase = p.mn.replace("_e32", "").replace("_e64", "").replace("_dpp", "")
    if p.kind == "valu":
        isdot = pbase.startswith("v_dot")
        if c.kind == "mfma" and _ov(pv, c.uses):
            n = max(n, 3 if isdot else 2)
        if c.kind == "valu":
            if c.dpp and _ov(pv, c.uses):
                n = max(n, 2)
            if cbase.startswith("v_permlane") and _ov(pv, c.uses):
                n = max(n, 2)
            if cbase in ("v_readlane_b32", "v_readfirstlane_b32") and _ov(pv, c.uses):
                n = max(n, 1)
            if pbase in TRANS and _ov(pv, c.uses):
                n = max(n, 1)
            if ps and _ov(ps, c.uses):
                n = max(n, 4 if cbase in ("v_readlane_b32", "v_writelane_b32") else 2)
            if isdot and (_ov(pv, c.uses) or _ov(pv, c.defs)):
                same_c = (cbase == pbase) and _ov(pv, c.defs) and not _ov(pv, [u for u in c.uses if u not in c.defs])
                if not same_c:
                    n = max(n, 3)
            if _ov(ps, regs_of("exec")) and c.dpp:
                n = max(n, 5)
        if isdot and c.kind in ("ds", "vmem") and _ov(pv, c.uses):
            n = max(n, 3)
        if c.kind == "vmem" and ps and _ov(ps, c.uses):
            n = max(n, 5)
        if c.kind == "mfma" and _ov(ps, regs_of("exec")):
            n = max(n, 4)
    if p.kind == "mfma":
        far = 12 if p.passes == 8 else 8
        if c.kind == "mfma":
            if _ov(pv, c.srcab):
                n = max(n, far)
            if _ov(pv, c.srcc):
                if list(pv) == list(c.srcc) and p.passes == c.passes:
                    pass
                else:
                    n = max(n, far - 2)
            elif _ov(pv, c.defs):
                n = max(n, far)
        elif c.kind in ("valu", "ds", "vmem"):
            if _ov(pv, c.uses) or _ov(pv, c.defs):
                n = max(n, far)
        if c.kind == "valu" and _ov(p.srcc, c.defs):
            n = max(n, 7 if p.passes == 8 else 3)
    if p.kind == "vmem" and p.wide_store:
        if _ov(p.data, c.defs):
            n = max(n, 2)
    if p.kind == "salu" and _ov(ps, regs_of("m0")) and c.ldsdma:
        n = max(n, 1)
    return n


class Asm:
    def __init__(self):
        self.items = []
        self._lbl = 0

    def __call__(self, text):
        for line in text.strip().split("\n"):
            line = line.strip()
            if not line:
                continue
            if line.startswith(";") or line.endswith(":") or line.startswith("."):
                self.items.append(line)
            else:
                self.items.append(Ins(line))

    def label(self, name):
        self.items.append(name + ":")

    def newlabel(self, stem="L"):
        self._lbl += 1
        return f"{stem}_{self._lbl}"

    def comment(self, c):
        self.items.append("; " + c)

    def haz_flush(self, n=12):
        self(f"s_nop {n - 1}")

    def render(self):
        out = []
        hist = []
        WINDOW = 14
        for it in self.items:
            if isinstance(it, str):
                out.append(it if it.endswith(":") or it.startswith(".") else "    " + it)
                continue
            req = 0
            dist = 0
            for p in reversed(hist):
                if dist >= WINDOW:
                    break
                n = need(p, it)
                if n > dist:
                    req = max(req, n - dist)
                dist += p.states()
            while req > 0:
                k = min(req, 16)
                nop = Ins(f"s_nop {k - 1}")
                hist.append(nop)
                out.append(f"    s_nop {k - 1}")
                req -= k
            hist.append(it)
            out.append("    " + it.text)
        return "\n".join(out) + "\n"


def vr(a, n=1):
    return f"v{a}" if n == 1 else f"v[{a}:{a + n - 1}]"


def sr(a, n=1):
    return f"s{a}" if n == 1 else f"s[{a}:{a + n - 1}]"
```

```python
import sys, math, struct
sys.path.insert(0, "dev")
from asmgen import Asm, vr, sr

KNAME = "sequential_preLN__compressed_kv_cla__swiglu_ffn__decode_kernel"

WS_EPOCH = 0x0
WS_H = 0x004000
WS_GO = 0x008000
WS_QPG = 0x010000
WS_QL = 0x080000
WS_ST = 0x0C0000
WS_AO = 0x100000
WS_FP = 0x180000
WS_OP = 0x200000
WS_DBG = 0x800000
WS_SIZE = 0x1000000

NSLICE = 86
SPIN = 1 << 16


def f32(x):
    return struct.unpack("<I", struct.pack("<f", x))[0]


def G(x):
    return [0, 2, 3, 1][x]


def FSW(k):
    return ((k % 4) << 2) | G((k // 4) % 4)


class Cfg:
    ts = 0
    dbg = 0
    prio_pv = 1
    b_delay = 1
    qsleep = 2
    uv_early = 0
    pretouch = 1
    clr_pos = 0
    csleep = 2
    nt_wo = 1
    nt_ffn = 1
    xgate = 1


def gen(cfg):
    a = Asm()
    S_X, S_CKV, S_WQ, S_WUK, S_WUV, S_WO, S_WG, S_WU, S_WD, S_OUT, S_WS = 16, 18, 20, 22, 24, 26, 30, 32, 34, 36, 40
    S_W, S_XCD, S_I16 = 3, 4, 5
    S_K8 = 64
    SRD_WS, SRD_A, SRD_B = 72, 76, 80
    S_TS = 84
    WS = f"s[{SRD_WS}:{SRD_WS + 3}]"
    RA = f"s[{SRD_A}:{SRD_A + 3}]"
    RB = f"s[{SRD_B}:{SRD_B + 3}]"
    DPPM = "row_mask:0xf bank_mask:0xf"

    def TS(idx):
        if not cfg.ts:
            return
        a(f"s_memrealtime s[{S_TS + 2 * idx}:{S_TS + 2 * idx + 1}]")
        a("s_waitcnt lgkmcnt(0)")

    def END(n=8):
        if cfg.ts:
            a("s_mov_b64 exec, 1")
            a(f"s_lshl_b32 s8, s2, 3")
            a(f"s_add_u32 s8, s8, s{S_W}")
            a(f"s_lshl_b32 s8, s8, 6")
            a(f"s_add_u32 s8, s8, {WS_DBG}")
            a("v_mov_b32 v2, s8")
            for i in range(n):
                a(f"v_mov_b32 v3, s{S_TS + 2 * i}")
                a(f"buffer_store_dword v3, v2, {WS}, 0 offen offset:{4 * i}")
            a("s_waitcnt vmcnt(0)")
        a("s_endpgm")

    def END_IF(cond_branch_true, n=8):
        if cfg.ts:
            lab = a.newlabel("Lcont")
            a(f"s_cbranch_{'scc0' if cond_branch_true == 'scc1' else 'scc1'} {lab}")
            END(n)
            a.label(lab)
        else:
            a(f"s_cbranch_{cond_branch_true} L_end")

    def srd(dst, ptr, nbytes):
        a(f"s_mov_b32 s{dst}, s{ptr}")
        a(f"s_mov_b32 s{dst + 1}, s{ptr + 1}")
        a(f"s_mov_b32 s{dst + 2}, {nbytes}")
        a(f"s_mov_b32 s{dst + 3}, 0x20000")

    def k8(i):
        return "0" if i == 0 else f"s{S_K8 + i}"

    def tags():
        a("s_add_u32 s44, s44, 1")
        a("s_mul_i32 s48, s44, 0x9E3779B1")
        a("s_xor_b32 s48, s48, 0x85EBCA6B")
        a("s_mul_i32 s49, s44, 0xC2B2AE35")
        a("s_add_u32 s49, s49, 0x27D4EB2F")

    def perm_set(src, dst):
        for c in range(8):
            dw, e = c // 2, c % 2
            sel = "s14" if e == 0 else "s15"
            for p in range(4):
                a(f"v_perm_b32 v{dst + 4 * c + p}, v{src + 4 * (2 * p + 1) + dw}, v{src + 4 * (2 * p) + dw}, {sel}")

    def swap_reduce(reg, tmp, which, op="v_add_f32"):
        a(f"v_mov_b32 v{tmp}, v{reg}")
        a(f"v_permlane{which}_swap_b32 v{reg}, v{tmp}")
        a(f"{op} v{reg}, v{reg}, v{tmp}")

    def dpp_ror_reduce(regs, rors, op="v_add_f32"):
        for r in rors:
            for x in regs:
                a(f"{op}_dpp v{x}, v{x}, v{x} row_ror:{r} {DPPM}")

    def mfma16(d, A, B, c):
        cin = "0" if c is None else vr(c, 4)
        a(f"v_mfma_f32_16x16x32_bf16 {vr(d, 4)}, {vr(A, 4)}, {vr(B, 4)}, {cin}")

    def valid_check(regs, tmp, fail_label):
        regs = list(regs)
        a(f"v_max3_u32 v{tmp}, v{regs[0]}, v{regs[1]}, v{regs[2]}")
        rest = regs[3:]
        while len(rest) >= 2:
            a(f"v_max3_u32 v{tmp}, v{tmp}, v{rest[0]}, v{rest[1]}")
            rest = rest[2:]
        if rest:
            a(f"v_max_u32 v{tmp}, v{tmp}, v{rest[0]}")
        a(f"v_cmp_eq_u32 vcc, -1, v{tmp}")
        ok = a.newlabel("Lok")
        a(f"s_cbranch_vccz {ok}")
        a("s_sub_u32 s13, s13, 1")
        a(f"s_cbranch_scc0 {fail_label}")
        a.label(ok)

    def canary(addr, dst, tagged, so="0", lanes=1):
        lab = a.newlabel("Lcan")
        done = a.newlabel("Lcand")
        a(f"s_mov_b64 exec, {hex(lanes)}")
        a.label(lab)
        a(f"buffer_load_dwordx4 {vr(dst, 4)}, v{addr}, {WS}, {so} offen sc1")
        a("s_waitcnt vmcnt(0)")
        if tagged:
            a(f"v_cmp_ne_u64 vcc, s[48:49], {vr(dst + 2, 2)}")
        else:
            a(f"v_cmp_eq_u32 vcc, -1, v{dst}")
        a(f"s_cbranch_vccz {done}")
        if cfg.csleep:
            a(f"s_sleep {cfg.csleep}")
        a("s_sub_u32 s13, s13, 1")
        a(f"s_cbranch_scc0 {lab}")
        a.label(done)
        a("s_mov_b64 exec, -1")

    def sel_masks(M, tmp):
        a(f"v_and_b32 v{tmp}, 1, v2")
        a(f"v_lshlrev_b32 v{tmp}, 4, v{tmp}")
        a(f"v_mov_b32 v{tmp + 1}, 0xffff")
        a(f"v_lshlrev_b32 v{tmp}, v{tmp}, v{tmp + 1}")
        a(f"v_lshrrev_b32 v{tmp + 1}, 1, v2")
        for p in range(4):
            a(f"v_cmp_eq_u32 vcc, {p}, v{tmp + 1}")
            a(f"v_cndmask_b32 v{M + p}, 0, v{tmp}, vcc")

    a.label("L_code_start")
    a("s_cmp_ge_u32 s2, 256")
    a("s_cbranch_scc1 L_end")
    a("s_load_dwordx16 s[16:31], s[0:1], 0")
    a("s_load_dwordx8 s[32:39], s[0:1], 64")
    a("s_load_dwordx2 s[40:41], s[0:1], 96")
    if cfg.ts or cfg.dbg:
        a(f"s_memrealtime s[{S_TS}:{S_TS + 1}]")
    a("v_lshrrev_b32 v2, 6, v0")
    a("v_and_b32 v1, 63, v0")
    a(f"v_readfirstlane_b32 s{S_W}, v2")
    a("v_and_b32 v2, 15, v1")
    a("v_lshrrev_b32 v3, 4, v1")
    a(f"s_and_b32 s{S_XCD}, s2, 7")
    a(f"s_lshr_b32 s{S_I16}, s2, 3")
    for i in range(1, 8):
        a(f"s_mov_b32 s{S_K8 + i}, {i * 8192}")
    a(f"s_mov_b32 s13, {SPIN}")
    a(f"s_cmp_ge_u32 s{S_I16}, 16")
    a("s_cbranch_scc1 L_B")

    S_H, S_J, S_A = 6, 7, 9
    a("s_mov_b32 s14, 0x05040100")
    a("s_mov_b32 s15, 0x07060302")
    a(f"s_lshl_b32 s{S_A}, s{S_XCD}, 4")
    a(f"s_add_u32 s{S_A}, s{S_A}, s{S_I16}")
    a(f"s_lshr_b32 s{S_H}, s{S_A}, 2")
    a(f"s_and_b32 s{S_J}, s{S_A}, 3")
    a(f"s_cmp_ge_u32 s{S_W}, 4")
    a("s_cbranch_scc1 L_Ahi")

    a("v_lshrrev_b32 v4, 2, v2")
    a("v_lshlrev_b32 v4, 10, v4")
    a("v_and_b32 v5, 3, v1")
    a("v_lshl_add_u32 v5, v3, 2, v5")
    a("v_lshl_add_u32 v5, v5, 4, v4")
    a(f"s_lshl_b32 s8, s{S_J}, 7")
    a(f"s_lshl_b32 s10, s{S_W}, 5")
    a("s_add_u32 s8, s8, s10")
    a("s_lshl_b32 s10, s8, 1")
    a("v_lshl_add_u32 v6, v3, 4, v4")
    a("v_add_u32 v6, s10, v6")
    a("s_lshl_b32 s10, s8, 13")
    a(f"s_lshl_b32 s11, s{S_H}, 8")
    a("s_add_u32 s10, s10, s11")
    a("v_lshlrev_b32 v7, 16, v3")
    a("v_lshl_add_u32 v7, v2, 4, v7")
    a("v_add_u32 v7, s10, v7")
    a("s_waitcnt lgkmcnt(0)")
    srd(SRD_A, S_WQ, 4 << 20)
    for i in range(4):
        a(f"global_load_dwordx4 {vr(8 + 4 * i, 4)}, v5, s[{S_X}:{S_X + 1}] offset:{256 * i}")
    a(f"global_load_dwordx4 v[24:27], v6, s[{S_X}:{S_X + 1}]")
    for jj in range(8):
        a(f"buffer_load_dwordx4 {vr(32 + 4 * jj, 4)}, v7, {RA}, {k8(jj)} offen nt")
    a(f"s_load_dword s44, s[{S_WS}:{S_WS + 1}], {WS_EPOCH}")
    srd(SRD_WS, S_WS, WS_SIZE)
    srd(SRD_B, S_WUV, 4 << 20)
    a("v_mov_b32 v28, 0")
    a("v_mov_b32 v29, 0")
    a("s_mov_b32 s10, 0x3f803f80")
    a("s_waitcnt vmcnt(9)")
    for i in range(16):
        a(f"v_dot2c_f32_bf16 v28, s10, v{8 + i}")
        a(f"v_dot2c_f32_bf16 v29, v{8 + i}, v{8 + i}")
    for x in (28, 29):
        a(f"v_add_f32_dpp v{x}, v{x}, v{x} quad_perm:[1,0,3,2] {DPPM}")
    for x in (28, 29):
        a(f"v_add_f32_dpp v{x}, v{x}, v{x} quad_perm:[2,3,0,1] {DPPM}")
    for wh in (16, 32):
        swap_reduce(28, 30, wh)
        swap_reduce(29, 31, wh)
    a(f"v_mul_f32 v28, {hex(f32(1.0 / 512))}, v28")
    a(f"v_mul_f32 v29, {hex(f32(1.0 / 512))}, v29")
    a("v_fma_f32 v29, -v28, v28, v29")
    a("v_max_f32 v29, 0, v29")
    a(f"v_add_f32 v29, {hex(f32(1e-5))}, v29")
    a("v_rsq_f32 v29, v29")
    a("s_waitcnt vmcnt(8)")
    a("v_mul_f32 v28, v28, v29")
    for p in range(4):
        a(f"v_lshlrev_b32 v{8 + 2 * p}, 16, v{24 + p}")
        a(f"v_and_b32 v{9 + 2 * p}, 0xffff0000, v{24 + p}")
    for k in range(8):
        a(f"v_fma_f32 v{8 + k}, v{8 + k}, v29, -v28")
    for p in range(4):
        a(f"v_cvt_pk_bf16_f32 v{24 + p}, v{8 + 2 * p}, v{9 + 2 * p}")
    a(f"s_lshl_b32 s10, s{S_W}, 11")
    a("v_lshlrev_b32 v8, 9, v3")
    a("v_lshl_add_u32 v8, v2, 5, v8")
    a("v_add_u32 v8, s10, v8")
    a("v_and_b32 v9, 3, v1")
    a("v_lshlrev_b32 v11, 4, v9")
    a("v_lshlrev_b32 v9, 9, v9")
    a("v_bfe_u32 v10, v1, 2, 2")
    a("v_lshl_add_u32 v9, v10, 5, v9")
    a("v_lshrrev_b32 v10, 5, v1")
    a("v_lshl_add_u32 v9, v10, 7, v9")
    a(f"s_lshl_b32 s10, s{S_W}, 8")
    a("v_add_u32 v9, s10, v9")
    a("v_and_b32 v10, 1, v3")
    a("v_lshl_add_u32 v9, v10, 4, v9")
    a("v_cmp_eq_u32 s[56:57], 1, v10")
    a(f"s_lshl_b32 s10, s{S_H}, 13")
    a(f"s_lshl_b32 s11, s{S_W}, 12")
    a("s_add_u32 s10, s10, s11")
    a(f"s_lshl_b32 s11, s{S_J}, 6")
    a("s_add_u32 s10, s10, s11")
    a(f"s_add_u32 s10, s10, {WS_QPG}")
    a("v_lshrrev_b32 v10, 2, v1")
    a("v_lshl_add_u32 v11, v10, 8, v11")
    a("v_add_u32 v11, s10, v11")
    a("s_waitcnt lgkmcnt(0)")
    tags()
    a("v_mov_b32 v12, s48")
    a("v_mov_b32 v13, s49")
    a("s_waitcnt vmcnt(0)")
    TS(1)

    def uv_loads():
        for jj in range(8):
            a(f"buffer_load_dwordx4 {vr(128 + 4 * jj, 4)}, v7, {RB}, {k8(jj)} offen nt")

    if cfg.uv_early == 1:
        uv_loads()
    perm_set(32, 64)
    for c in range(8):
        mfma16(96 + 4 * c, 24, 64 + 4 * c, None)
    for c in range(0, 8, 2):
        a(f"ds_write2_b32 v8, v{96 + 4 * c}, v{100 + 4 * c} offset0:{c} offset1:{c + 1}")
    a("s_waitcnt lgkmcnt(0)")
    a("s_barrier")
    a(f"s_cmp_ge_u32 s{S_W}, 2")
    a("s_cbranch_scc1 L_Alo_nopub")
    for i in range(4):
        a(f"ds_read_b128 {vr(32 + 4 * i, 4)}, v9 offset:{2048 * i}")
    a("s_waitcnt lgkmcnt(2)")
    for k in range(4):
        a(f"v_add_f32 v{32 + k}, v{32 + k}, v{36 + k}")
    a("s_waitcnt lgkmcnt(0)")
    for k in range(4):
        a(f"v_add_f32 v{40 + k}, v{40 + k}, v{44 + k}")
    for k in range(4):
        a(f"v_add_f32 v{32 + k}, v{32 + k}, v{40 + k}")
    a("v_cvt_pk_bf16_f32 v36, v32, v33")
    a("v_cvt_pk_bf16_f32 v37, v34, v35")
    a("v_cndmask_b32 v16, v12, v36, s[56:57]")
    a("v_cndmask_b32 v17, v13, v37, s[56:57]")
    a("v_cndmask_b32 v18, v36, v12, s[56:57]")
    a("v_cndmask_b32 v19, v37, v13, s[56:57]")
    a(f"buffer_store_dwordx4 v[16:19], v11, {WS}, 0 offen sc1")
    a.label("L_Alo_nopub")
    TS(2)
    if cfg.xgate:
        a(f"s_cmp_eq_u32 s{S_W}, 3")
        a("s_cbranch_scc0 L_Alo_nogate")
        a(f"s_lshl_b32 s10, s{S_A}, 7")
        a(f"s_add_u32 s10, s10, {WS_GO}")
        a("v_mov_b32 v16, s10")
        canary(16, 20, True)
        a.label("L_Alo_nogate")
    a("s_barrier")
    if cfg.uv_early != 1:
        uv_loads()
    a("s_waitcnt vmcnt(0)")
    perm_set(128, 160)
    a("s_branch L_A_x")

    a.label("L_Ahi")
    a(f"s_sub_u32 s12, s{S_W}, 4")
    a(f"s_lshl_b32 s8, s{S_J}, 7")
    a("s_lshl_b32 s10, s12, 5")
    a("s_add_u32 s8, s8, s10")
    a("s_lshl_b32 s10, s8, 13")
    a(f"s_lshl_b32 s11, s{S_H}, 8")
    a("s_add_u32 s10, s10, s11")
    a("s_mov_b32 s57, s10")
    a("v_xor_b32 v7, v2, v3")
    a("v_lshlrev_b32 v7, 4, v7")
    a("v_lshl_add_u32 v30, v2, 8, v7")
    a("v_lshl_add_u32 v7, v3, 13, v7")
    a("s_lshl_b32 s11, s12, 13")
    a("s_add_u32 s11, s11, 16384")
    a("v_add_u32 v30, s11, v30")
    a("s_getpc_b64 s[62:63]")
    a.label("L_pc")
    a("s_sub_u32 s62, s62, L_pc-L_code_start")
    a("s_subb_u32 s63, s63, 0")
    a("s_lshl_b32 s10, s12, 4")
    a(f"s_add_u32 s10, s10, s{S_I16}")
    a("s_lshl_b32 s10, s10, 10")
    a("v_lshlrev_b32 v4, 4, v1")
    a("v_add_u32 v5, s10, v4")
    a("v_min_u32 v5, L_code_end-L_code_start-16, v5")
    a("global_load_dwordx4 v[8:11], v5, s[62:63]")
    a(f"s_lshl_b32 s10, s{S_H}, 13")
    a(f"s_add_u32 s10, s10, {WS_QPG}")
    a("v_add_u32 v6, s10, v4")
    a("s_waitcnt lgkmcnt(0)")
    srd(SRD_A, S_WUK, 4 << 20)
    srd(SRD_WS, S_WS, WS_SIZE)
    a(f"s_load_dword s44, s[{S_WS}:{S_WS + 1}], {WS_EPOCH}")
    a("s_mov_b32 s51, 4096")

    def qpg_load(k):
        so = "0" if k < 4 else "s51"
        a(f"buffer_load_dwordx4 {vr(64 + 4 * k, 4)}, v6, {WS}, {so} offen offset:{1024 * (k % 4)} sc1")

    if cfg.pretouch:
        qpg_load(3)
        qpg_load(7)
    for k in range(8):
        a(f"s_add_u32 m0, s11, {1024 * k}")
        a(f"v_xor_b32 v{28 + k % 2}, {(k % 4) * 64}, v7")
        a(f"buffer_load_dwordx4 v{28 + k % 2}, {RA}, s57 offen nt lds")
        if k < 7:
            a("s_add_u32 s57, s57, 32768")
    a(f"s_add_u32 s50, s12, s{S_J}")
    a("s_and_b32 s50, s50, 3")
    a(f"s_lshl_b32 s10, s{S_A}, 10")
    a("s_lshl_b32 s56, s50, 8")
    a("s_add_u32 s10, s10, s56")
    a(f"s_add_u32 s10, s10, {WS_AO}")
    a("v_lshlrev_b32 v31, 17, v3")
    a("v_lshl_add_u32 v31, v2, 4, v31")
    a("v_add_u32 v31, s10, v31")
    for k in range(4):
        a(f"v_mov_b32 v{12 + k}, -1")
    a(f"buffer_store_dwordx4 v[12:15], v31, {WS}, 0 offen sc1")
    a("s_cmp_eq_u32 s12, 0")
    a("s_cbranch_scc0 L_Ahi_noh")
    a(f"s_lshl_b32 s10, s{S_A}, 7")
    a(f"s_add_u32 s10, s10, {WS_H}")
    a("v_add_u32 v5, s10, v4")
    a("s_mov_b64 exec, 0xff")
    a(f"buffer_store_dwordx4 v[12:15], v5, {WS}, 0 offen sc1")
    a("s_mov_b64 exec, -1")
    a.label("L_Ahi_noh")
    a(f"s_lshl_b32 s10, s{S_H}, 11")
    a("s_lshl_b32 s56, s8, 2")
    a("s_add_u32 s10, s10, s56")
    a(f"s_add_u32 s10, s10, {WS_QL}")
    a("v_and_b32 v16, 3, v2")
    a("v_lshlrev_b32 v17, 16, v16")
    a("v_lshrrev_b32 v18, 2, v2")
    a("v_lshl_add_u32 v17, v18, 6, v17")
    a("v_lshl_add_u32 v17, v3, 4, v17")
    a("v_add_u32 v17, s10, v17")
    a("v_cmp_eq_u32 s[58:59], 1, v18")
    srd(SRD_B, S_WO, 4 << 20)
    a(f"s_lshl_b32 s10, s{S_H}, 17")
    a("s_lshl_b32 s56, s50, 8")
    a("s_add_u32 s10, s10, s56")
    a("v_lshlrev_b32 v19, 13, v3")
    a("v_lshl_add_u32 v19, v2, 4, v19")
    a("v_add_u32 v19, s10, v19")
    a("s_waitcnt lgkmcnt(0)")
    tags()
    a("v_mov_b32 v22, s48")
    a("v_mov_b32 v23, s49")
    a("s_barrier")
    a("s_waitcnt vmcnt(0)")
    TS(1)
    qpg_load(3)
    qpg_load(7)
    for t in range(4):
        a(f"v_xor_b32 v28, {t * 64}, v30")
        for ct in range(2):
            a(f"ds_read_b128 {vr(32 + 16 * ct + 4 * t, 4)}, v28 offset:{4096 * ct}")
    a("s_branch L_Ahi_canchk")
    a.label("L_Ahi_can")
    qpg_load(3)
    qpg_load(7)
    a.label("L_Ahi_canchk")
    a("s_waitcnt vmcnt(1)")
    a(f"v_cmp_ne_u64 s[60:61], s[48:49], {vr(64 + 12 + 2, 2)}")
    a("s_waitcnt vmcnt(0)")
    a(f"v_cmp_ne_u64 vcc, s[48:49], {vr(64 + 28 + 2, 2)}")
    a("s_or_b64 s[60:61], vcc, s[60:61]")
    a("s_cbranch_scc0 L_Ahi_poll")
    a("s_sub_u32 s13, s13, 1")
    a("s_cbranch_scc0 L_Ahi_can")
    a.label("L_Ahi_poll")
    rest = [0, 1, 2, 4, 5, 6]
    for k in rest:
        qpg_load(k)
    a("s_mov_b64 s[60:61], 0")
    for idx, k in enumerate(rest):
        a(f"s_waitcnt vmcnt({5 - idx})")
        tr = 64 + 4 * k + (0 if k % 2 == 0 else 2)
        a(f"v_cmp_ne_u64 vcc, s[48:49], {vr(tr, 2)}")
        a("s_or_b64 s[60:61], s[60:61], vcc")
    a("s_cmp_eq_u64 s[60:61], 0")
    a("s_cbranch_scc1 L_Ahi_got")
    a("s_sub_u32 s13, s13, 1")
    a("s_cbranch_scc0 L_Ahi_poll")
    a.label("L_Ahi_got")
    a("s_waitcnt lgkmcnt(0)")
    TS(2)
    for t in range(4):
        for ct in range(2):
            mfma16(96 + 4 * ct, 32 + 16 * ct + 4 * t, 66 + 8 * t, None if t == 0 else 96 + 4 * ct)
    dpp_ror_reduce(range(96, 104), (4, 8))
    for k in range(4):
        a(f"v_cndmask_b32 v{24 + k}, v{96 + k}, v{100 + k}, s[58:59]")
    sc = f32(128 ** -0.5 * math.log2(math.e))
    for k in range(4):
        a(f"v_mul_f32 v{24 + k}, {hex(sc)}, v{24 + k}")
    a("v_cvt_pk_bf16_f32 v20, v24, v25")
    a("v_cvt_pk_bf16_f32 v21, v26, v27")
    a("s_mov_b32 exec_lo, 0x00ff00ff")
    a("s_mov_b32 exec_hi, 0x00ff00ff")
    a(f"buffer_store_dwordx4 v[20:23], v17, {WS}, 0 offen sc1")
    a("s_mov_b64 exec, -1")
    a("s_barrier")
    for t in range(4):
        a(f"s_add_u32 s56, s{S_J}, {t}")
        a("s_and_b32 s56, s56, 3")
        a(f"s_lshl_b32 s{52 + t}, s56, 6")
        a("s_lshl_b32 s56, s56, 15")
        for hf in range(2):
            if hf:
                a("s_add_u32 s56, s56, 4096")
            for q in range(4):
                jj = hf * 4 + q
                a(f"buffer_load_dwordx4 {vr(128 + 32 * t + 4 * jj, 4)}, v19, {RB}, s56 offen offset:{1024 * q}{' nt' if cfg.nt_wo else ''}")
    for k in range(4):
        a(f"s_waitcnt vmcnt({8 * (3 - k)})")
        perm_set(128 + 32 * k, 96 + 32 * k)

    a.label("L_A_x")
    TS(3)
    T, AF, MK, D, STR = 32, 48, 64, 68, 72
    CL, CX = 0, 4096
    a(f"s_lshl_b32 s10, s{S_A}, 15")
    a(f"s_lshl_b32 s56, s{S_W}, 12")
    a("s_add_u32 s10, s10, s56")
    a(f"s_add_u32 s10, s10, {WS_OP}")
    a("v_lshlrev_b32 v5, 4, v1")
    a("v_add_u32 v5, s10, v5")
    a(f"s_lshr_b32 s10, s{S_W}, 1")
    a("s_lshl_b32 s10, s10, 14")
    a(f"s_lshl_b32 s56, s{S_H}, 4")
    a("s_add_u32 s10, s10, s56")
    a(f"s_add_u32 s10, s10, {WS_ST}")
    a("v_and_b32 v4, 31, v1")
    a("v_lshlrev_b32 v4, 9, v4")
    a("v_add_u32 v4, s10, v4")
    sel_masks(MK, 8)
    a(f"s_and_b32 s10, s{S_W}, 1")
    a("s_lshl_b32 s10, s10, 6")
    a("v_lshlrev_b32 v6, 2, v3")
    a("v_add_u32 v6, s10, v6")
    a(f"s_mul_i32 s10, s{S_W}, 272")
    a("v_lshlrev_b32 v8, 4, v2")
    a("v_lshl_add_u32 v8, v3, 3, v8")
    a("v_add_u32 v8, s10, v8")
    a("v_lshrrev_b32 v9, 2, v2")
    a("v_and_b32 v10, 1, v2")
    a("v_lshl_add_u32 v9, v9, 1, v10")
    a("v_mul_u32_u24 v9, 272, v9")
    a("v_lshl_add_u32 v9, v3, 4, v9")
    a(f"s_lshl_b32 s56, s{S_W}, 6")
    a("v_add_u32 v9, s56, v9")
    a("v_mul_u32_u24 v10, 1088, v3")
    a("v_lshl_add_u32 v10, v2, 4, v10")
    a(f"s_add_u32 s10, s10, {CX}")
    a("v_add_u32 v10, s10, v10")
    a("v_mul_u32_u24 v11, 272, v2")
    a("v_lshl_add_u32 v11, v3, 4, v11")
    a(f"v_add_u32 v11, {CX}, v11")
    canary(4, STR, True)
    a.label("L_A_stpoll")
    a(f"buffer_load_dwordx4 {vr(STR, 4)}, v4, {WS}, 0 offen sc1")
    a("s_waitcnt vmcnt(0)")
    a(f"v_cmp_ne_u64 vcc, s[48:49], {vr(STR + 2, 2)}")
    a("s_cbranch_vccz L_A_stgot")
    a("s_sub_u32 s13, s13, 1")
    a("s_cbranch_scc0 L_A_stpoll")
    a.label("L_A_stgot")
    TS(4)

    def op_loads():
        for i in range(4):
            a(f"buffer_load_dwordx4 {vr(T + 4 * i, 4)}, v5, {WS}, 0 offen offset:{1024 * i} sc1")

    op_loads()
    a(f"v_mov_b32 v12, v{STR}")
    dpp_ror_reduce([12], (1, 2, 4, 8), "v_max_f32")
    swap_reduce(12, 13, 16, "v_max_f32")
    a(f"v_sub_f32 v12, v{STR}, v12")
    a("v_exp_f32 v12, v12")
    a("v_cvt_pk_bf16_f32 v12, v12, v12")
    for i in range(4):
        a(f"ds_bpermute_b32 v{16 + i}, v6, v12 offset:{16 * i}")
    a("v_and_b32 v13, 0xffff0000, v12")
    a(f"v_mul_f32 v13, v13, v{STR + 1}")
    dpp_ror_reduce([13], (1, 2, 4, 8))
    swap_reduce(13, 14, 16)
    a("v_rcp_f32 v13, v13")
    for i in range(4):
        a(f"s_waitcnt lgkmcnt({3 - i})")
        for p in range(4):
            a(f"v_and_b32 v{AF + 4 * i + p}, v{16 + i}, v{MK + p}")
    if cfg.ts:
        a("s_waitcnt vmcnt(0)")
    TS(5)
    for i in range(4):
        a(f"s_waitcnt vmcnt({3 - i})")
        mfma16(D, AF + 4 * i, T + 4 * i, None if i == 0 else D)
    for k in range(4):
        a(f"v_mul_f32 v{D + k}, v{D + k}, v13")
    a(f"v_cvt_pk_bf16_f32 v14, v{D}, v{D + 1}")
    a(f"v_cvt_pk_bf16_f32 v15, v{D + 2}, v{D + 3}")
    a("s_mov_b32 exec_hi, 0")
    a("ds_write_b64 v8, v[14:15]")
    a("s_mov_b64 exec, -1")
    a("s_waitcnt lgkmcnt(0)")
    a("s_barrier")
    a(f"s_cmp_ge_u32 s{S_W}, 4")
    a("s_cbranch_scc1 L_A_x3")
    a("ds_read_b128 v[16:19], v9")
    a("s_waitcnt lgkmcnt(0)")
    for c in range(8):
        mfma16(96 + 4 * c, 16, 160 + 4 * c, None)
    for c in range(8):
        a(f"v_add_f32 v{96 + 4 * c}, v{96 + 4 * c}, v{97 + 4 * c}")
    for p in range(4):
        a(f"v_cvt_pk_bf16_f32 v{20 + p}, v{96 + 8 * p}, v{100 + 8 * p}")
    a("ds_write_b128 v10, v[20:23]")
    a("s_waitcnt lgkmcnt(0)")
    a("s_barrier")
    TS(6)
    a(f"s_cmp_eq_u32 s{S_W}, 0")
    END_IF("scc0", 7)
    a("s_branch L_A_fin")
    a.label("L_A_x3")
    for t in range(4):
        a(f"v_add_u32 v{24 + t}, s{52 + t}, v11")
    a("s_barrier")
    for t in range(4):
        a(f"ds_read_b128 {vr(32 + 4 * t, 4)}, v{24 + t}")
    for t in range(4):
        a(f"s_waitcnt lgkmcnt({3 - t})")
        for c in range(8):
            mfma16(224 + 4 * c, 32 + 4 * t, 96 + 32 * t + 4 * c, None if t == 0 else 224 + 4 * c)
    for c in range(8):
        x = 224 + 4 * c
        a(f"v_add_f32 v{x}, v{x}, v{x + 1}")
        a(f"v_add_f32 v{x + 2}, v{x + 2}, v{x + 3}")
        a(f"v_add_f32 v{x}, v{x}, v{x + 2}")
    for p in range(4):
        a(f"v_cvt_pk_bf16_f32 v{20 + p}, v{224 + 8 * p}, v{228 + 8 * p}")
    a(f"buffer_store_dwordx4 v[20:23], v31, {WS}, 0 offen sc1")
    TS(6)
    END(7)

    a.label("L_A_fin")
    a(f"s_lshl_b32 s10, s{S_J}, 10")
    a(f"s_lshl_b32 s56, s{S_H}, 5")
    a("s_add_u32 s10, s10, s56")
    a("v_lshrrev_b32 v4, 1, v2")
    a("v_lshl_add_u32 v4, v3, 3, v4")
    a("v_and_b32 v5, 1, v2")
    a("v_lshlrev_b32 v5, 4, v5")
    a("v_lshl_add_u32 v6, v3, 3, v5")
    a("v_add_u32 v6, s10, v6")
    a(f"s_add_u32 s11, s10, {WS_FP}")
    a("v_lshl_add_u32 v8, v4, 12, v5")
    a("v_add_u32 v8, s11, v8")
    a(f"v_add_u32 v9, {64 * 4096}, v8")
    a("s_lshl_b32 s10, s10, 2")
    a(f"s_add_u32 s10, s10, {WS_H}")
    a("v_add_u32 v10, s10, v5")
    a(f"v_cmp_eq_u32 vcc, {NSLICE - 64}, v4")
    a("v_cndmask_b32 v9, v9, v10, vcc")
    a(f"v_cmp_ge_u32 s[56:57], {NSLICE - 64}, v4")
    for k in range(4):
        a(f"v_mov_b32 v{40 + k}, 0")
        a(f"v_and_b32 v{16 + k}, 0x3f803f80, v{MK + k}")
    a(f"s_mov_b32 s11, {32 * 4096}")
    srd(SRD_A, S_OUT, 4096)
    canary(8, 32, False)
    a.label("L_A_fpoll")
    a(f"buffer_load_dwordx4 v[32:35], v8, {WS}, 0 offen sc1")
    a(f"buffer_load_dwordx4 v[36:39], v8, {WS}, s11 offen sc1")
    a("s_mov_b64 exec, s[56:57]")
    a(f"buffer_load_dwordx4 v[40:43], v9, {WS}, 0 offen sc1")
    a("s_mov_b64 exec, -1")
    a("s_waitcnt vmcnt(0)")
    valid_check(range(32, 44), 7, "L_A_fpoll")
    for i in range(3):
        mfma16(D, 16, 32 + 4 * i, None if i == 0 else D)
    dpp_ror_reduce(range(D, D + 4), (2, 4, 8))
    a(f"v_cvt_pk_bf16_f32 v14, v{D}, v{D + 1}")
    a(f"v_cvt_pk_bf16_f32 v15, v{D + 2}, v{D + 3}")
    a("s_mov_b64 exec, 0x00030003")
    a(f"buffer_store_dwordx2 v[14:15], v6, {RA}, 0 offen")
    a(f"s_cmp_eq_u32 s{S_A}, 0")
    a("s_cbranch_scc0 L_A_done")
    a("s_mov_b64 exec, 1")
    a("v_mov_b32 v9, s44")
    a("v_mov_b32 v10, 0")
    a(f"buffer_store_dword v9, v10, {WS}, 0 offen offset:{WS_EPOCH} sc1")
    a.label("L_A_done")
    if cfg.dbg:
        a(f"s_memrealtime s[{S_TS + 2}:{S_TS + 3}]")
        a("s_waitcnt lgkmcnt(0)")
        a("s_mov_b64 exec, 1")
        a(f"s_not_b32 s{S_TS}, s{S_TS}")
        a(f"v_mov_b32 v9, s{S_TS}")
        a(f"v_mov_b32 v11, s{S_TS + 2}")
        a("v_mov_b32 v10, 0")
        a("global_atomic_umax v10, v9, s[38:39]")
        a("global_atomic_umax v10, v11, s[38:39] offset:4")
    TS(7)
    END(8)

    a.label("L_B")
    S_BB, S_CH, S_R, S_SL = 6, 7, 9, 51
    QB = 131072
    MXB, PB, SB = QB, QB + 1024, QB + 1024 + 8704
    a(f"s_and_b32 s{S_I16}, s{S_I16}, 15")
    a(f"s_lshl_b32 s{S_R}, s{S_XCD}, 4")
    a(f"s_add_u32 s{S_R}, s{S_R}, s{S_I16}")
    a(f"s_lshr_b32 s{S_BB}, s{S_R}, 5")
    a(f"s_and_b32 s{S_CH}, s{S_R}, 31")
    a(f"s_lshr_b32 s10, s{S_W}, 1")
    a("s_lshl_b32 s10, s10, 15")
    a(f"s_lshl_b32 s11, s{S_R}, 8")
    a("s_add_u32 s10, s10, s11")
    a(f"s_and_b32 s11, s{S_W}, 1")
    a("s_lshl_b32 s11, s11, 7")
    a("s_add_u32 s10, s10, s11")
    a(f"s_add_u32 s10, s10, {WS_OP}")
    a("v_lshrrev_b32 v30, 3, v1")
    a("v_and_b32 v31, 7, v1")
    a("v_lshlrev_b32 v30, 17, v30")
    a("v_lshl_add_u32 v30, v31, 4, v30")
    a("v_add_u32 v30, s10, v30")
    for i in range(1, 4):
        a(f"s_mov_b32 s{52 + i}, {i << 20}")
    for k in range(4):
        a(f"v_mov_b32 v{26 + k}, -1")
    a(f"s_mul_i32 s{S_SL}, s{S_XCD}, 11")
    a(f"s_add_u32 s{S_SL}, s{S_SL}, s{S_I16}")
    a(f"s_cmp_lt_u32 s{S_I16}, 11")
    a(f"s_cselect_b32 s{S_SL}, s{S_SL}, 127")
    a(f"s_lshl_b32 s10, s{S_SL}, 12")
    a(f"s_lshl_b32 s11, s{S_W}, 7")
    a("s_add_u32 s10, s10, s11")
    a(f"s_add_u32 s10, s10, {WS_FP}")
    a("v_and_b32 v31, 3, v2")
    a("v_lshlrev_b32 v31, 10, v31")
    a("v_lshrrev_b32 v12, 2, v2")
    a("v_lshl_add_u32 v31, v12, 5, v31")
    a("v_lshl_add_u32 v31, v3, 3, v31")
    a("v_add_u32 v31, s10, v31")
    a(f"s_lshl_b32 s8, s{S_R}, 17")
    a(f"s_lshl_b32 s10, s{S_W}, 10")
    a("s_add_u32 s8, s8, s10")
    a(f"s_lshl_b32 s10, s{S_W}, 14")
    a("v_lshlrev_b32 v4, 4, v1")
    a(f"s_lshl_b32 s11, s{S_BB}, 16")
    a(f"s_add_u32 s11, s11, {WS_QL}")
    a("v_lshlrev_b32 v7, 4, v0")
    a("v_add_u32 v7, s11, v7")
    a("s_waitcnt lgkmcnt(0)")
    a(f"s_load_dword s44, s[{S_WS}:{S_WS + 1}], {WS_EPOCH}")
    srd(SRD_A, S_CKV, 16 << 20)
    srd(SRD_WS, S_WS, WS_SIZE)

    def q_load(i):
        a(f"buffer_load_dwordx4 {vr(96 + 4 * i, 4)}, v7, {WS}, {k8(i)} offen sc1")

    def clears():
        a(f"buffer_store_dwordx2 v[26:27], v31, {WS}, 0 offen sc1")

    if cfg.pretouch:
        q_load(0)
    if cfg.clr_pos == 0:
        clears()
    if cfg.b_delay:
        a("s_waitcnt lgkmcnt(0)")
    for i in range(16):
        a("s_mov_b32 m0, s10")
        a(f"v_xor_b32 v{5 + i % 2}, {FSW(i) * 16}, v4")
        a(f"buffer_load_dwordx4 v{5 + i % 2}, {RA}, s8 offen nt lds")
        if i < 15:
            a("s_add_u32 s10, s10, 1024")
            a("s_add_u32 s8, s8, 8192")
    a(f"s_lshr_b32 s10, s{S_W}, 1")
    a(f"s_and_b32 s11, s{S_W}, 1")
    a("s_lshl_b32 s11, s11, 5")
    a("s_lshl_b32 s12, s10, 2")
    a("s_xor_b32 s11, s11, s12")
    a("v_lshrrev_b32 v12, 1, v1")
    a("v_xor_b32 v12, s11, v12")
    a("v_lshlrev_b32 v12, 4, v12")
    a("v_and_b32 v13, 1, v1")
    a("v_lshl_add_u32 v12, v13, 3, v12")
    a("s_lshl_b32 s10, s10, 10")
    a(f"s_add_u32 s10, s10, {QB}")
    a("v_add_u32 v8, s10, v12")
    for k in range(1, 4):
        a(f"v_xor_b32 v{8 + k}, {G(k) * 16}, v8")
    a("v_lshrrev_b32 v12, 2, v2")
    a("v_lshlrev_b32 v12, 1, v12")
    a("v_mov_b32 v13, 0x78")
    a("v_lshrrev_b32 v12, v12, v13")
    a("v_and_b32 v12, 3, v12")
    a("v_and_b32 v13, 3, v2")
    a("v_lshl_add_u32 v12, v13, 2, v12")
    a("v_xor_b32 v12, v12, v3")
    a("v_lshlrev_b32 v12, 4, v12")
    a("v_lshl_add_u32 v12, v2, 10, v12")
    a(f"s_lshl_b32 s10, s{S_W}, 14")
    for tt in range(4):
        a(f"v_xor_b32 v13, {tt * 64}, v12")
        a(f"v_add_u32 v{14 + tt}, s10, v13")
        a(f"v_add_u32 v{18 + tt}, {QB}, v13")
    a("s_waitcnt lgkmcnt(0)")
    tags()
    TS(1)
    a("s_waitcnt vmcnt(0)")
    TS(2)
    if cfg.clr_pos == 1:
        clears()
    q_load(0)
    for t in range(16):
        a(f"ds_read_b128 {vr(32 + 4 * t, 4)}, v{14 + t % 4} offset:{256 * (t // 4)}")
    a("s_branch L_B_canchk")
    a.label("L_B_canary")
    if cfg.qsleep:
        a(f"s_sleep {cfg.qsleep}")
    q_load(0)
    a.label("L_B_canchk")
    a("s_waitcnt vmcnt(0)")
    a(f"v_cmp_ne_u64 vcc, s[48:49], {vr(98, 2)}")
    a("s_cbranch_vccz L_B_qpoll")
    a("s_sub_u32 s13, s13, 1")
    a("s_cbranch_scc0 L_B_canary")
    a.label("L_B_qpoll")
    for i in range(1, 8):
        q_load(i)
    a("s_mov_b64 s[60:61], 0")
    for i in range(1, 8):
        a(f"s_waitcnt vmcnt({7 - i})")
        a(f"v_cmp_ne_u64 vcc, s[48:49], {vr(98 + 4 * i, 2)}")
        a("s_or_b64 s[60:61], s[60:61], vcc")
    a("s_cmp_eq_u64 s[60:61], 0")
    a("s_cbranch_scc1 L_B_gotq")
    a("s_sub_u32 s13, s13, 1")
    a("s_cbranch_scc0 L_B_qpoll")
    a.label("L_B_gotq")
    for i in range(8):
        a(f"ds_write_b64 v{8 + i % 4}, {vr(96 + 4 * i, 2)} offset:{4096 * i}")
    a("s_waitcnt lgkmcnt(0)")
    TS(3)
    a("s_barrier")
    seq = [(t, ht) for t in range(16) for ht in range(2)]
    DEPTH = 8

    def qread(k):
        t, ht = seq[k]
        a(f"ds_read_b128 {vr(96 + 4 * (k % 8), 4)}, v{18 + t % 4} offset:{256 * (t // 4) + 16384 * ht}")

    for k in range(DEPTH):
        qread(k)
    if cfg.xgate:
        a(f"s_cmp_eq_u32 s{S_W}, 7")
        a("s_cbranch_scc0 L_B_nogo")
        a(f"s_lshl_b32 s10, s{S_R}, 7")
        a(f"s_add_u32 s10, s10, {WS_GO}")
        a("v_mov_b32 v25, s10")
        a("v_mov_b32 v28, s48")
        a("v_mov_b32 v29, s49")
        a("s_mov_b64 exec, 1")
        a(f"buffer_store_dwordx4 v[26:29], v25, {WS}, 0 offen sc1")
        a("s_mov_b64 exec, -1")
        a.label("L_B_nogo")
    if cfg.clr_pos == 2:
        clears()
    for k in range(32):
        t, ht = seq[k]
        outstanding = min(32, k + DEPTH) - k - 1
        a(f"s_waitcnt lgkmcnt({outstanding})")
        mfma16(128 + 4 * ht, 32 + 4 * t, 96 + 4 * (k % 8), None if t == 0 else 128 + 4 * ht)
        if k + DEPTH < 32:
            qread(k + DEPTH)
    a("v_lshrrev_b32 v8, 5, v1")
    a("v_lshrrev_b32 v9, 2, v2")
    a("v_lshl_add_u32 v10, v8, 3, v9")
    a("v_lshlrev_b32 v10, 10, v10")
    a("v_and_b32 v11, 1, v1")
    a("v_lshl_add_u32 v10, v11, 3, v10")
    a("v_and_b32 v11, 1, v3")
    a("v_bfe_u32 v12, v1, 1, 1")
    a("v_lshl_add_u32 v11, v11, 1, v12")
    a(f"s_lshl_b32 s10, s{S_W}, 3")
    a("v_add_u32 v11, s10, v11")
    a("v_lshlrev_b32 v9, 2, v9")
    a("v_xor_b32 v11, v11, v9")
    a("v_mul_u32_u24 v8, 3, v8")
    a("v_xor_b32 v11, v11, v8")
    a("v_lshl_add_u32 v14, v11, 4, v10")
    a("v_xor_b32 v15, 64, v14")
    a("v_xor_b32 v16, 32, v14")
    a("v_add_u32 v16, 4096, v16")
    a("v_xor_b32 v17, 64, v16")
    for k in range(4):
        a(f"v_add_u32 v{18 + k}, 0x10000, v{14 + k}")
    a("v_max3_f32 v22, v128, v129, v130")
    a("v_max3_f32 v23, v132, v133, v134")
    a("v_max_f32 v22, v22, v131")
    a("v_max_f32 v23, v23, v135")
    a("v_permlane32_swap_b32 v22, v23")
    a("v_max_f32 v22, v22, v23")
    swap_reduce(22, 23, 16, "v_max_f32")
    a("v_lshrrev_b32 v8, 5, v1")
    a("v_lshl_add_u32 v8, v8, 4, v2")
    a(f"s_lshl_b32 s10, s{S_W}, 2")
    a(f"s_add_u32 s10, s10, {MXB}")
    a("v_lshlrev_b32 v8, 5, v8")
    a("v_add_u32 v8, s10, v8")
    a("v_lshlrev_b32 v9, 5, v2")
    a(f"v_add_u32 v9, {MXB}, v9")
    for ct in range(2):
        for s in range(8):
            for u in range(2):
                base = (14 if s < 4 else 18) + 2 * u + ct
                a(f"ds_read_b64_tr_b16 {vr(32 + (ct * 8 + s) * 4 + 2 * u, 2)}, v{base} offset:{16384 * (s % 4)}")
    a("s_barrier")
    a("ds_write_b32 v8, v22")
    a("s_waitcnt lgkmcnt(0)")
    a("s_barrier")
    a("ds_read_b128 v[96:99], v9")
    a("ds_read_b128 v[100:103], v9 offset:16")
    a("ds_read_b128 v[104:107], v9 offset:512")
    a("ds_read_b128 v[108:111], v9 offset:528")
    a(f"s_lshl_b32 s10, s{S_W}, 5")
    a(f"s_add_u32 s10, s10, {PB}")
    a("v_mul_u32_u24 v10, 272, v2")
    a("v_lshl_add_u32 v10, v3, 3, v10")
    a("v_add_u32 v10, s10, v10")
    a(f"s_lshl_b32 s10, s{S_W}, 4")
    a(f"s_add_u32 s10, s10, {SB}")
    a("v_mul_u32_u24 v11, 144, v2")
    a("v_lshl_add_u32 v11, v3, 2, v11")
    a("v_add_u32 v11, s10, v11")
    a("v_and_b32 v12, 31, v1")
    a("v_lshrrev_b32 v13, 5, v1")
    a("v_mov_b32 v25, 0")
    a("v_mul_u32_u24 v24, 272, v12")
    a("v_lshl_add_u32 v24, v13, 4, v24")
    a(f"v_add_u32 v24, {PB}, v24")
    for ht in range(2):
        b0 = 96 + 8 * ht
        a(f"s_waitcnt lgkmcnt({2 - 2 * ht})")
        a(f"v_max3_f32 v{22 + ht}, v{b0}, v{b0 + 1}, v{b0 + 2}")
        a(f"v_max3_f32 v{22 + ht}, v{22 + ht}, v{b0 + 3}, v{b0 + 4}")
        a(f"v_max3_f32 v{22 + ht}, v{22 + ht}, v{b0 + 5}, v{b0 + 6}")
        a(f"v_max_f32 v{22 + ht}, v{22 + ht}, v{b0 + 7}")
        for r in range(4):
            a(f"v_sub_f32 v{128 + 4 * ht + r}, v{128 + 4 * ht + r}, v{22 + ht}")
        for r in range(4):
            a(f"v_exp_f32 v{128 + 4 * ht + r}, v{128 + 4 * ht + r}")
    for ht in range(2):
        x = 128 + 4 * ht
        a(f"v_cvt_pk_bf16_f32 v{26 + 2 * ht}, v{x}, v{x + 1}")
        a(f"v_cvt_pk_bf16_f32 v{27 + 2 * ht}, v{x + 2}, v{x + 3}")
        a(f"ds_write_b64 v10, {vr(26 + 2 * ht, 2)} offset:{4352 * ht}")
        a(f"v_add_f32 v{x}, v{x}, v{x + 1}")
        a(f"v_add_f32 v{x + 2}, v{x + 2}, v{x + 3}")
        a(f"v_add_f32 v{x}, v{x}, v{x + 2}")
        a(f"ds_write_b32 v11, v{x} offset:{2304 * ht}")
    a("s_waitcnt lgkmcnt(0)")
    a("s_barrier")
    TS(4)
    for s in range(8):
        a(f"ds_read_b128 {vr(96 + 4 * s, 4)}, v24 offset:{32 * s}")
    a(f"s_cmp_eq_u32 s{S_W}, 7")
    a("s_cbranch_scc0 L_B_nost")
    a("v_mul_u32_u24 v25, 144, v12")
    a("v_lshl_add_u32 v25, v13, 6, v25")
    a(f"v_add_u32 v25, {SB}, v25")
    for k in range(4):
        a(f"ds_read_b128 {vr(136 + 4 * k, 4)}, v25 offset:{16 * k}")
    a("v_and_b32 v26, 1, v3")
    a("v_cmp_eq_u32 vcc, 1, v26")
    a("v_cndmask_b32 v26, v22, v23, vcc")
    a(f"s_lshl_b32 s10, s{S_R}, 9")
    a(f"s_add_u32 s10, s10, {WS_ST}")
    a("v_lshlrev_b32 v25, 4, v12")
    a("v_add_u32 v25, s10, v25")
    a("s_waitcnt lgkmcnt(0)")
    for k in range(8):
        a(f"v_add_f32 v{136 + k}, v{136 + k}, v{144 + k}")
    for k in range(4):
        a(f"v_add_f32 v{136 + k}, v{136 + k}, v{140 + k}")
    a("v_add_f32 v136, v136, v138")
    a("v_add_f32 v137, v137, v139")
    a("v_add_f32 v27, v136, v137")
    swap_reduce(27, 28, 32)
    a("v_mov_b32 v28, s48")
    a("v_mov_b32 v29, s49")
    a.label("L_B_nost")
    if cfg.prio_pv:
        a(f"s_cmp_lt_u32 s{S_W}, 4")
        a("s_cbranch_scc0 L_B_noprio")
        a("s_setprio 2")
        a.label("L_B_noprio")
    a(f"s_lshl_b32 s10, s{S_W}, 13")
    a("v_mul_u32_u24 v8, 144, v12")
    a("v_lshl_add_u32 v8, v13, 3, v8")
    a("v_add_u32 v8, s10, v8")
    a("v_lshrrev_b32 v10, 3, v1")
    a("v_and_b32 v11, 7, v1")
    a("v_mul_u32_u24 v9, 144, v10")
    a("v_lshl_add_u32 v9, v11, 4, v9")
    a("v_add_u32 v9, s10, v9")
    for ct in range(2):
        for s in range(8):
            if ct == 0:
                a(f"s_waitcnt lgkmcnt({7 - s})")
            cin = "0" if s == 0 else vr(128 + 16 * ct, 16)
            a(f"v_mfma_f32_32x32x16_bf16 {vr(128 + 16 * ct, 16)}, {vr(32 + (ct * 8 + s) * 4, 4)}, {vr(96 + 4 * s, 4)}, {cin}")
    for ct in range(2):
        for g4 in range(4):
            x = 128 + 16 * ct + 4 * g4
            d = 14 + 2 * ((ct * 4 + g4) % 4)
            a(f"v_cvt_pk_bf16_f32 v{d}, v{x}, v{x + 1}")
            a(f"v_cvt_pk_bf16_f32 v{d + 1}, v{x + 2}, v{x + 3}")
            a(f"ds_write_b64 v8, {vr(d, 2)} offset:{64 * ct + 16 * g4}")
    a("s_waitcnt lgkmcnt(0)")
    for i in range(4):
        a(f"ds_read_b128 {vr(96 + 4 * i, 4)}, v9 offset:{1152 * i}")
    for i in range(4):
        so = "0" if i == 0 else f"s{52 + i}"
        a(f"s_waitcnt lgkmcnt({3 - i})")
        a(f"buffer_store_dwordx4 {vr(96 + 4 * i, 4)}, v30, {WS}, {so} offen sc1")
    if cfg.prio_pv:
        a("s_setprio 0")
    TS(5)
    a("s_waitcnt vmcnt(0)")
    a("s_barrier")
    a(f"s_cmp_eq_u32 s{S_W}, 7")
    a("s_cbranch_scc0 L_B_nost2")
    a("s_mov_b32 exec_hi, 0")
    a(f"buffer_store_dwordx4 v[26:29], v25, {WS}, 0 offen sc1")
    a("s_mov_b64 exec, -1")
    a.haz_flush(3)
    a.label("L_B_nost2")
    if cfg.ts:
        TS(1)

    GW, UW, DW = 0, 16384, 32768
    GP, AB, ZB = 65536, 65536 + 4096, 65536 + 8192
    S1B, S2B = GP + 2048, GP + 2048 + 64
    a(f"s_cmp_ge_u32 s{S_SL}, {NSLICE}")
    a("s_cbranch_scc1 L_B_red")
    srd(SRD_A, S_WG, 512 * 2752)
    srd(SRD_B, S_WU, 512 * 2752)
    a("v_lshrrev_b32 v4, 1, v1")
    a("v_mul_u32_u24 v4, 2752, v4")
    a("v_and_b32 v5, 1, v1")
    a("v_lshl_add_u32 v4, v5, 4, v4")
    a(f"s_lshl_b32 s12, s{S_SL}, 1")
    a(f"s_add_u32 s12, s12, s{S_W}")
    a("s_and_b32 s12, s12, 7")
    a(f"s_mul_i32 s10, s12, {64 * 2752}")
    a(f"s_lshl_b32 s11, s{S_SL}, 5")
    a("s_add_u32 s10, s10, s11")
    a(f"s_add_u32 s11, s10, {32 * 2752}")
    a("s_lshl_b32 s12, s12, 11")
    for (R, base) in ((RA, GW), (RB, UW)):
        for k in range(2):
            a(f"s_add_u32 m0, s12, {base + 1024 * k}")
            a("s_nop 0")
            a(f"buffer_load_dwordx4 v4, {R}, s{10 + k} offen{' nt' if cfg.nt_ffn else ''} lds")
    srd(SRD_A, S_WD, 1376 * 1024)
    a("v_lshlrev_b32 v4, 4, v1")
    a(f"s_lshl_b32 s10, s{S_SL}, 14")
    a("s_add_u32 s10, s10, s12")
    a("s_add_u32 s11, s10, 1024")
    for k in range(2):
        a(f"s_add_u32 m0, s12, {DW + 1024 * k}")
        a("s_nop 0")
        a(f"buffer_load_dwordx4 v4, {RA}, s{10 + k} offen nt lds")
    a("v_mov_b32 v4, 0")
    a("v_mov_b32 v5, 0")
    a(f"v_mov_b32 v6, {ZB}")
    a("ds_write_b64 v6, v[4:5]")
    a(f"s_and_b32 s10, s{S_W}, 3")
    a("s_lshl_b32 s11, s10, 12")
    a("v_lshlrev_b32 v8, 8, v3")
    a("v_lshl_add_u32 v8, v2, 3, v8")
    a("v_add_u32 v8, s11, v8")
    a("v_lshrrev_b32 v9, 2, v2")
    a("v_lshl_add_u32 v10, v3, 2, v9")
    a("v_lshlrev_b32 v10, 10, v10")
    a("v_and_b32 v11, 3, v2")
    a("v_lshl_add_u32 v10, v11, 3, v10")
    a(f"s_lshl_b32 s11, s{S_W}, 7")
    a(f"s_add_u32 s12, s11, {DW}")
    a("v_add_u32 v10, s12, v10")
    a("v_lshlrev_b32 v12, 12, v9")
    a("v_lshrrev_b32 v13, 1, v3")
    a("v_lshl_add_u32 v12, v13, 7, v12")
    a("v_and_b32 v13, 1, v3")
    a("v_lshl_add_u32 v12, v13, 4, v12")
    a("s_lshl_b32 s12, s10, 10")
    a(f"s_add_u32 s12, s12, {WS_H}")
    a("v_add_u32 v12, s12, v12")
    a("s_lshl_b32 s12, s10, 2")
    a("v_lshlrev_b32 v13, 4, v1")
    a(f"v_add_u32 v13, {GP}, v13")
    a("v_add_u32 v14, s12, v13")
    a("v_lshlrev_b32 v15, 4, v3")
    a(f"v_add_u32 v15, {S1B}, v15")
    a("v_add_u32 v16, s12, v15")
    a("v_cmp_eq_u32 s[56:57], v9, v3")
    a(f"s_add_u32 s11, s11, {AB}")
    a("v_lshlrev_b32 v17, 1, v1")
    a("v_add_u32 v17, s11, v17")
    a("v_lshlrev_b32 v18, 5, v11")
    a("v_lshl_add_u32 v18, v3, 3, v18")
    a("v_add_u32 v18, s11, v18")
    for tau in range(4):
        a(f"v_cmp_eq_u32 vcc, {tau}, v9")
        a(f"v_cndmask_b32 v{20 + tau}, v6, v18, vcc")
    a("s_waitcnt vmcnt(0) lgkmcnt(0)")
    a("s_barrier")
    for tau in range(4):
        a(f"ds_read_b64_tr_b16 {vr(64 + 2 * tau, 2)}, v10 offset:{32 * tau}")
    for mtx in range(2):
        for t in range(4):
            for u in range(2):
                a(f"ds_read_b64_tr_b16 {vr(32 + 16 * mtx + 4 * t + 2 * u, 2)}, v8 offset:{UW * mtx + 1024 * t + 128 * u}")
    for p in range(4):
        a(f"v_mov_b32 v{72 + p}, 0x3f803f80")
    a("s_waitcnt lgkmcnt(0)")
    for t in range(4):
        for mtx in range(2):
            mfma16(76 + 4 * mtx, 72, 32 + 16 * mtx + 4 * t, None if t == 0 else 76 + 4 * mtx)
    a("ds_write_b32 v14, v76")
    a("ds_write_b32 v14, v80 offset:1024")
    a("s_waitcnt lgkmcnt(0)")
    a("s_barrier")
    a("ds_read_b128 v[76:79], v13")
    a("ds_read_b128 v[80:83], v13 offset:1024")
    a("s_waitcnt lgkmcnt(0)")
    for x, o in ((76, 24), (80, 25)):
        a(f"v_add_f32 v{x}, v{x}, v{x + 1}")
        a(f"v_add_f32 v{x + 2}, v{x + 2}, v{x + 3}")
        a(f"v_add_f32 v{o}, v{x}, v{x + 2}")
    a("s_barrier")

    TS(6)
    a("s_branch L_B_hcan")
    a.label("L_B_red")
    TS(6)
    a(f"s_cmp_lt_u32 s{S_I16}, 12")
    END_IF("scc1", 7)
    a(f"s_cmp_ge_u32 s{S_W}, 4")
    END_IF("scc1", 7)
    a(f"s_lshl_b32 s{S_R}, s{S_XCD}, 2")
    a(f"s_add_u32 s{S_R}, s{S_R}, s{S_I16}")
    a(f"s_sub_u32 s{S_R}, s{S_R}, 12")
    a(f"s_lshl_b32 s{S_R}, s{S_R}, 2")
    a(f"s_add_u32 s{S_R}, s{S_R}, s{S_W}")
    a(f"s_lshr_b32 s{S_BB}, s{S_R}, 5")
    a(f"s_and_b32 s{S_CH}, s{S_R}, 31")
    MK2, D2 = 112, 116
    sel_masks(MK2, 4)
    for k in range(4):
        a(f"v_and_b32 v{MK2 + k}, 0x3f803f80, v{MK2 + k}")
    a("v_lshrrev_b32 v4, 1, v2")
    a("v_lshl_add_u32 v4, v3, 3, v4")
    a("v_and_b32 v5, 1, v2")
    a("v_lshlrev_b32 v5, 4, v5")
    a("v_lshl_add_u32 v26, v3, 3, v5")
    a(f"s_lshl_b32 s10, s{S_R}, 5")
    a("v_and_b32 v27, 31, v26")
    a("v_add_u32 v27, s10, v27")
    a(f"global_load_dwordx2 v[28:29], v27, s[{S_X}:{S_X + 1}]")
    a(f"s_lshl_b32 s10, s{S_BB}, 17")
    a(f"s_lshl_b32 s11, s{S_CH}, 5")
    a("s_add_u32 s10, s10, s11")
    a(f"s_add_u32 s10, s10, {WS_AO}")
    a("v_lshl_add_u32 v4, v4, 10, v5")
    a("v_add_u32 v4, s10, v4")
    a(f"s_lshl_b32 s10, s{S_R}, 7")
    a(f"s_add_u32 s10, s10, {WS_H}")
    a("v_add_u32 v26, s10, v26")
    a("s_mov_b32 s10, 65536")
    a("s_mov_b32 s11, 98304")
    a("v_cmp_gt_u32 vcc, 2, v2")
    a("s_waitcnt vmcnt(0)")
    a("v_cndmask_b32 v28, 0, v28, vcc")
    a("v_cndmask_b32 v29, 0, v29, vcc")
    a("v_lshlrev_b32 v120, 16, v28")
    a("v_and_b32 v121, 0xffff0000, v28")
    a("v_lshlrev_b32 v122, 16, v29")
    a("v_and_b32 v123, 0xffff0000, v29")
    canary(4, 96, False)
    a.label("L_B_aopoll")
    for i in range(4):
        so = ["0", k8(4), "s10", "s11"][i]
        a(f"buffer_load_dwordx4 {vr(96 + 4 * i, 4)}, v4, {WS}, {so} offen sc1")
    a("s_waitcnt vmcnt(0)")
    valid_check(range(96, 112), 5, "L_B_aopoll")
    for i in range(4):
        mfma16(D2, MK2, 96 + 4 * i, 120 if i == 0 else D2)
    dpp_ror_reduce(range(D2, D2 + 4), (2, 4, 8))
    a(f"v_cvt_pk_bf16_f32 v28, v{D2}, v{D2 + 1}")
    a(f"v_cvt_pk_bf16_f32 v29, v{D2 + 2}, v{D2 + 3}")
    a("s_mov_b64 exec, 0x00030003")
    a(f"buffer_store_dwordx2 v[28:29], v26, {WS}, 0 offen sc1")
    TS(7)
    END(8)

    a.label("L_B_hcan")
    canary(12, 96, False)
    a.label("L_B_hpoll")
    for t in range(4):
        a(f"buffer_load_dwordx4 {vr(96 + 4 * t, 4)}, v12, {WS}, 0 offen offset:{256 * t} sc1")
    a("s_waitcnt vmcnt(0)")
    valid_check(range(96, 112), 5, "L_B_hpoll")
    TS(7)
    a(f"s_cmp_ge_u32 s{S_W}, 4")
    a("s_cbranch_scc1 L_B_stats")
    for t in range(4):
        for mtx in range(2):
            mfma16(76 + 4 * mtx, 96 + 4 * t, 32 + 16 * mtx + 4 * t, None if t == 0 else 76 + 4 * mtx)
    a("ds_write_b32 v14, v76")
    a("ds_write_b32 v14, v80 offset:1024")
    a("s_branch L_B_f1done")
    a.label("L_B_stats")
    for t in range(4):
        mfma16(76, 96 + 4 * t, 72, None if t == 0 else 76)
        mfma16(80, 96 + 4 * t, 96 + 4 * t, None if t == 0 else 80)
    a("s_mov_b64 exec, s[56:57]")
    a("ds_write_b32 v16, v76")
    a("ds_write_b32 v16, v80 offset:64")
    a("s_mov_b64 exec, -1")
    a.label("L_B_f1done")
    a("s_waitcnt lgkmcnt(0)")
    a("s_barrier")
    a("ds_read_b128 v[84:87], v15")
    a("ds_read_b128 v[88:91], v15 offset:64")
    a("ds_read_b128 v[76:79], v13")
    a("ds_read_b128 v[80:83], v13 offset:1024")
    a("s_waitcnt lgkmcnt(2)")
    for x in (84, 88):
        a(f"v_add_f32 v{x}, v{x}, v{x + 1}")
        a(f"v_add_f32 v{x + 2}, v{x + 2}, v{x + 3}")
        a(f"v_add_f32 v{x}, v{x}, v{x + 2}")
    a(f"v_mul_f32 v84, {hex(f32(1.0 / 512))}, v84")
    a(f"v_mul_f32 v88, {hex(f32(1.0 / 512))}, v88")
    a("v_fma_f32 v88, -v84, v84, v88")
    a("v_max_f32 v88, 0, v88")
    a(f"v_add_f32 v88, {hex(f32(1e-5))}, v88")
    a("v_rsq_f32 v88, v88")
    a("s_waitcnt lgkmcnt(0)")
    for x in (76, 80):
        a(f"v_add_f32 v{x}, v{x}, v{x + 1}")
        a(f"v_add_f32 v{x + 2}, v{x + 2}, v{x + 3}")
        a(f"v_add_f32 v{x}, v{x}, v{x + 2}")
    a("v_fma_f32 v76, -v84, v24, v76")
    a("v_fma_f32 v80, -v84, v25, v80")
    a("v_mul_f32 v76, v76, v88")
    a("v_mul_f32 v80, v80, v88")
    a(f"v_mul_f32 v77, {hex(f32(-math.log2(math.e)))}, v76")
    a("v_exp_f32 v77, v77")
    a("v_mul_f32 v76, v76, v80")
    a("v_add_f32 v77, 1.0, v77")
    a("v_rcp_f32 v77, v77")
    a("v_mul_f32 v76, v76, v77")
    a("v_cvt_pk_bf16_f32 v76, v76, v76")
    a("ds_write_b16 v17, v76")
    a("s_waitcnt lgkmcnt(0)")
    for tau in range(4):
        a(f"ds_read_b64 {vr(84 + 2 * tau, 2)}, v{20 + tau}")
    for tau in range(4):
        a(f"s_waitcnt lgkmcnt({3 - tau})")
        cin = "0" if tau == 0 else "v[76:79]"
        a(f"v_mfma_f32_16x16x16_bf16 v[76:79], {vr(64 + 2 * tau, 2)}, {vr(84 + 2 * tau, 2)}, {cin}")
    a("v_cvt_pk_bf16_f32 v80, v76, v77")
    a("v_cvt_pk_bf16_f32 v81, v78, v79")
    a(f"buffer_store_dwordx2 v[80:81], v31, {WS}, 0 offen sc1")
    TS(2)
    if cfg.ts:
        END(8)
    a.label("L_end")
    a("s_endpgm")
    a.label("L_code_end")

    body = a.render()
    hdr = open("sequential_preLN__compressed_kv_cla__swiglu_ffn__decode.s.ref").read().split("\n")
    head = []
    for line in hdr:
        if line.startswith("; @launch"):
            head.append("; @launch grid=(256,1,1) block=(512,1,1) lds=163840")
            break
        head.append(line)
    text = "\n".join(head) + f"""
.amdgcn_target "amdgcn-amd-amdhsa--gfx950"
.text
.globl {KNAME}
.p2align 8
.type {KNAME},@function
{KNAME}:
{body}.section .rodata,"a"
.p2align 6
.amdhsa_kernel {KNAME}
  .amdhsa_next_free_vgpr 256
  .amdhsa_next_free_sgpr 102
  .amdhsa_accum_offset 256
  .amdhsa_group_segment_fixed_size 0
  .amdhsa_kernarg_size 104
  .amdhsa_user_sgpr_count 2
  .amdhsa_user_sgpr_kernarg_segment_ptr 1
  .amdhsa_system_sgpr_workgroup_id_x 1
.end_amdhsa_kernel
"""
    return text


if __name__ == "__main__":
    cfg = Cfg()
    out = "sequential_preLN__compressed_kv_cla__swiglu_ffn__decode.s"
    for arg in sys.argv[1:]:
        if arg.startswith("out="):
            out = arg[4:]
        else:
            k, v = arg.split("=")
            assert hasattr(cfg, k), k
            setattr(cfg, k, int(v))
    open(out, "w").write(gen(cfg))
    print("wrote", out)
```

```python
import sys, math, struct
sys.path.insert(0, "dev")
from asmgen import Asm, vr, sr

KNAME = "sequential_preLN__compressed_kv_cla__swiglu_ffn__decode_kernel"

WS_EPOCH = 0x0
WS_H = 0x004000
WS_GO = 0x008000
WS_QPG = 0x010000
WS_FL = 0x0E0000
WS_QPG2 = 0x600000
WS_QL = 0x080000
WS_ST = 0x0C0000
WS_AO = 0x100000
WS_FP = 0x180000
WS_OP = 0x200000
WS_DBG = 0x800000
WS_SIZE = 0x1000000

NSLICE = 86
SPIN = 1 << 16


def f32(x):
    return struct.unpack("<I", struct.pack("<f", x))[0]


def G(x):
    return [0, 2, 3, 1][x]


def FSW(k):
    return ((k % 4) << 2) | G((k // 4) % 4)


class Cfg:
    ts = 0
    dbg = 0
    prio_pv = 1
    b_delay = 1
    qsleep = 2
    uv_early = 0
    pretouch = 1
    clr_pos = 0
    csleep = 2
    nt_wo = 1
    nt_ffn = 1
    xgate = 3
    e1full = 1
    dma_depth = 8
    dma_n = 16
    ukpf = 1
    ffn_early = 0
    e1local = 1
    wo_depth = 0
    wo_n = 32
    ckpf = 0
    ukpf_n = 8
    q3_at = 20
    b0_at = 31
    ffnpf = 2
    mp = 0
    fl = 0
    scout = 0
    ssleep = 4
    go_at = 32
    bs_at = -1


def gen(cfg):
    a = Asm()
    S_X, S_CKV, S_WQ, S_WUK, S_WUV, S_WO, S_WG, S_WU, S_WD, S_OUT, S_WS = 16, 18, 20, 22, 24, 26, 30, 32, 34, 36, 40
    S_W, S_XCD, S_I16 = 3, 4, 5
    S_K8 = 64
    SRD_WS, SRD_A, SRD_B = 72, 76, 80
    S_TS = 84
    WS = f"s[{SRD_WS}:{SRD_WS + 3}]"
    RA = f"s[{SRD_A}:{SRD_A + 3}]"
    RB = f"s[{SRD_B}:{SRD_B + 3}]"
    DPPM = "row_mask:0xf bank_mask:0xf"
    inA = [True]

    def TS(idx, lvl=1):
        if not cfg.ts:
            return
        if cfg.ts == 2 and lvl == 1 and idx in (3, 4, 5) and inA[0]:
            return
        if lvl == 2 and cfg.ts != 2:
            return
        if lvl == 3 and cfg.ts != 3:
            return
        if cfg.ts == 3 and lvl == 1 and idx in (1, 2, 6, 7) and not inA[0]:
            return
        a(f"s_memrealtime s[{S_TS + 2 * idx}:{S_TS + 2 * idx + 1}]")
        a("s_waitcnt lgkmcnt(0)")

    def END(n=8):
        if cfg.ts:
            a("s_mov_b64 exec, 1")
            a(f"s_lshl_b32 s8, s2, 3")
            a(f"s_add_u32 s8, s8, s{S_W}")
            a(f"s_lshl_b32 s8, s8, 6")
            a(f"s_add_u32 s8, s8, {WS_DBG}")
            a("v_mov_b32 v2, s8")
            for i in range(n):
                a(f"v_mov_b32 v3, s{S_TS + 2 * i}")
                a(f"buffer_store_dword v3, v2, {WS}, 0 offen offset:{4 * i}")
            a("s_waitcnt vmcnt(0)")
        a("s_endpgm")

    def END_IF(cond_branch_true, n=8):
        if cfg.ts:
            lab = a.newlabel("Lcont")
            a(f"s_cbranch_{'scc0' if cond_branch_true == 'scc1' else 'scc1'} {lab}")
            END(n)
            a.label(lab)
        else:
            a(f"s_cbranch_{cond_branch_true} L_end")

    def srd(dst, ptr, nbytes):
        a(f"s_mov_b32 s{dst}, s{ptr}")
        a(f"s_mov_b32 s{dst + 1}, s{ptr + 1}")
        a(f"s_mov_b32 s{dst + 2}, {nbytes}")
        a(f"s_mov_b32 s{dst + 3}, 0x20000")

    def k8(i):
        return "0" if i == 0 else f"s{S_K8 + i}"

    def tags():
        a("s_add_u32 s44, s44, 1")
        a("s_mul_i32 s48, s44, 0x9E3779B1")
        a("s_xor_b32 s48, s48, 0x85EBCA6B")
        a("s_mul_i32 s49, s44, 0xC2B2AE35")
        a("s_add_u32 s49, s49, 0x27D4EB2F")

    def perm_set(src, dst):
        for c in range(8):
            dw, e = c // 2, c % 2
            sel = "s14" if e == 0 else "s15"
            for p in range(4):
                a(f"v_perm_b32 v{dst + 4 * c + p}, v{src + 4 * (2 * p + 1) + dw}, v{src + 4 * (2 * p) + dw}, {sel}")

    def swap_reduce(reg, tmp, which, op="v_add_f32"):
        a(f"v_mov_b32 v{tmp}, v{reg}")
        a(f"v_permlane{which}_swap_b32 v{reg}, v{tmp}")
        a(f"{op} v{reg}, v{reg}, v{tmp}")

    def dpp_ror_reduce(regs, rors, op="v_add_f32"):
        for r in rors:
            for x in regs:
                a(f"{op}_dpp v{x}, v{x}, v{x} row_ror:{r} {DPPM}")

    def mfma16(d, A, B, c):
        cin = "0" if c is None else vr(c, 4)
        a(f"v_mfma_f32_16x16x32_bf16 {vr(d, 4)}, {vr(A, 4)}, {vr(B, 4)}, {cin}")

    def valid_check(regs, tmp, fail_label):
        regs = list(regs)
        a(f"v_max3_u32 v{tmp}, v{regs[0]}, v{regs[1]}, v{regs[2]}")
        rest = regs[3:]
        while len(rest) >= 2:
            a(f"v_max3_u32 v{tmp}, v{tmp}, v{rest[0]}, v{rest[1]}")
            rest = rest[2:]
        if rest:
            a(f"v_max_u32 v{tmp}, v{tmp}, v{rest[0]}")
        a(f"v_cmp_eq_u32 vcc, -1, v{tmp}")
        ok = a.newlabel("Lok")
        a(f"s_cbranch_vccz {ok}")
        a("s_sub_u32 s13, s13, 1")
        a(f"s_cbranch_scc0 {fail_label}")
        a.label(ok)

    def canary(addr, dst, tagged, so="0", lanes=1):
        lab = a.newlabel("Lcan")
        done = a.newlabel("Lcand")
        a(f"s_mov_b64 exec, {hex(lanes)}")
        a.label(lab)
        a(f"buffer_load_dwordx4 {vr(dst, 4)}, v{addr}, {WS}, {so} offen sc1")
        a("s_waitcnt vmcnt(0)")
        if tagged:
            a(f"v_cmp_ne_u64 vcc, s[48:49], {vr(dst + 2, 2)}")
        else:
            a(f"v_cmp_eq_u32 vcc, -1, v{dst}")
        a(f"s_cbranch_vccz {done}")
        if cfg.csleep:
            a(f"s_sleep {cfg.csleep}")
        a("s_sub_u32 s13, s13, 1")
        a(f"s_cbranch_scc0 {lab}")
        a.label(done)
        a("s_mov_b64 exec, -1")

    def mpoll_tag(addr, dst, init="-1", sleep=0):
        lab = a.newlabel("Lmp")
        done = a.newlabel("Lmpd")
        a(f"s_mov_b64 exec, {init}")
        a.label(lab)
        a(f"buffer_load_dwordx4 {vr(dst, 4)}, v{addr}, {WS}, 0 offen sc1")
        a("s_waitcnt vmcnt(0)")
        a(f"v_cmp_ne_u64 vcc, s[48:49], {vr(dst + 2, 2)}")
        a("s_and_b64 exec, exec, vcc")
        a(f"s_cbranch_scc0 {done}")
        if sleep:
            a(f"s_sleep {sleep}")
        a("s_sub_u32 s13, s13, 1")
        a(f"s_cbranch_scc0 {lab}")
        a.label(done)
        a("s_mov_b64 exec, -1")

    def mpoll_data(loads, M, tmp, inits=None):
        n = len(loads)
        if not cfg.mp:
            lab = a.newlabel("Lsp")
            a.label(lab)
            regs = []
            for i, (dst, text) in enumerate(loads):
                if inits and inits[i] != "-1":
                    a(f"s_mov_b64 exec, {inits[i]}")
                a(text)
                if inits and inits[i] != "-1":
                    a("s_mov_b64 exec, -1")
                regs += list(range(dst, dst + 4))
            a("s_waitcnt vmcnt(0)")
            valid_check(regs, tmp, lab)
            return
        lab = a.newlabel("Lmd")
        done = a.newlabel("Lmdd")
        ANY = M + 2 * n
        for i in range(n):
            a(f"s_mov_b64 s[{M + 2 * i}:{M + 2 * i + 1}], {inits[i] if inits else '-1'}")
        a.label(lab)
        for i, (dst, text) in enumerate(loads):
            sk = a.newlabel("Lsk")
            a(f"s_mov_b64 exec, s[{M + 2 * i}:{M + 2 * i + 1}]")
            a(f"s_cbranch_execz {sk}")
            a(text)
            a.label(sk)
        a(f"s_mov_b64 s[{ANY}:{ANY + 1}], 0")
        a("s_waitcnt vmcnt(0)")
        for i, (dst, text) in enumerate(loads):
            a(f"s_mov_b64 exec, s[{M + 2 * i}:{M + 2 * i + 1}]")
            a(f"v_max3_u32 v{tmp}, v{dst}, v{dst + 1}, v{dst + 2}")
            a(f"v_max_u32 v{tmp}, v{tmp}, v{dst + 3}")
            a(f"v_cmp_eq_u32 vcc, -1, v{tmp}")
            a(f"s_and_b64 s[{M + 2 * i}:{M + 2 * i + 1}], s[{M + 2 * i}:{M + 2 * i + 1}], vcc")
            a(f"s_or_b64 s[{ANY}:{ANY + 1}], s[{ANY}:{ANY + 1}], s[{M + 2 * i}:{M + 2 * i + 1}]")
        a(f"s_cbranch_scc0 {done}")
        a("s_sub_u32 s13, s13, 1")
        a(f"s_cbranch_scc0 {lab}")
        a.label(done)
        a("s_mov_b64 exec, -1")

    def sel_masks(M, tmp):
        a(f"v_and_b32 v{tmp}, 1, v2")
        a(f"v_lshlrev_b32 v{tmp}, 4, v{tmp}")
        a(f"v_mov_b32 v{tmp + 1}, 0xffff")
        a(f"v_lshlrev_b32 v{tmp}, v{tmp}, v{tmp + 1}")
        a(f"v_lshrrev_b32 v{tmp + 1}, 1, v2")
        for p in range(4):
            a(f"v_cmp_eq_u32 vcc, {p}, v{tmp + 1}")
            a(f"v_cndmask_b32 v{M + p}, 0, v{tmp}, vcc")

    a.label("L_code_start")
    a("s_cmp_ge_u32 s2, 256")
    a("s_cbranch_scc1 L_end")
    a("s_load_dwordx16 s[16:31], s[0:1], 0")
    a("s_load_dwordx8 s[32:39], s[0:1], 64")
    a("s_load_dwordx2 s[40:41], s[0:1], 96")
    if cfg.ts or cfg.dbg:
        a(f"s_memrealtime s[{S_TS}:{S_TS + 1}]")
    a("v_lshrrev_b32 v2, 6, v0")
    a("v_and_b32 v1, 63, v0")
    a(f"v_readfirstlane_b32 s{S_W}, v2")
    a("v_and_b32 v2, 15, v1")
    a("v_lshrrev_b32 v3, 4, v1")
    a(f"s_and_b32 s{S_XCD}, s2, 7")
    a(f"s_lshr_b32 s{S_I16}, s2, 3")
    for i in range(1, 8):
        a(f"s_mov_b32 s{S_K8 + i}, {i * 8192}")
    a(f"s_mov_b32 s13, {SPIN}")
    a(f"s_cmp_ge_u32 s{S_I16}, 16")
    a("s_cbranch_scc1 L_B")

    S_H, S_J, S_A = 6, 7, 9
    a("s_mov_b32 s14, 0x05040100")
    a("s_mov_b32 s15, 0x07060302")
    a(f"s_lshl_b32 s{S_A}, s{S_XCD}, 4")
    a(f"s_add_u32 s{S_A}, s{S_A}, s{S_I16}")
    a(f"s_lshr_b32 s{S_H}, s{S_A}, 2")
    a(f"s_and_b32 s{S_J}, s{S_A}, 3")
    a(f"s_cmp_ge_u32 s{S_W}, 4")
    a("s_cbranch_scc1 L_Ahi")

    a("v_lshrrev_b32 v4, 2, v2")
    a("v_lshlrev_b32 v4, 10, v4")
    a("v_and_b32 v5, 3, v1")
    a("v_lshl_add_u32 v5, v3, 2, v5")
    a("v_lshl_add_u32 v5, v5, 4, v4")
    a(f"s_lshl_b32 s8, s{S_J}, 7")
    a(f"s_lshl_b32 s10, s{S_W}, 5")
    a("s_add_u32 s8, s8, s10")
    a("s_lshl_b32 s10, s8, 1")
    a("v_lshl_add_u32 v6, v3, 4, v4")
    a("v_add_u32 v6, s10, v6")
    a("s_lshl_b32 s10, s8, 13")
    a(f"s_lshl_b32 s11, s{S_H}, 8")
    a("s_add_u32 s10, s10, s11")
    a("v_lshlrev_b32 v7, 16, v3")
    a("v_lshl_add_u32 v7, v2, 4, v7")
    a("v_add_u32 v7, s10, v7")
    a("s_waitcnt lgkmcnt(0)")
    srd(SRD_A, S_WQ, 4 << 20)
    for i in range(4):
        a(f"global_load_dwordx4 {vr(8 + 4 * i, 4)}, v5, s[{S_X}:{S_X + 1}] offset:{256 * i}")
    a(f"global_load_dwordx4 v[24:27], v6, s[{S_X}:{S_X + 1}]")
    for jj in range(8):
        a(f"buffer_load_dwordx4 {vr(32 + 4 * jj, 4)}, v7, {RA}, {k8(jj)} offen nt")
    a(f"s_load_dword s44, s[{S_WS}:{S_WS + 1}], {WS_EPOCH}")
    srd(SRD_WS, S_WS, WS_SIZE)
    srd(SRD_B, S_WUV, 4 << 20)
    a("v_mov_b32 v28, 0")
    a("v_mov_b32 v29, 0")
    a("s_mov_b32 s10, 0x3f803f80")
    a("s_waitcnt vmcnt(9)")
    for i in range(16):
        a(f"v_dot2c_f32_bf16 v28, s10, v{8 + i}")
        a(f"v_dot2c_f32_bf16 v29, v{8 + i}, v{8 + i}")
    for x in (28, 29):
        a(f"v_add_f32_dpp v{x}, v{x}, v{x} quad_perm:[1,0,3,2] {DPPM}")
    for x in (28, 29):
        a(f"v_add_f32_dpp v{x}, v{x}, v{x} quad_perm:[2,3,0,1] {DPPM}")
    for wh in (16, 32):
        swap_reduce(28, 30, wh)
        swap_reduce(29, 31, wh)
    a(f"v_mul_f32 v28, {hex(f32(1.0 / 512))}, v28")
    a(f"v_mul_f32 v29, {hex(f32(1.0 / 512))}, v29")
    a("v_fma_f32 v29, -v28, v28, v29")
    a("v_max_f32 v29, 0, v29")
    a(f"v_add_f32 v29, {hex(f32(1e-5))}, v29")
    a("v_rsq_f32 v29, v29")
    a("s_waitcnt vmcnt(8)")
    a("v_mul_f32 v28, v28, v29")
    for p in range(4):
        a(f"v_lshlrev_b32 v{8 + 2 * p}, 16, v{24 + p}")
        a(f"v_and_b32 v{9 + 2 * p}, 0xffff0000, v{24 + p}")
    for k in range(8):
        a(f"v_fma_f32 v{8 + k}, v{8 + k}, v29, -v28")
    for p in range(4):
        a(f"v_cvt_pk_bf16_f32 v{24 + p}, v{8 + 2 * p}, v{9 + 2 * p}")
    a(f"s_lshl_b32 s10, s{S_W}, 11")
    a("v_lshlrev_b32 v8, 9, v3")
    a("v_lshl_add_u32 v8, v2, 5, v8")
    a("v_add_u32 v8, s10, v8")
    a("v_and_b32 v9, 3, v1")
    a("v_lshlrev_b32 v11, 4, v9")
    a("v_lshlrev_b32 v9, 9, v9")
    a("v_bfe_u32 v10, v1, 2, 2")
    a("v_lshl_add_u32 v9, v10, 5, v9")
    a("v_lshrrev_b32 v10, 5, v1")
    a("v_lshl_add_u32 v9, v10, 7, v9")
    a(f"s_lshl_b32 s10, s{S_W}, 8")
    a("v_add_u32 v9, s10, v9")
    a("v_and_b32 v10, 1, v3")
    a("v_lshl_add_u32 v9, v10, 4, v9")
    a("v_cmp_eq_u32 s[56:57], 1, v10")
    a(f"s_lshl_b32 s10, s{S_H}, 13")
    a(f"s_lshl_b32 s11, s{S_W}, 12")
    a("s_add_u32 s10, s10, s11")
    a(f"s_lshl_b32 s11, s{S_J}, 6")
    a("s_add_u32 s10, s10, s11")
    a(f"s_add_u32 s10, s10, {WS_QPG}")
    a("v_lshrrev_b32 v10, 2, v1")
    a("v_lshl_add_u32 v11, v10, 8, v11")
    a("v_add_u32 v11, s10, v11")
    a("s_waitcnt lgkmcnt(0)")
    tags()
    a("v_mov_b32 v12, s48")
    a("v_mov_b32 v13, s49")
    a("s_waitcnt vmcnt(0)")
    TS(1)

    def uv_loads():
        for jj in range(8):
            a(f"buffer_load_dwordx4 {vr(128 + 4 * jj, 4)}, v7, {RB}, {k8(jj)} offen nt")

    if cfg.uv_early == 1:
        uv_loads()
    perm_set(32, 64)
    for c in range(8):
        mfma16(96 + 4 * c, 24, 64 + 4 * c, None)
    for c in range(0, 8, 2):
        a(f"ds_write2_b32 v8, v{96 + 4 * c}, v{100 + 4 * c} offset0:{c} offset1:{c + 1}")
    a("s_waitcnt lgkmcnt(0)")
    a("s_barrier")
    a(f"s_cmp_ge_u32 s{S_W}, 2")
    a("s_cbranch_scc1 L_Alo_nopub")
    for i in range(4):
        a(f"ds_read_b128 {vr(32 + 4 * i, 4)}, v9 offset:{2048 * i}")
    a("s_waitcnt lgkmcnt(2)")
    for k in range(4):
        a(f"v_add_f32 v{32 + k}, v{32 + k}, v{36 + k}")
    a("s_waitcnt lgkmcnt(0)")
    for k in range(4):
        a(f"v_add_f32 v{40 + k}, v{40 + k}, v{44 + k}")
    for k in range(4):
        a(f"v_add_f32 v{32 + k}, v{32 + k}, v{40 + k}")
    a("v_cvt_pk_bf16_f32 v36, v32, v33")
    a("v_cvt_pk_bf16_f32 v37, v34, v35")
    a("v_cndmask_b32 v16, v12, v36, s[56:57]")
    a("v_cndmask_b32 v17, v13, v37, s[56:57]")
    a("v_cndmask_b32 v18, v36, v12, s[56:57]")
    a("v_cndmask_b32 v19, v37, v13, s[56:57]")
    if cfg.e1local:
        a(f"s_mov_b32 s10, {WS_QPG2 - WS_QPG}")
        a(f"buffer_store_dwordx4 v[16:19], v11, {WS}, s10 offen")
    a(f"buffer_store_dwordx4 v[16:19], v11, {WS}, 0 offen sc1")
    a.label("L_Alo_nopub")
    TS(2)
    if cfg.xgate in (1, 2):
        a(f"s_cmp_eq_u32 s{S_W}, 3")
        a("s_cbranch_scc0 L_Alo_nogate")
        a(f"s_lshl_b32 s10, s{S_A}, 7")
        a(f"s_add_u32 s10, s10, {WS_GO}")
        a("v_mov_b32 v16, s10")
        canary(16, 20, True)
        a.label("L_Alo_nogate")
    a("s_barrier")
    if cfg.ckpf:
        srd(SRD_A, S_CKV, 16 << 20)
        a(f"s_lshl_b32 s10, s{S_A}, 17")
        a(f"s_lshl_b32 s11, s{S_W}, 11")
        a("s_add_u32 s10, s10, s11")
        a(f"s_add_u32 s10, s10, {(16 - cfg.ckpf) * 8192}")
        a("v_lshlrev_b32 v16, 4, v1")
        for k in range(cfg.ckpf):
            a(f"buffer_load_dwordx4 {vr(32 + 8 * k, 4)}, v16, {RA}, s10 offen nt")
            a(f"buffer_load_dwordx4 {vr(36 + 8 * k, 4)}, v16, {RA}, s10 offen offset:1024 nt")
            a("s_add_u32 s10, s10, 8192")
    if cfg.xgate == 3:
        a(f"s_lshl_b32 s10, s{S_A}, 7")
        a(f"s_add_u32 s10, s10, {WS_GO}")
        a("v_mov_b32 v16, s10")
        canary(16, 20, True)
    if cfg.uv_early != 1:
        uv_loads()
    if cfg.ffnpf:
        ntf = " nt" if cfg.ffnpf == 1 else ""
        srd(SRD_A, S_WG, 512 * 2752)
        srd(SRD_B, S_WU, 512 * 2752)
        a("v_and_b32 v16, 7, v1")
        a("v_lshlrev_b32 v16, 6, v16")
        a("v_min_u32 v16, 348, v16")
        a("v_lshrrev_b32 v17, 3, v1")
        a("v_mul_u32_u24 v17, 2752, v17")
        a("v_add_u32 v16, v16, v17")
        a(f"s_lshl_b32 s10, s{S_I16}, 2")
        a(f"s_add_u32 s10, s10, s{S_W}")
        a(f"s_mul_i32 s10, s10, {8 * 2752}")
        a(f"s_mul_i32 s11, s{S_XCD}, 352")
        a("s_add_u32 s10, s10, s11")
        a(f"buffer_load_dword v18, v16, {RA}, s10 offen{ntf}")
        a(f"buffer_load_dword v19, v16, {RB}, s10 offen{ntf}")
        srd(SRD_A, S_WD, 1376 * 1024)
        a("v_lshlrev_b32 v16, 6, v0")
        a("v_min_u32 v16, 11200, v16")
        a(f"s_mul_i32 s10, s{S_A}, 11264")
        a(f"buffer_load_dword v20, v16, {RA}, s10 offen{ntf}")
        a("s_waitcnt vmcnt(3)")
    else:
        a("s_waitcnt vmcnt(0)")
    perm_set(128, 160)
    a("s_branch L_A_x")

    a.label("L_Ahi")
    a(f"s_sub_u32 s12, s{S_W}, 4")
    a(f"s_lshl_b32 s8, s{S_J}, 7")
    a("s_lshl_b32 s10, s12, 5")
    a("s_add_u32 s8, s8, s10")
    a("s_lshl_b32 s10, s8, 13")
    a(f"s_lshl_b32 s11, s{S_H}, 8")
    a("s_add_u32 s10, s10, s11")
    a("s_mov_b32 s57, s10")
    a("v_xor_b32 v7, v2, v3")
    a("v_lshlrev_b32 v7, 4, v7")
    a("v_lshl_add_u32 v30, v2, 8, v7")
    a("v_lshl_add_u32 v7, v3, 13, v7")
    a("s_lshl_b32 s11, s12, 13")
    a("s_add_u32 s11, s11, 16384")
    a("v_add_u32 v30, s11, v30")
    a("s_getpc_b64 s[62:63]")
    a.label("L_pc")
    a("s_sub_u32 s62, s62, L_pc-L_code_start")
    a("s_subb_u32 s63, s63, 0")
    a("s_lshl_b32 s10, s12, 4")
    a(f"s_add_u32 s10, s10, s{S_I16}")
    a("s_lshl_b32 s10, s10, 10")
    a("v_lshlrev_b32 v4, 4, v1")
    a("v_add_u32 v5, s10, v4")
    a("v_min_u32 v5, L_code_end-L_code_start-16, v5")
    a("global_load_dwordx4 v[8:11], v5, s[62:63]")
    a(f"s_lshl_b32 s10, s{S_H}, 13")
    a(f"s_add_u32 s10, s10, {WS_QPG2 if cfg.e1local else WS_QPG}")
    a("v_add_u32 v6, s10, v4")
    a(f"v_subrev_u32 v27, {WS_QPG2 - WS_QPG}, v6")
    a("v_mov_b32 v26, v6")
    a("s_waitcnt lgkmcnt(0)")
    srd(SRD_A, S_WUK, 4 << 20)
    srd(SRD_WS, S_WS, WS_SIZE)
    a(f"s_load_dword s44, s[{S_WS}:{S_WS + 1}], {WS_EPOCH}")
    a("s_mov_b32 s51, 4096")

    def qpg_load(k):
        so = "0" if k < 4 else "s51"
        a(f"buffer_load_dwordx4 {vr(64 + 4 * k, 4)}, v6, {WS}, {so} offen offset:{1024 * (k % 4)} sc1")

    if cfg.pretouch:
        a("s_lshl_b32 s10, s12, 11")
        a(f"buffer_load_dwordx4 v[64:67], v6, {WS}, s10 offen sc1")
        a(f"buffer_load_dwordx4 v[68:71], v6, {WS}, s10 offen offset:1024 sc1")
    for k in range(8):
        a(f"s_add_u32 m0, s11, {1024 * k}")
        a(f"v_xor_b32 v{28 + k % 2}, {(k % 4) * 64}, v7")
        a(f"buffer_load_dwordx4 v{28 + k % 2}, {RA}, s57 offen nt lds")
        if k < 7:
            a("s_add_u32 s57, s57, 32768")
    a(f"s_add_u32 s50, s12, s{S_J}")
    a("s_and_b32 s50, s50, 3")
    a(f"s_lshl_b32 s10, s{S_A}, 10")
    a("s_lshl_b32 s56, s50, 8")
    a("s_add_u32 s10, s10, s56")
    a(f"s_add_u32 s10, s10, {WS_AO}")
    a("v_lshlrev_b32 v31, 17, v3")
    a("v_lshl_add_u32 v31, v2, 4, v31")
    a("v_add_u32 v31, s10, v31")
    for k in range(4):
        a(f"v_mov_b32 v{12 + k}, -1")
    a(f"buffer_store_dwordx4 v[12:15], v31, {WS}, 0 offen sc1")
    a("s_cmp_eq_u32 s12, 0")
    a("s_cbranch_scc0 L_Ahi_noh")
    a(f"s_lshl_b32 s10, s{S_A}, 7")
    a(f"s_add_u32 s10, s10, {WS_H}")
    a("v_add_u32 v5, s10, v4")
    a("s_mov_b64 exec, 0xff")
    a(f"buffer_store_dwordx4 v[12:15], v5, {WS}, 0 offen sc1")
    a("s_mov_b64 exec, -1")
    a.label("L_Ahi_noh")
    a(f"s_lshl_b32 s10, s{S_H}, 11")
    a("s_lshl_b32 s56, s8, 2")
    a("s_add_u32 s10, s10, s56")
    a(f"s_add_u32 s10, s10, {WS_QL}")
    a("v_and_b32 v16, 3, v2")
    a("v_lshlrev_b32 v17, 16, v16")
    a("v_lshrrev_b32 v18, 2, v2")
    a("v_lshl_add_u32 v17, v18, 6, v17")
    a("v_lshl_add_u32 v17, v3, 4, v17")
    a("v_add_u32 v17, s10, v17")
    a("v_cmp_eq_u32 s[58:59], 1, v18")
    srd(SRD_B, S_WO, 4 << 20)
    a(f"s_lshl_b32 s10, s{S_H}, 17")
    a("s_lshl_b32 s56, s50, 8")
    a("s_add_u32 s10, s10, s56")
    a("v_lshlrev_b32 v19, 13, v3")
    a("v_lshl_add_u32 v19, v2, 4, v19")
    a("v_add_u32 v19, s10, v19")
    a("s_waitcnt lgkmcnt(0)")
    tags()
    a("v_mov_b32 v22, s48")
    a("v_mov_b32 v23, s49")
    if cfg.ts == 2:
        a("s_waitcnt vmcnt(11)")
        TS(3, 2)
        a("s_waitcnt vmcnt(9)")
        TS(4, 2)
        a("s_waitcnt vmcnt(1)")
        TS(5, 2)
    a("s_barrier")
    a("s_waitcnt vmcnt(0)")
    TS(1)
    for t in range(4):
        a(f"v_xor_b32 v28, {t * 64}, v30")
        for ct in range(2):
            a(f"ds_read_b128 {vr(32 + 16 * ct + 4 * t, 4)}, v28 offset:{4096 * ct}")
    a.label("L_Ahi_poll")
    for k in range(8):
        qpg_load(k)
    a("s_mov_b64 s[60:61], 0")
    for k in range(8):
        a(f"s_waitcnt vmcnt({7 - k})")
        tr = 64 + 4 * k + (0 if k % 2 == 0 else 2)
        a(f"v_cmp_ne_u64 vcc, s[48:49], {vr(tr, 2)}")
        a("s_or_b64 s[60:61], s[60:61], vcc")
    a("s_cmp_eq_u64 s[60:61], 0")
    a("s_cbranch_scc1 L_Ahi_got")
    if cfg.e1local:
        a("s_and_b32 s10, s13, 7")
        a("s_cmp_eq_u32 s10, 1")
        a("s_cselect_b64 vcc, -1, 0")
        a("v_cndmask_b32 v6, v26, v27, vcc")
    a("s_sub_u32 s13, s13, 1")
    a("s_cbranch_scc0 L_Ahi_poll")
    a.label("L_Ahi_got")
    a("s_waitcnt lgkmcnt(0)")
    TS(2)
    for t in range(4):
        for ct in range(2):
            mfma16(96 + 4 * ct, 32 + 16 * ct + 4 * t, 66 + 8 * t, None if t == 0 else 96 + 4 * ct)
    dpp_ror_reduce(range(96, 104), (4, 8))
    for k in range(4):
        a(f"v_cndmask_b32 v{24 + k}, v{96 + k}, v{100 + k}, s[58:59]")
    sc = f32(128 ** -0.5 * math.log2(math.e))
    for k in range(4):
        a(f"v_mul_f32 v{24 + k}, {hex(sc)}, v{24 + k}")
    a("v_cvt_pk_bf16_f32 v20, v24, v25")
    a("v_cvt_pk_bf16_f32 v21, v26, v27")
    a("s_mov_b32 exec_lo, 0x00ff00ff")
    a("s_mov_b32 exec_hi, 0x00ff00ff")
    a(f"buffer_store_dwordx4 v[20:23], v17, {WS}, 0 offen sc1")
    a("s_mov_b64 exec, -1")
    a("s_barrier")
    for t in range(4):
        a(f"s_add_u32 s56, s{S_J}, {t}")
        a("s_and_b32 s56, s56, 3")
        a(f"s_lshl_b32 s{52 + t}, s56, 6")
        a("s_lshl_b32 s56, s56, 15")
        for hf in range(2):
            if hf:
                a("s_add_u32 s56, s56, 4096")
            for q in range(4):
                jj = hf * 4 + q
                if cfg.wo_depth and cfg.wo_depth <= 8 * t + jj < cfg.wo_n:
                    a(f"s_waitcnt vmcnt({cfg.wo_depth - 1})")
                a(f"buffer_load_dwordx4 {vr(128 + 32 * t + 4 * jj, 4)}, v19, {RB}, s56 offen offset:{1024 * q}{' nt' if cfg.nt_wo else ''}")
    for k in range(4):
        a(f"s_waitcnt vmcnt({8 * (3 - k)})")
        perm_set(128 + 32 * k, 96 + 32 * k)

    a.label("L_A_x")
    TS(3)
    T, AF, MK, D, STR = 32, 48, 64, 68, 72
    CL, CX = 0, 4096
    a(f"s_lshl_b32 s10, s{S_A}, 15")
    a(f"s_lshl_b32 s56, s{S_W}, 12")
    a("s_add_u32 s10, s10, s56")
    a(f"s_add_u32 s10, s10, {WS_OP}")
    a("v_lshlrev_b32 v5, 4, v1")
    a("v_add_u32 v5, s10, v5")
    a(f"s_lshr_b32 s10, s{S_W}, 1")
    a("s_lshl_b32 s10, s10, 14")
    a(f"s_lshl_b32 s56, s{S_H}, 4")
    a("s_add_u32 s10, s10, s56")
    a(f"s_add_u32 s10, s10, {WS_ST}")
    a("v_and_b32 v4, 31, v1")
    a("v_lshlrev_b32 v4, 9, v4")
    a("v_add_u32 v4, s10, v4")
    sel_masks(MK, 8)
    a(f"s_and_b32 s10, s{S_W}, 1")
    a("s_lshl_b32 s10, s10, 6")
    a("v_lshlrev_b32 v6, 2, v3")
    a("v_add_u32 v6, s10, v6")
    a(f"s_mul_i32 s10, s{S_W}, 272")
    a("v_lshlrev_b32 v8, 4, v2")
    a("v_lshl_add_u32 v8, v3, 3, v8")
    a("v_add_u32 v8, s10, v8")
    a("v_lshrrev_b32 v9, 2, v2")
    a("v_and_b32 v10, 1, v2")
    a("v_lshl_add_u32 v9, v9, 1, v10")
    a("v_mul_u32_u24 v9, 272, v9")
    a("v_lshl_add_u32 v9, v3, 4, v9")
    a(f"s_lshl_b32 s56, s{S_W}, 6")
    a("v_add_u32 v9, s56, v9")
    a("v_mul_u32_u24 v10, 1088, v3")
    a("v_lshl_add_u32 v10, v2, 4, v10")
    a(f"s_add_u32 s10, s10, {CX}")
    a("v_add_u32 v10, s10, v10")
    a("v_mul_u32_u24 v11, 272, v2")
    a("v_lshl_add_u32 v11, v3, 4, v11")
    a(f"v_add_u32 v11, {CX}, v11")
    a(f"s_lshl_b32 s10, s{S_J}, 14")
    a(f"s_lshl_b32 s56, s{S_W}, 11")
    a("s_add_u32 s10, s10, s56")
    a(f"s_add_u32 s10, s10, {WS_FL}")
    a("v_lshlrev_b32 v7, 7, v2")
    a("v_add_u32 v7, s10, v7")
    canary(4, STR, True)
    mpoll_tag(4, STR)
    TS(4)

    def op_loads():
        for i in range(4):
            a(f"buffer_load_dwordx4 {vr(T + 4 * i, 4)}, v5, {WS}, 0 offen offset:{1024 * i} sc1")

    if not cfg.fl:
        op_loads()
    a(f"v_mov_b32 v12, v{STR}")
    dpp_ror_reduce([12], (1, 2, 4, 8), "v_max_f32")
    swap_reduce(12, 13, 16, "v_max_f32")
    a(f"v_sub_f32 v12, v{STR}, v12")
    a("v_exp_f32 v12, v12")
    a("v_cvt_pk_bf16_f32 v12, v12, v12")
    for i in range(4):
        a(f"ds_bpermute_b32 v{16 + i}, v6, v12 offset:{16 * i}")
    a("v_and_b32 v13, 0xffff0000, v12")
    a(f"v_mul_f32 v13, v13, v{STR + 1}")
    dpp_ror_reduce([13], (1, 2, 4, 8))
    swap_reduce(13, 14, 16)
    a("v_rcp_f32 v13, v13")
    for i in range(4):
        a(f"s_waitcnt lgkmcnt({3 - i})")
        for p in range(4):
            a(f"v_and_b32 v{AF + 4 * i + p}, v{16 + i}, v{MK + p}")
    if cfg.fl:
        mpoll_tag(7, STR, "0xffff")
        op_loads()
    if cfg.ts:
        a("s_waitcnt vmcnt(0)")
    TS(5)
    for i in range(4):
        a(f"s_waitcnt vmcnt({3 - i})")
        mfma16(D, AF + 4 * i, T + 4 * i, None if i == 0 else D)
    for k in range(4):
        a(f"v_mul_f32 v{D + k}, v{D + k}, v13")
    a(f"v_cvt_pk_bf16_f32 v14, v{D}, v{D + 1}")
    a(f"v_cvt_pk_bf16_f32 v15, v{D + 2}, v{D + 3}")
    a("s_mov_b32 exec_hi, 0")
    a("ds_write_b64 v8, v[14:15]")
    a("s_mov_b64 exec, -1")
    a("s_waitcnt lgkmcnt(0)")
    a("s_barrier")
    a(f"s_cmp_ge_u32 s{S_W}, 4")
    a("s_cbranch_scc1 L_A_x3")
    a("ds_read_b128 v[16:19], v9")
    a("s_waitcnt lgkmcnt(0)")
    for c in range(8):
        mfma16(96 + 4 * c, 16, 160 + 4 * c, None)
    for c in range(8):
        a(f"v_add_f32 v{96 + 4 * c}, v{96 + 4 * c}, v{97 + 4 * c}")
    for p in range(4):
        a(f"v_cvt_pk_bf16_f32 v{20 + p}, v{96 + 8 * p}, v{100 + 8 * p}")
    a("ds_write_b128 v10, v[20:23]")
    a("s_waitcnt lgkmcnt(0)")
    a("s_barrier")
    TS(6)
    a(f"s_cmp_eq_u32 s{S_W}, 0")
    END_IF("scc0", 7)
    a("s_branch L_A_fin")
    a.label("L_A_x3")
    for t in range(4):
        a(f"v_add_u32 v{24 + t}, s{52 + t}, v11")
    a("s_barrier")
    for t in range(4):
        a(f"ds_read_b128 {vr(32 + 4 * t, 4)}, v{24 + t}")
    for t in range(4):
        a(f"s_waitcnt lgkmcnt({3 - t})")
        for c in range(8):
            mfma16(224 + 4 * c, 32 + 4 * t, 96 + 32 * t + 4 * c, None if t == 0 else 224 + 4 * c)
    for c in range(8):
        x = 224 + 4 * c
        a(f"v_add_f32 v{x}, v{x}, v{x + 1}")
        a(f"v_add_f32 v{x + 2}, v{x + 2}, v{x + 3}")
        a(f"v_add_f32 v{x}, v{x}, v{x + 2}")
    for p in range(4):
        a(f"v_cvt_pk_bf16_f32 v{20 + p}, v{224 + 8 * p}, v{228 + 8 * p}")
    a(f"buffer_store_dwordx4 v[20:23], v31, {WS}, 0 offen sc1")
    TS(6)
    END(7)

    a.label("L_A_fin")
    a(f"s_lshl_b32 s10, s{S_J}, 10")
    a(f"s_lshl_b32 s56, s{S_H}, 5")
    a("s_add_u32 s10, s10, s56")
    a("v_lshrrev_b32 v4, 1, v2")
    a("v_lshl_add_u32 v4, v3, 3, v4")
    a("v_and_b32 v5, 1, v2")
    a("v_lshlrev_b32 v5, 4, v5")
    a("v_lshl_add_u32 v6, v3, 3, v5")
    a("v_add_u32 v6, s10, v6")
    a(f"s_add_u32 s11, s10, {WS_FP}")
    a("v_lshl_add_u32 v8, v4, 12, v5")
    a("v_add_u32 v8, s11, v8")
    a(f"v_add_u32 v9, {64 * 4096}, v8")
    a("s_lshl_b32 s10, s10, 2")
    a(f"s_add_u32 s10, s10, {WS_H}")
    a("v_add_u32 v10, s10, v5")
    a(f"v_cmp_eq_u32 vcc, {NSLICE - 64}, v4")
    a("v_cndmask_b32 v9, v9, v10, vcc")
    a(f"v_cmp_ge_u32 s[56:57], {NSLICE - 64}, v4")
    for k in range(4):
        a(f"v_mov_b32 v{40 + k}, 0")
        a(f"v_and_b32 v{16 + k}, 0x3f803f80, v{MK + k}")
    a(f"s_mov_b32 s11, {32 * 4096}")
    srd(SRD_A, S_OUT, 4096)
    canary(8, 32, False)
    mpoll_data([(32, f"buffer_load_dwordx4 v[32:35], v8, {WS}, 0 offen sc1"),
                (36, f"buffer_load_dwordx4 v[36:39], v8, {WS}, s11 offen sc1"),
                (40, f"buffer_load_dwordx4 v[40:43], v9, {WS}, 0 offen sc1")], 24, 7, ["-1", "-1", "s[56:57]"])
    for i in range(3):
        mfma16(D, 16, 32 + 4 * i, None if i == 0 else D)
    dpp_ror_reduce(range(D, D + 4), (2, 4, 8))
    a(f"v_cvt_pk_bf16_f32 v14, v{D}, v{D + 1}")
    a(f"v_cvt_pk_bf16_f32 v15, v{D + 2}, v{D + 3}")
    a("s_mov_b64 exec, 0x00030003")
    a(f"buffer_store_dwordx2 v[14:15], v6, {RA}, 0 offen")
    a(f"s_cmp_eq_u32 s{S_A}, 0")
    a("s_cbranch_scc0 L_A_done")
    a("s_mov_b64 exec, 1")
    a("v_mov_b32 v9, s44")
    a("v_mov_b32 v10, 0")
    a(f"buffer_store_dword v9, v10, {WS}, 0 offen offset:{WS_EPOCH} sc1")
    a.label("L_A_done")
    if cfg.dbg >= 2:
        a.label("L_dbg_spin")
        a(f"s_memrealtime s[{S_TS + 2}:{S_TS + 3}]")
        a("s_waitcnt lgkmcnt(0)")
        a(f"s_sub_u32 s10, s{S_TS + 2}, s{S_TS}")
        a(f"s_cmp_lt_u32 s10, {cfg.dbg * 100}")
        a("s_cbranch_scc1 L_dbg_spin")
    if cfg.dbg:
        a(f"s_memrealtime s[{S_TS + 2}:{S_TS + 3}]")
        a("s_waitcnt lgkmcnt(0)")
        a("s_mov_b64 exec, 1")
        a(f"v_mov_b32 v12, s{S_TS}")
        a(f"v_mov_b32 v13, s{S_TS + 2}")
        a(f"s_lshl_b32 s10, s{S_A}, 3")
        a(f"s_add_u32 s10, s10, {WS_DBG}")
        a("v_mov_b32 v10, s10")
        a(f"buffer_store_dwordx2 v[12:13], v10, {WS}, 0 offen")
    TS(7)
    END(8)

    a.label("L_B")
    inA[0] = False
    S_BB, S_CH, S_R, S_SL = 6, 7, 9, 51
    QB = 131072
    a(f"s_and_b32 s{S_I16}, s{S_I16}, 15")
    a(f"s_lshl_b32 s{S_R}, s{S_XCD}, 4")
    a(f"s_add_u32 s{S_R}, s{S_R}, s{S_I16}")
    a(f"s_lshr_b32 s{S_BB}, s{S_R}, 5")
    a(f"s_and_b32 s{S_CH}, s{S_R}, 31")
    MXB, PB, SB, STG = QB, QB + 1024, QB + 9728, 0
    for k in range(4):
        a(f"v_mov_b32 v{26 + k}, -1")
    a(f"s_mul_i32 s{S_SL}, s{S_XCD}, 11")
    a(f"s_add_u32 s{S_SL}, s{S_SL}, s{S_I16}")
    a(f"s_cmp_lt_u32 s{S_I16}, 11")
    a(f"s_cselect_b32 s{S_SL}, s{S_SL}, 127")
    a(f"s_lshl_b32 s10, s{S_SL}, 12")
    a(f"s_lshl_b32 s11, s{S_W}, 7")
    a("s_add_u32 s10, s10, s11")
    a(f"s_add_u32 s10, s10, {WS_FP}")
    a("v_and_b32 v31, 3, v2")
    a("v_lshlrev_b32 v31, 10, v31")
    a("v_lshrrev_b32 v12, 2, v2")
    a("v_lshl_add_u32 v31, v12, 5, v31")
    a("v_lshl_add_u32 v31, v3, 3, v31")
    a("v_add_u32 v31, s10, v31")
    a("v_and_b32 v12, 31, v1")
    a("v_lshrrev_b32 v13, 5, v1")
    a(f"s_cmp_ge_u32 s{S_W}, 4")
    a("s_cbranch_scc1 L_B_pv")

    a(f"s_lshl_b32 s8, s{S_R}, 17")
    a(f"s_lshl_b32 s10, s{S_W}, 15")
    a("s_add_u32 s8, s8, s10")
    a("v_lshlrev_b32 v4, 2, v3")
    a("v_xor_b32 v4, v4, v2")
    a("v_lshlrev_b32 v4, 4, v4")
    a("v_lshl_add_u32 v4, v3, 10, v4")
    for k in range(1, 4):
        a(f"v_xor_b32 v{4 + k}, {G(k) * 16}, v4")
    a("v_lshrrev_b32 v8, 2, v2")
    a("v_lshlrev_b32 v8, 1, v8")
    a("v_mov_b32 v9, 0x78")
    a("v_lshrrev_b32 v8, v8, v9")
    a("v_and_b32 v8, 3, v8")
    a("v_and_b32 v9, 3, v2")
    a("v_lshl_add_u32 v8, v9, 2, v8")
    a("v_xor_b32 v8, v8, v13")
    a("v_lshlrev_b32 v8, 4, v8")
    a("v_lshl_add_u32 v8, v12, 8, v8")
    a("v_add_u32 v8, s10, v8")
    for tt in range(8):
        a(f"v_xor_b32 v{48 + tt}, {tt * 32}, v8")
    a("s_waitcnt lgkmcnt(0)")
    a(f"s_load_dword s44, s[{S_WS}:{S_WS + 1}], {WS_EPOCH}")
    srd(SRD_A, S_CKV, 16 << 20)
    srd(SRD_WS, S_WS, WS_SIZE)
    a(f"buffer_store_dwordx2 v[26:27], v31, {WS}, 0 offen sc1")
    if cfg.b_delay == 1:
        a("s_waitcnt lgkmcnt(0)")
    DD = cfg.dma_depth
    assert DD <= 8

    def go_store():
        a(f"s_cmp_eq_u32 s{S_W}, 3")
        a("s_cbranch_scc0 L_B_nogo")
        a(f"s_lshl_b32 s12, s{S_R}, 7")
        a(f"s_add_u32 s12, s12, {WS_GO}")
        a("v_mov_b32 v24, s12")
        a("s_mov_b64 exec, 1")
        a(f"buffer_store_dwordx4 v[26:29], v24, {WS}, 0 offen sc1")
        a("s_mov_b64 exec, -1")
        a.label("L_B_nogo")

    def afrag_reads(q):
        for tt in range(8):
            a(f"ds_read_b128 {vr(128 + 32 * q + 4 * tt, 4)}, v{48 + tt} offset:{8192 * q}")

    for i in range(32):
        q, rr = i // 8, i % 8
        if i == cfg.bs_at:
            a("s_barrier")
        if i >= DD:
            a(f"s_waitcnt vmcnt({DD - 1})")
        a(f"s_add_u32 m0, s10, {1024 * i}")
        a(f"s_add_u32 s11, s8, {rr * 4096 + q * 256}")
        a(f"buffer_load_dwordx4 v{4 + rr % 4}, {RA}, s11 offen nt lds")
        if i == 1:
            a("v_xor_b32 v8, v2, v13")
            a("v_lshlrev_b32 v8, 4, v8")
            a("v_lshl_add_u32 v8, v12, 10, v8")
            a(f"v_add_u32 v8, {QB}, v8")
            for tt in range(8):
                a(f"v_xor_b32 v{56 + tt}, {tt * 32}, v8")
            a("v_lshlrev_b32 v65, 4, v12")
            a(f"v_add_u32 v65, {MXB}, v65")
            a(f"s_lshl_b32 s12, s{S_W}, 2")
            a("v_add_u32 v64, s12, v65")
            a("v_mul_u32_u24 v66, 272, v12")
            a("v_lshl_add_u32 v66, v13, 3, v66")
            a(f"s_lshl_b32 s12, s{S_W}, 6")
            a(f"s_add_u32 s12, s12, {PB}")
            a("v_add_u32 v66, s12, v66")
            a("v_lshlrev_b32 v68, 5, v12")
            a(f"v_add_u32 v68, {SB}, v68")
            a("v_lshl_add_u32 v67, v13, 2, v68")
            a(f"s_lshl_b32 s12, s{S_W}, 3")
            a("v_add_u32 v67, s12, v67")
            a(f"s_lshl_b32 s12, s{S_R}, 9")
            a(f"s_add_u32 s12, s12, {WS_ST}")
            a("v_lshlrev_b32 v25, 4, v12")
            a("v_add_u32 v25, s12, v25")
        if i == 9:
            a("s_waitcnt lgkmcnt(0)")
            tags()
            a("v_mov_b32 v28, s48")
            a("v_mov_b32 v29, s49")
        if cfg.xgate and i == cfg.go_at:
            go_store()
        if i in (16, 24):
            afrag_reads(i // 8 - 2)
        if i == cfg.b0_at:
            a("s_barrier")
    TS(1)
    if cfg.xgate and cfg.go_at >= 32:
        go_store()
    a("s_waitcnt vmcnt(8)")
    afrag_reads(2)
    a("s_waitcnt lgkmcnt(0)")
    TS(2)
    a("s_barrier")
    TS(1, 3)
    if cfg.ts == 3:
        a(f"s_memtime s[{S_TS + 6}:{S_TS + 7}]")
        a("s_waitcnt lgkmcnt(0)")
    pend = []

    def lds(tag, text):
        a(text)
        pend.append(tag)

    def need_lds(*tags_):
        idxs = [pend.index(t_) for t_ in tags_ if t_ in pend]
        if not idxs:
            return
        idx = max(idxs)
        assert len(pend) - 1 - idx <= 15
        a(f"s_waitcnt lgkmcnt({len(pend) - 1 - idx})")
        del pend[:idx + 1]

    def qread(t):
        lds(("q", t), f"ds_read_b128 {vr(96 + 4 * (t % 8), 4)}, v{56 + t % 8} offset:{256 * (t // 8)}")

    QD = 6
    for t in range(QD):
        qread(t)
    for t in range(32):
        if t == cfg.q3_at:
            a("s_waitcnt vmcnt(0)")
            for tt in range(8):
                lds(("a", 24 + tt), f"ds_read_b128 {vr(224 + 4 * tt, 4)}, v{48 + tt} offset:{8192 * 3}")
        need_lds(("a", t), ("q", t))
        cin = "0" if t == 0 else "v[32:47]"
        a(f"v_mfma_f32_32x32x16_bf16 v[32:47], {vr(128 + 4 * t, 4)}, {vr(96 + 4 * (t % 8), 4)}, {cin}")
        if t + QD < 32:
            qread(t + QD)
    a("s_barrier")
    a("v_max3_f32 v22, v32, v33, v34")
    a("v_max3_f32 v23, v35, v36, v37")
    TS(2, 3)
    if cfg.ts == 3:
        a(f"s_memtime s[{S_TS + 10}:{S_TS + 11}]")
        a("s_waitcnt lgkmcnt(0)")
    for k in range(38, 46, 4):
        a(f"v_max3_f32 v22, v22, v{k}, v{k + 1}")
        a(f"v_max3_f32 v23, v23, v{k + 2}, v{k + 3}")
    a("v_max3_f32 v22, v22, v46, v47")
    a("v_max_f32 v22, v22, v23")
    swap_reduce(22, 23, 32, "v_max_f32")
    a("ds_write_b32 v64, v22")
    a("s_waitcnt lgkmcnt(0)")
    a("s_barrier")
    TS(6, 3)
    a("ds_read_b128 v[96:99], v65")
    a("s_waitcnt lgkmcnt(0)")
    a("v_max3_f32 v26, v96, v97, v98")
    a("v_max_f32 v26, v26, v99")
    for g4 in range(4):
        x = 32 + 4 * g4
        for r in range(4):
            a(f"v_sub_f32 v{x + r}, v{x + r}, v26")
        for r in range(4):
            a(f"v_exp_f32 v{x + r}, v{x + r}")
        a(f"v_cvt_pk_bf16_f32 v{8 + 2 * (g4 % 2)}, v{x}, v{x + 1}")
        a(f"v_cvt_pk_bf16_f32 v{9 + 2 * (g4 % 2)}, v{x + 2}, v{x + 3}")
        a(f"ds_write_b64 v66, {vr(8 + 2 * (g4 % 2), 2)} offset:{16 * g4}")
    a("s_waitcnt lgkmcnt(0)")
    a("s_barrier")
    TS(4)
    for k in range(8):
        a(f"v_add_f32 v{32 + k}, v{32 + k}, v{40 + k}")
    for k in range(4):
        a(f"v_add_f32 v{32 + k}, v{32 + k}, v{36 + k}")
    a("v_add_f32 v32, v32, v34")
    a("v_add_f32 v33, v33, v35")
    a("v_add_f32 v32, v32, v33")
    a("ds_write_b32 v67, v32")
    a("s_waitcnt lgkmcnt(0)")
    a("s_barrier")
    a("ds_read_b128 v[32:35], v68")
    a("ds_read_b128 v[36:39], v68 offset:16")
    a("s_waitcnt lgkmcnt(0)")
    for k in range(4):
        a(f"v_add_f32 v{32 + k}, v{32 + k}, v{36 + k}")
    a("v_add_f32 v32, v32, v34")
    a("v_add_f32 v33, v33, v35")
    a("v_add_f32 v27, v32, v33")
    if not cfg.fl:
        a("s_barrier")
    a(f"s_cmp_eq_u32 s{S_W}, 0")
    a("s_cbranch_scc0 L_B_nost")
    a("s_mov_b32 exec_hi, 0")
    a(f"buffer_store_dwordx4 v[26:29], v25, {WS}, 0 offen sc1")
    a("s_mov_b64 exec, -1")
    a.label("L_B_nost")
    if cfg.fl:
        a("s_barrier")
    a.haz_flush(3)
    a("s_branch L_B_post")

    a.label("L_B_pv")
    a(f"s_sub_u32 s12, s{S_W}, 4")
    a(f"s_lshl_b32 s11, s{S_BB}, 16")
    a("s_lshl_b32 s10, s12, 10")
    a("s_add_u32 s11, s11, s10")
    a(f"s_add_u32 s11, s11, {WS_QL}")
    a("v_lshlrev_b32 v7, 4, v1")
    a("v_add_u32 v7, s11, v7")
    a("v_add_u32 v6, 4096, v7")
    a("s_waitcnt lgkmcnt(0)")
    a(f"s_load_dword s44, s[{S_WS}:{S_WS + 1}], {WS_EPOCH}")
    srd(SRD_WS, S_WS, WS_SIZE)

    def q_load(i):
        a(f"buffer_load_dwordx4 {vr(128 + 4 * i, 4)}, v{7 - i % 2}, {WS}, {k8(i // 2)} offen sc1")

    if cfg.ukpf:
        srd(SRD_B, S_WUK, 4 << 20)
        a(f"s_and_b32 s11, s{S_R}, 3")
        a("s_lshl_b32 s11, s11, 20")
        a("s_lshl_b32 s10, s12, 18")
        a("s_add_u32 s11, s11, s10")
        a(f"s_lshr_b32 s10, s{S_R}, 2")
        a("s_lshl_b32 s10, s10, 8")
        a("s_add_u32 s11, s11, s10")
        a(f"s_add_u32 s11, s11, {(8 - cfg.ukpf_n) * 32768}")
        a("v_lshlrev_b32 v8, 13, v3")
        a("v_lshl_add_u32 v8, v2, 4, v8")
        for k in range(cfg.ukpf_n):
            a(f"buffer_load_dwordx4 {vr(32 + 4 * k, 4)}, v8, {RB}, s11 offen nt")
            a("s_add_u32 s11, s11, 32768")
    if cfg.pretouch:
        a(f"s_lshl_b32 s11, s{S_I16}, 12")
        a(f"buffer_load_dwordx4 v[128:131], v7, {WS}, s11 offen sc1")
    a(f"buffer_store_dwordx2 v[26:27], v31, {WS}, 0 offen sc1")
    a("s_lshr_b32 s10, s12, 1")
    a("s_and_b32 s11, s12, 1")
    a("s_lshl_b32 s11, s11, 5")
    a("s_xor_b32 s11, s11, s10")
    a("v_lshrrev_b32 v8, 1, v1")
    a("v_xor_b32 v8, s11, v8")
    a("v_lshlrev_b32 v8, 4, v8")
    a("v_and_b32 v9, 1, v1")
    a("v_lshl_add_u32 v8, v9, 3, v8")
    a("s_lshl_b32 s10, s10, 10")
    a(f"s_add_u32 s10, s10, {QB}")
    a("v_add_u32 v8, s10, v8")
    for k in range(8):
        a(f"v_xor_b32 v{64 + k}, {k * 32}, v8")
    a("v_lshrrev_b32 v22, 2, v2")
    a("v_lshl_add_u32 v23, v13, 3, v22")
    a("v_lshlrev_b32 v23, 8, v23")
    a("v_lshl_add_u32 v23, v9, 3, v23")
    a("v_and_b32 v24, 1, v3")
    a("v_bfe_u32 v10, v1, 1, 1")
    a("v_lshl_add_u32 v24, v24, 1, v10")
    a("v_lshlrev_b32 v22, 2, v22")
    a("v_xor_b32 v24, v24, v22")
    a("v_mul_u32_u24 v22, 3, v13")
    a("v_xor_b32 v24, v24, v22")
    a("v_lshl_add_u32 v23, v24, 4, v23")
    a("s_lshl_b32 s10, s12, 13")
    a("v_add_u32 v23, s10, v23")
    a("v_xor_b32 v24, 32, v23")
    a("v_add_u32 v24, 1024, v24")
    for ct in range(4):
        for u in range(2):
            a(f"v_xor_b32 v{72 + 2 * ct + u}, {ct * 64}, v{23 + u}")
            a(f"v_add_u32 v{80 + 2 * ct + u}, 0x10000, v{72 + 2 * ct + u}")
    a("v_mul_u32_u24 v88, 272, v12")
    a("v_lshl_add_u32 v88, v13, 4, v88")
    a(f"v_add_u32 v88, {PB}, v88")
    a("s_lshl_b32 s10, s12, 14")
    a("v_mul_u32_u24 v89, 144, v12")
    a("v_lshl_add_u32 v89, v13, 3, v89")
    a("v_add_u32 v89, s10, v89")
    a("v_lshrrev_b32 v22, 3, v1")
    a("v_and_b32 v23, 7, v1")
    a("v_mul_u32_u24 v90, 144, v22")
    a("v_lshl_add_u32 v90, v23, 4, v90")
    a("v_add_u32 v90, s10, v90")
    a("s_lshl_b32 s10, s12, 15")
    a(f"s_lshl_b32 s11, s{S_R}, 8")
    a("s_add_u32 s10, s10, s11")
    a(f"s_add_u32 s10, s10, {WS_OP}")
    a("v_lshlrev_b32 v30, 17, v22")
    a("v_lshl_add_u32 v30, v23, 4, v30")
    a("v_add_u32 v30, s10, v30")
    for i in range(1, 4):
        a(f"s_mov_b32 s{52 + i}, {i << 20}")
    a("s_lshl_b32 s10, s12, 14")
    a(f"s_lshl_b32 s11, s{S_R}, 7")
    a("s_add_u32 s10, s10, s11")
    a(f"s_add_u32 s10, s10, {WS_FL}")
    a("v_mov_b32 v25, s10")
    a("s_waitcnt lgkmcnt(0)")
    tags()
    a("v_mov_b32 v28, s48")
    a("v_mov_b32 v29, s49")
    TS(1)
    if cfg.bs_at >= 0:
        a("s_waitcnt vmcnt(0)")
        a("s_barrier")
    if cfg.scout:
        a(f"s_lshl_b32 s11, s{S_BB}, 16")
        a("s_lshl_b32 s10, s12, 10")
        a("s_add_u32 s11, s11, s10")
        a(f"s_add_u32 s11, s11, {WS_QL + 496}")
        a("v_lshrrev_b32 v10, 1, v12")
        a("v_lshlrev_b32 v10, 12, v10")
        a("v_and_b32 v11, 1, v1")
        a("v_lshl_add_u32 v10, v11, 9, v10")
        a("v_add_u32 v10, s11, v10")
        a("s_mov_b32 s56, -1")
        a("s_mov_b32 s57, 0")
    a("s_barrier")
    if cfg.scout:
        mpoll_tag(10, 128, "s[56:57]", cfg.ssleep)
    TS(2)
    for i in range(16):
        q_load(i)
    a("s_mov_b32 s60, 0")
    for i in range(16):
        a(f"s_waitcnt vmcnt({15 - i})")
        a(f"v_cmp_ne_u64 vcc, s[48:49], {vr(130 + 4 * i, 2)}")
        a(f"ds_write_b64 v{64 + i % 8}, {vr(128 + 4 * i, 2)} offset:{2048 * i}")
        a("s_cmp_lg_u64 vcc, 0")
        a("s_addc_u32 s60, s60, s60")
    a("s_cmp_eq_u32 s60, 0")
    a("s_cbranch_scc1 L_B_gotq")
    a.label("L_B_qretry")
    if cfg.qsleep:
        a(f"s_sleep {cfg.qsleep}")
    for i in range(16):
        lab = a.newlabel("Lq")
        a(f"s_bitcmp1_b32 s60, {15 - i}")
        a(f"s_cbranch_scc0 {lab}")
        q_load(i)
        a.label(lab)
    a("s_waitcnt vmcnt(0)")
    for i in range(16):
        lab = a.newlabel("Lq")
        a(f"s_bitcmp1_b32 s60, {15 - i}")
        a(f"s_cbranch_scc0 {lab}")
        a(f"v_cmp_ne_u64 vcc, s[48:49], {vr(130 + 4 * i, 2)}")
        a(f"s_cbranch_vccnz {lab}")
        a(f"ds_write_b64 v{64 + i % 8}, {vr(128 + 4 * i, 2)} offset:{2048 * i}")
        a(f"s_bitset0_b32 s60, {15 - i}")
        a.label(lab)
    a("s_cmp_eq_u32 s60, 0")
    a("s_cbranch_scc1 L_B_gotq")
    a("s_sub_u32 s13, s13, 1")
    a("s_cbranch_scc0 L_B_qretry")
    a.label("L_B_gotq")
    a("s_waitcnt lgkmcnt(0)")
    TS(3)
    a("s_barrier")
    TS(1, 3)
    a("s_cmp_lt_u32 s12, 3")
    a("s_cbranch_scc1 L_B_trr")
    a("s_barrier")
    a.label("L_B_trr")
    for ct in range(4):
        for s in range(8):
            for u in range(2):
                base = (72 if s < 4 else 80) + 2 * ct + u
                a(f"ds_read_b64_tr_b16 {vr(128 + (ct * 8 + s) * 4 + 2 * u, 2)}, v{base} offset:{32768 * ((s // 2) % 2) + 4096 * (s % 2)}")
    a("s_cmp_lt_u32 s12, 3")
    a("s_cbranch_scc0 L_B_trd")
    a("s_barrier")
    a.label("L_B_trd")
    a("s_barrier")
    a("s_waitcnt lgkmcnt(0)")
    a("s_barrier")
    TS(4)
    for s in range(8):
        a(f"ds_read_b128 {vr(96 + 4 * s, 4)}, v88 offset:{32 * s}")
    ACC = [32, 48, 32, 48]
    ACC = [32, 48, 64 - 0, 0]
    a("v_mov_b32 v22, v89")
    a("v_mov_b32 v23, v90")
    ACC = [32, 48, 64, 80]

    def stage_w(ct, g4):
        x = ACC[ct] + 4 * g4
        d = 14 + 2 * (g4 % 4)
        a(f"v_cvt_pk_bf16_f32 v{d}, v{x}, v{x + 1}")
        a(f"v_cvt_pk_bf16_f32 v{d + 1}, v{x + 2}, v{x + 3}")
        a(f"ds_write_b64 v22, {vr(d, 2)} offset:{8192 * (ct // 2) + 64 * (ct % 2) + 16 * g4}")

    def stage_r(pair, dst):
        for i in range(4):
            a(f"ds_read_b128 {vr(dst + 4 * i, 4)}, v23 offset:{8192 * pair + 1152 * i}")

    def op_store(pair, dst, i):
        so = "0" if i == 0 else f"s{52 + i}"
        a(f"buffer_store_dwordx4 {vr(dst + 4 * i, 4)}, v30, {WS}, {so} offen offset:{128 * pair} sc1")

    for ct in range(4):
        for s in range(8):
            if ct == 0:
                a(f"s_waitcnt lgkmcnt({7 - s})")
            cin = "0" if s == 0 else vr(ACC[ct], 16)
            a(f"v_mfma_f32_32x32x16_bf16 {vr(ACC[ct], 16)}, {vr(128 + (ct * 8 + s) * 4, 4)}, {vr(96 + 4 * s, 4)}, {cin}")
            if ct >= 1 and 3 <= s <= 6:
                stage_w(ct - 1, s - 3)
            if ct == 1 and s == 0:
                a("s_barrier")
            if ct == 2 and s == 7:
                stage_r(0, 128)
            if ct == 3 and s < 2:
                a(f"s_waitcnt lgkmcnt({2 - 2 * s})")
                op_store(0, 128, 2 * s)
                op_store(0, 128, 2 * s + 1)
    for g4 in range(4):
        stage_w(3, g4)
    stage_r(1, 144)
    TS(7, 3)
    for i in range(4):
        a(f"s_waitcnt lgkmcnt({3 - i})")
        op_store(1, 144, i)
    TS(5)
    a("s_mov_b64 exec, 1")
    a("s_waitcnt vmcnt(0)")
    if cfg.fl:
        a(f"buffer_store_dwordx4 v[26:29], v25, {WS}, 0 offen sc1")
    a("s_mov_b64 exec, -1")
    a("s_barrier")
    a.label("L_B_post")
    if cfg.ts:
        TS(1)

    GW, UW, DW = 0, 16384, 32768
    GP, AB, ZB = 65536, 65536 + 4096, 65536 + 8192
    S1B, S2B = GP + 2048, GP + 2048 + 64
    a(f"s_cmp_ge_u32 s{S_SL}, {NSLICE}")
    a("s_cbranch_scc1 L_B_red")
    srd(SRD_A, S_WG, 512 * 2752)
    srd(SRD_B, S_WU, 512 * 2752)
    a("v_lshrrev_b32 v4, 1, v1")
    a("v_mul_u32_u24 v4, 2752, v4")
    a("v_and_b32 v5, 1, v1")
    a("v_lshl_add_u32 v4, v5, 4, v4")
    a(f"s_lshl_b32 s12, s{S_SL}, 1")
    a(f"s_add_u32 s12, s12, s{S_W}")
    a("s_and_b32 s12, s12, 7")
    a(f"s_mul_i32 s10, s12, {64 * 2752}")
    a(f"s_lshl_b32 s11, s{S_SL}, 5")
    a("s_add_u32 s10, s10, s11")
    a(f"s_add_u32 s11, s10, {32 * 2752}")
    a("s_lshl_b32 s12, s12, 11")
    for (R, base) in ((RA, GW), (RB, UW)):
        for k in range(2):
            a(f"s_add_u32 m0, s12, {base + 1024 * k}")
            a("s_nop 0")
            a(f"buffer_load_dwordx4 v4, {R}, s{10 + k} offen{' nt' if cfg.nt_ffn else ''} lds")
    srd(SRD_A, S_WD, 1376 * 1024)
    a("v_lshlrev_b32 v4, 4, v1")
    a(f"s_lshl_b32 s10, s{S_SL}, 14")
    a("s_add_u32 s10, s10, s12")
    a("s_add_u32 s11, s10, 1024")
    for k in range(2):
        a(f"s_add_u32 m0, s12, {DW + 1024 * k}")
        a("s_nop 0")
        a(f"buffer_load_dwordx4 v4, {RA}, s{10 + k} offen nt lds")
    a("v_mov_b32 v4, 0")
    a("v_mov_b32 v5, 0")
    a(f"v_mov_b32 v6, {ZB}")
    a("ds_write_b64 v6, v[4:5]")
    a(f"s_and_b32 s10, s{S_W}, 3")
    a("s_lshl_b32 s11, s10, 12")
    a("v_lshlrev_b32 v8, 8, v3")
    a("v_lshl_add_u32 v8, v2, 3, v8")
    a("v_add_u32 v8, s11, v8")
    a("v_lshrrev_b32 v9, 2, v2")
    a("v_lshl_add_u32 v10, v3, 2, v9")
    a("v_lshlrev_b32 v10, 10, v10")
    a("v_and_b32 v11, 3, v2")
    a("v_lshl_add_u32 v10, v11, 3, v10")
    a(f"s_lshl_b32 s11, s{S_W}, 7")
    a(f"s_add_u32 s12, s11, {DW}")
    a("v_add_u32 v10, s12, v10")
    a("v_lshlrev_b32 v12, 12, v9")
    a("v_lshrrev_b32 v13, 1, v3")
    a("v_lshl_add_u32 v12, v13, 7, v12")
    a("v_and_b32 v13, 1, v3")
    a("v_lshl_add_u32 v12, v13, 4, v12")
    a("s_lshl_b32 s12, s10, 10")
    a(f"s_add_u32 s12, s12, {WS_H}")
    a("v_add_u32 v12, s12, v12")
    a("s_lshl_b32 s12, s10, 2")
    a("v_lshlrev_b32 v13, 4, v1")
    a(f"v_add_u32 v13, {GP}, v13")
    a("v_add_u32 v14, s12, v13")
    a("v_lshlrev_b32 v15, 4, v3")
    a(f"v_add_u32 v15, {S1B}, v15")
    a("v_add_u32 v16, s12, v15")
    a("v_cmp_eq_u32 s[56:57], v9, v3")
    a(f"s_add_u32 s11, s11, {AB}")
    a("v_lshlrev_b32 v17, 1, v1")
    a("v_add_u32 v17, s11, v17")
    a("v_lshlrev_b32 v18, 5, v11")
    a("v_lshl_add_u32 v18, v3, 3, v18")
    a("v_add_u32 v18, s11, v18")
    for tau in range(4):
        a(f"v_cmp_eq_u32 vcc, {tau}, v9")
        a(f"v_cndmask_b32 v{20 + tau}, v6, v18, vcc")
    a("s_waitcnt vmcnt(0) lgkmcnt(0)")
    a("s_barrier")
    for tau in range(4):
        a(f"ds_read_b64_tr_b16 {vr(64 + 2 * tau, 2)}, v10 offset:{32 * tau}")
    for mtx in range(2):
        for t in range(4):
            for u in range(2):
                a(f"ds_read_b64_tr_b16 {vr(32 + 16 * mtx + 4 * t + 2 * u, 2)}, v8 offset:{UW * mtx + 1024 * t + 128 * u}")
    for p in range(4):
        a(f"v_mov_b32 v{72 + p}, 0x3f803f80")
    a("s_waitcnt lgkmcnt(0)")
    for t in range(4):
        for mtx in range(2):
            mfma16(76 + 4 * mtx, 72, 32 + 16 * mtx + 4 * t, None if t == 0 else 76 + 4 * mtx)
    a("ds_write_b32 v14, v76")
    a("ds_write_b32 v14, v80 offset:1024")
    a("s_waitcnt lgkmcnt(0)")
    a("s_barrier")
    a("ds_read_b128 v[76:79], v13")
    a("ds_read_b128 v[80:83], v13 offset:1024")
    a("s_waitcnt lgkmcnt(0)")
    for x, o in ((76, 24), (80, 25)):
        a(f"v_add_f32 v{x}, v{x}, v{x + 1}")
        a(f"v_add_f32 v{x + 2}, v{x + 2}, v{x + 3}")
        a(f"v_add_f32 v{o}, v{x}, v{x + 2}")
    a("s_barrier")

    TS(6)
    a("s_branch L_B_hcan")
    a.label("L_B_red")
    TS(6)
    a(f"s_cmp_lt_u32 s{S_I16}, 12")
    END_IF("scc1", 8)
    a(f"s_cmp_ge_u32 s{S_W}, 4")
    END_IF("scc1", 8)
    a(f"s_lshl_b32 s{S_R}, s{S_XCD}, 2")
    a(f"s_add_u32 s{S_R}, s{S_R}, s{S_I16}")
    a(f"s_sub_u32 s{S_R}, s{S_R}, 12")
    a(f"s_lshl_b32 s{S_R}, s{S_R}, 2")
    a(f"s_add_u32 s{S_R}, s{S_R}, s{S_W}")
    a(f"s_lshr_b32 s{S_BB}, s{S_R}, 5")
    a(f"s_and_b32 s{S_CH}, s{S_R}, 31")
    MK2, D2 = 112, 116
    sel_masks(MK2, 4)
    for k in range(4):
        a(f"v_and_b32 v{MK2 + k}, 0x3f803f80, v{MK2 + k}")
    a("v_lshrrev_b32 v4, 1, v2")
    a("v_lshl_add_u32 v4, v3, 3, v4")
    a("v_and_b32 v5, 1, v2")
    a("v_lshlrev_b32 v5, 4, v5")
    a("v_lshl_add_u32 v26, v3, 3, v5")
    a(f"s_lshl_b32 s10, s{S_R}, 5")
    a("v_and_b32 v27, 31, v26")
    a("v_add_u32 v27, s10, v27")
    a(f"global_load_dwordx2 v[28:29], v27, s[{S_X}:{S_X + 1}]")
    a(f"s_lshl_b32 s10, s{S_BB}, 17")
    a(f"s_lshl_b32 s11, s{S_CH}, 5")
    a("s_add_u32 s10, s10, s11")
    a(f"s_add_u32 s10, s10, {WS_AO}")
    a("v_lshl_add_u32 v4, v4, 10, v5")
    a("v_add_u32 v4, s10, v4")
    a(f"s_lshl_b32 s10, s{S_R}, 7")
    a(f"s_add_u32 s10, s10, {WS_H}")
    a("v_add_u32 v26, s10, v26")
    a("s_mov_b32 s10, 65536")
    a("s_mov_b32 s11, 98304")
    a("v_cmp_gt_u32 vcc, 2, v2")
    a("s_waitcnt vmcnt(0)")
    a("v_cndmask_b32 v28, 0, v28, vcc")
    a("v_cndmask_b32 v29, 0, v29, vcc")
    a("v_lshlrev_b32 v120, 16, v28")
    a("v_and_b32 v121, 0xffff0000, v28")
    a("v_lshlrev_b32 v122, 16, v29")
    a("v_and_b32 v123, 0xffff0000, v29")
    canary(4, 96, False)
    mpoll_data([(96 + 4 * i, f"buffer_load_dwordx4 {vr(96 + 4 * i, 4)}, v4, {WS}, {['0', k8(4), 's10', 's11'][i]} offen sc1") for i in range(4)], 20, 5)
    for i in range(4):
        mfma16(D2, MK2, 96 + 4 * i, 120 if i == 0 else D2)
    dpp_ror_reduce(range(D2, D2 + 4), (2, 4, 8))
    a(f"v_cvt_pk_bf16_f32 v28, v{D2}, v{D2 + 1}")
    a(f"v_cvt_pk_bf16_f32 v29, v{D2 + 2}, v{D2 + 3}")
    a("s_mov_b64 exec, 0x00030003")
    a(f"buffer_store_dwordx2 v[28:29], v26, {WS}, 0 offen sc1")
    TS(7)
    END(8)

    a.label("L_B_hcan")
    canary(12, 96, False)
    mpoll_data([(96 + 4 * t, f"buffer_load_dwordx4 {vr(96 + 4 * t, 4)}, v12, {WS}, 0 offen offset:{256 * t} sc1") for t in range(4)], 20, 5)
    TS(7)
    a(f"s_cmp_ge_u32 s{S_W}, 4")
    a("s_cbranch_scc1 L_B_stats")
    for t in range(4):
        for mtx in range(2):
            mfma16(76 + 4 * mtx, 96 + 4 * t, 32 + 16 * mtx + 4 * t, None if t == 0 else 76 + 4 * mtx)
    a("ds_write_b32 v14, v76")
    a("ds_write_b32 v14, v80 offset:1024")
    a("s_branch L_B_f1done")
    a.label("L_B_stats")
    for t in range(4):
        mfma16(76, 96 + 4 * t, 72, None if t == 0 else 76)
        mfma16(80, 96 + 4 * t, 96 + 4 * t, None if t == 0 else 80)
    a("s_mov_b64 exec, s[56:57]")
    a("ds_write_b32 v16, v76")
    a("ds_write_b32 v16, v80 offset:64")
    a("s_mov_b64 exec, -1")
    a.label("L_B_f1done")
    a("s_waitcnt lgkmcnt(0)")
    a("s_barrier")
    a("ds_read_b128 v[84:87], v15")
    a("ds_read_b128 v[88:91], v15 offset:64")
    a("ds_read_b128 v[76:79], v13")
    a("ds_read_b128 v[80:83], v13 offset:1024")
    a("s_waitcnt lgkmcnt(2)")
    for x in (84, 88):
        a(f"v_add_f32 v{x}, v{x}, v{x + 1}")
        a(f"v_add_f32 v{x + 2}, v{x + 2}, v{x + 3}")
        a(f"v_add_f32 v{x}, v{x}, v{x + 2}")
    a(f"v_mul_f32 v84, {hex(f32(1.0 / 512))}, v84")
    a(f"v_mul_f32 v88, {hex(f32(1.0 / 512))}, v88")
    a("v_fma_f32 v88, -v84, v84, v88")
    a("v_max_f32 v88, 0, v88")
    a(f"v_add_f32 v88, {hex(f32(1e-5))}, v88")
    a("v_rsq_f32 v88, v88")
    a("s_waitcnt lgkmcnt(0)")
    for x in (76, 80):
        a(f"v_add_f32 v{x}, v{x}, v{x + 1}")
        a(f"v_add_f32 v{x + 2}, v{x + 2}, v{x + 3}")
        a(f"v_add_f32 v{x}, v{x}, v{x + 2}")
    a("v_fma_f32 v76, -v84, v24, v76")
    a("v_fma_f32 v80, -v84, v25, v80")
    a("v_mul_f32 v76, v76, v88")
    a("v_mul_f32 v80, v80, v88")
    a(f"v_mul_f32 v77, {hex(f32(-math.log2(math.e)))}, v76")
    a("v_exp_f32 v77, v77")
    a("v_mul_f32 v76, v76, v80")
    a("v_add_f32 v77, 1.0, v77")
    a("v_rcp_f32 v77, v77")
    a("v_mul_f32 v76, v76, v77")
    a("v_cvt_pk_bf16_f32 v76, v76, v76")
    a("ds_write_b16 v17, v76")
    a("s_waitcnt lgkmcnt(0)")
    for tau in range(4):
        a(f"ds_read_b64 {vr(84 + 2 * tau, 2)}, v{20 + tau}")
    for tau in range(4):
        a(f"s_waitcnt lgkmcnt({3 - tau})")
        cin = "0" if tau == 0 else "v[76:79]"
        a(f"v_mfma_f32_16x16x16_bf16 v[76:79], {vr(64 + 2 * tau, 2)}, {vr(84 + 2 * tau, 2)}, {cin}")
    a("v_cvt_pk_bf16_f32 v80, v76, v77")
    a("v_cvt_pk_bf16_f32 v81, v78, v79")
    a(f"buffer_store_dwordx2 v[80:81], v31, {WS}, 0 offen sc1")
    TS(2)
    if cfg.ts:
        END(8)
    a.label("L_end")
    a("s_endpgm")
    a.label("L_code_end")

    body = a.render()
    hdr = open("sequential_preLN__compressed_kv_cla__swiglu_ffn__decode.s.ref").read().split("\n")
    head = []
    for line in hdr:
        if line.startswith("; @launch"):
            head.append("; @launch grid=(256,1,1) block=(512,1,1) lds=163840")
            break
        head.append(line)
    text = "\n".join(head) + f"""
.amdgcn_target "amdgcn-amd-amdhsa--gfx950"
.text
.globl {KNAME}
.p2align 8
.type {KNAME},@function
{KNAME}:
{body}.section .rodata,"a"
.p2align 6
.amdhsa_kernel {KNAME}
  .amdhsa_next_free_vgpr 256
  .amdhsa_next_free_sgpr 102
  .amdhsa_accum_offset 256
  .amdhsa_group_segment_fixed_size 0
  .amdhsa_kernarg_size 104
  .amdhsa_user_sgpr_count 2
  .amdhsa_user_sgpr_kernarg_segment_ptr 1
  .amdhsa_system_sgpr_workgroup_id_x 1
.end_amdhsa_kernel
"""
    return text


if __name__ == "__main__":
    cfg = Cfg()
    out = "sequential_preLN__compressed_kv_cla__swiglu_ffn__decode.s"
    for arg in sys.argv[1:]:
        if arg.startswith("out="):
            out = arg[4:]
        else:
            k, v = arg.split("=")
            assert hasattr(cfg, k), k
            setattr(cfg, k, int(v))
    open(out, "w").write(gen(cfg))
    print("wrote", out)
```

```python
import sys, math, struct
sys.path.insert(0, "dev")
from asmgen import Asm, vr, sr

KNAME = "sequential_preLN__compressed_kv_cla__swiglu_ffn__decode_kernel"

WS_EPOCH = 0x0
WS_H = 0x004000
WS_GO = 0x008000
WS_QPG = 0x010000
WS_FL = 0x0E0000
WS_QPG2 = 0x600000
WS_QL = 0x080000
WS_ST = 0x0C0000
WS_AO = 0x100000
WS_FP = 0x180000
WS_OP = 0x200000
WS_DBG = 0x800000
WS_SIZE = 0x1000000

NSLICE = 86
SPIN = 1 << 16


def f32(x):
    return struct.unpack("<I", struct.pack("<f", x))[0]


def G(x):
    return [0, 2, 3, 1][x]


def FSW(k):
    return ((k % 4) << 2) | G((k // 4) % 4)


class Cfg:
    ts = 0
    dbg = 0
    prio_pv = 1
    b_delay = 1
    qsleep = 1
    uv_early = 0
    pretouch = 1
    clr_pos = 0
    csleep = 1
    nt_wo = 1
    nt_ffn = 1
    xgate = 3
    e1full = 1
    dma_depth = 8
    dma_n = 16
    ukpf = 0
    ffn_early = 0
    e1local = 1
    wo_depth = 0
    wo_n = 32
    ckpf = 0
    ukpf_n = 8
    q3_at = 20
    b0_at = 31
    ffnpf = 0
    mp = 0
    fl = 0
    scout = 0
    ssleep = 4
    go_at = 32
    bs_at = -1
    pperm = 1
    e1lds = 1
    uk_delay = 0
    bs_mode = 0
    uk_late = 0
    ffnpf2 = 0


def gen(cfg):
    a = Asm()
    S_X, S_CKV, S_WQ, S_WUK, S_WUV, S_WO, S_WG, S_WU, S_WD, S_OUT, S_WS = 16, 18, 20, 22, 24, 26, 30, 32, 34, 36, 40
    S_W, S_XCD, S_I16 = 3, 4, 5
    S_K8 = 64
    SRD_WS, SRD_A, SRD_B = 72, 76, 80
    S_TS = 84
    WS = f"s[{SRD_WS}:{SRD_WS + 3}]"
    RA = f"s[{SRD_A}:{SRD_A + 3}]"
    RB = f"s[{SRD_B}:{SRD_B + 3}]"
    DPPM = "row_mask:0xf bank_mask:0xf"
    inA = [True]

    def TS(idx, lvl=1):
        if not cfg.ts:
            return
        if cfg.ts == 2 and lvl == 1 and idx in (3, 4, 5) and inA[0]:
            return
        if lvl == 2 and cfg.ts != 2:
            return
        if lvl == 3 and cfg.ts != 3:
            return
        if cfg.ts == 3 and lvl == 1 and idx in (1, 2, 6, 7) and not inA[0]:
            return
        a(f"s_memrealtime s[{S_TS + 2 * idx}:{S_TS + 2 * idx + 1}]")
        a("s_waitcnt lgkmcnt(0)")

    def END(n=8):
        if cfg.ts:
            a("s_mov_b64 exec, 1")
            a(f"s_lshl_b32 s8, s2, 3")
            a(f"s_add_u32 s8, s8, s{S_W}")
            a(f"s_lshl_b32 s8, s8, 6")
            a(f"s_add_u32 s8, s8, {WS_DBG}")
            a("v_mov_b32 v2, s8")
            for i in range(n):
                a(f"v_mov_b32 v3, s{S_TS + 2 * i}")
                a(f"buffer_store_dword v3, v2, {WS}, 0 offen offset:{4 * i}")
            a("s_waitcnt vmcnt(0)")
        a("s_endpgm")

    def END_IF(cond_branch_true, n=8):
        if cfg.ts:
            lab = a.newlabel("Lcont")
            a(f"s_cbranch_{'scc0' if cond_branch_true == 'scc1' else 'scc1'} {lab}")
            END(n)
            a.label(lab)
        else:
            a(f"s_cbranch_{cond_branch_true} L_end")

    def srd(dst, ptr, nbytes):
        a(f"s_mov_b32 s{dst}, s{ptr}")
        a(f"s_mov_b32 s{dst + 1}, s{ptr + 1}")
        a(f"s_mov_b32 s{dst + 2}, {nbytes}")
        a(f"s_mov_b32 s{dst + 3}, 0x20000")

    def k8(i):
        return "0" if i == 0 else f"s{S_K8 + i}"

    def tags():
        a("s_add_u32 s44, s44, 1")
        a("s_mul_i32 s48, s44, 0x9E3779B1")
        a("s_xor_b32 s48, s48, 0x85EBCA6B")
        a("s_mul_i32 s49, s44, 0xC2B2AE35")
        a("s_add_u32 s49, s49, 0x27D4EB2F")

    def perm_set(src, dst):
        for c in range(8):
            dw, e = c // 2, c % 2
            sel = "s14" if e == 0 else "s15"
            for p in range(4):
                a(f"v_perm_b32 v{dst + 4 * c + p}, v{src + 4 * (2 * p + 1) + dw}, v{src + 4 * (2 * p) + dw}, {sel}")

    def swap_reduce(reg, tmp, which, op="v_add_f32"):
        a(f"v_mov_b32 v{tmp}, v{reg}")
        a(f"v_permlane{which}_swap_b32 v{reg}, v{tmp}")
        a(f"{op} v{reg}, v{reg}, v{tmp}")

    def dpp_ror_reduce(regs, rors, op="v_add_f32"):
        for r in rors:
            for x in regs:
                a(f"{op}_dpp v{x}, v{x}, v{x} row_ror:{r} {DPPM}")

    def mfma16(d, A, B, c):
        cin = "0" if c is None else vr(c, 4)
        a(f"v_mfma_f32_16x16x32_bf16 {vr(d, 4)}, {vr(A, 4)}, {vr(B, 4)}, {cin}")

    def valid_check(regs, tmp, fail_label):
        regs = list(regs)
        a(f"v_max3_u32 v{tmp}, v{regs[0]}, v{regs[1]}, v{regs[2]}")
        rest = regs[3:]
        while len(rest) >= 2:
            a(f"v_max3_u32 v{tmp}, v{tmp}, v{rest[0]}, v{rest[1]}")
            rest = rest[2:]
        if rest:
            a(f"v_max_u32 v{tmp}, v{tmp}, v{rest[0]}")
        a(f"v_cmp_eq_u32 vcc, -1, v{tmp}")
        ok = a.newlabel("Lok")
        a(f"s_cbranch_vccz {ok}")
        a("s_sub_u32 s13, s13, 1")
        a(f"s_cbranch_scc0 {fail_label}")
        a.label(ok)

    def canary(addr, dst, tagged, so="0", lanes=1):
        lab = a.newlabel("Lcan")
        done = a.newlabel("Lcand")
        a(f"s_mov_b64 exec, {hex(lanes)}")
        a.label(lab)
        a(f"buffer_load_dwordx4 {vr(dst, 4)}, v{addr}, {WS}, {so} offen sc1")
        a("s_waitcnt vmcnt(0)")
        if tagged:
            a(f"v_cmp_ne_u64 vcc, s[48:49], {vr(dst + 2, 2)}")
        else:
            a(f"v_cmp_eq_u32 vcc, -1, v{dst}")
        a(f"s_cbranch_vccz {done}")
        if cfg.csleep:
            a(f"s_sleep {cfg.csleep}")
        a("s_sub_u32 s13, s13, 1")
        a(f"s_cbranch_scc0 {lab}")
        a.label(done)
        a("s_mov_b64 exec, -1")

    def mpoll_tag(addr, dst, init="-1", sleep=0):
        lab = a.newlabel("Lmp")
        done = a.newlabel("Lmpd")
        a(f"s_mov_b64 exec, {init}")
        a.label(lab)
        a(f"buffer_load_dwordx4 {vr(dst, 4)}, v{addr}, {WS}, 0 offen sc1")
        a("s_waitcnt vmcnt(0)")
        a(f"v_cmp_ne_u64 vcc, s[48:49], {vr(dst + 2, 2)}")
        a("s_and_b64 exec, exec, vcc")
        a(f"s_cbranch_scc0 {done}")
        if sleep:
            a(f"s_sleep {sleep}")
        a("s_sub_u32 s13, s13, 1")
        a(f"s_cbranch_scc0 {lab}")
        a.label(done)
        a("s_mov_b64 exec, -1")

    def mpoll_data(loads, M, tmp, inits=None):
        n = len(loads)
        if not cfg.mp:
            lab = a.newlabel("Lsp")
            a.label(lab)
            regs = []
            for i, (dst, text) in enumerate(loads):
                if inits and inits[i] != "-1":
                    a(f"s_mov_b64 exec, {inits[i]}")
                a(text)
                if inits and inits[i] != "-1":
                    a("s_mov_b64 exec, -1")
                regs += list(range(dst, dst + 4))
            a("s_waitcnt vmcnt(0)")
            valid_check(regs, tmp, lab)
            return
        lab = a.newlabel("Lmd")
        done = a.newlabel("Lmdd")
        ANY = M + 2 * n
        for i in range(n):
            a(f"s_mov_b64 s[{M + 2 * i}:{M + 2 * i + 1}], {inits[i] if inits else '-1'}")
        a.label(lab)
        for i, (dst, text) in enumerate(loads):
            sk = a.newlabel("Lsk")
            a(f"s_mov_b64 exec, s[{M + 2 * i}:{M + 2 * i + 1}]")
            a(f"s_cbranch_execz {sk}")
            a(text)
            a.label(sk)
        a(f"s_mov_b64 s[{ANY}:{ANY + 1}], 0")
        a("s_waitcnt vmcnt(0)")
        for i, (dst, text) in enumerate(loads):
            a(f"s_mov_b64 exec, s[{M + 2 * i}:{M + 2 * i + 1}]")
            a(f"v_max3_u32 v{tmp}, v{dst}, v{dst + 1}, v{dst + 2}")
            a(f"v_max_u32 v{tmp}, v{tmp}, v{dst + 3}")
            a(f"v_cmp_eq_u32 vcc, -1, v{tmp}")
            a(f"s_and_b64 s[{M + 2 * i}:{M + 2 * i + 1}], s[{M + 2 * i}:{M + 2 * i + 1}], vcc")
            a(f"s_or_b64 s[{ANY}:{ANY + 1}], s[{ANY}:{ANY + 1}], s[{M + 2 * i}:{M + 2 * i + 1}]")
        a(f"s_cbranch_scc0 {done}")
        a("s_sub_u32 s13, s13, 1")
        a(f"s_cbranch_scc0 {lab}")
        a.label(done)
        a("s_mov_b64 exec, -1")

    def sel_masks(M, tmp):
        a(f"v_and_b32 v{tmp}, 1, v2")
        a(f"v_lshlrev_b32 v{tmp}, 4, v{tmp}")
        a(f"v_mov_b32 v{tmp + 1}, 0xffff")
        a(f"v_lshlrev_b32 v{tmp}, v{tmp}, v{tmp + 1}")
        a(f"v_lshrrev_b32 v{tmp + 1}, 1, v2")
        for p in range(4):
            a(f"v_cmp_eq_u32 vcc, {p}, v{tmp + 1}")
            a(f"v_cndmask_b32 v{M + p}, 0, v{tmp}, vcc")

    a.label("L_code_start")
    a("s_cmp_ge_u32 s2, 256")
    a("s_cbranch_scc1 L_end")
    a("s_load_dwordx16 s[16:31], s[0:1], 0")
    a("s_load_dwordx8 s[32:39], s[0:1], 64")
    a("s_load_dwordx2 s[40:41], s[0:1], 96")
    if cfg.ts or cfg.dbg:
        a(f"s_memrealtime s[{S_TS}:{S_TS + 1}]")
    a("v_lshrrev_b32 v2, 6, v0")
    a("v_and_b32 v1, 63, v0")
    a(f"v_readfirstlane_b32 s{S_W}, v2")
    a("v_and_b32 v2, 15, v1")
    a("v_lshrrev_b32 v3, 4, v1")
    a(f"s_and_b32 s{S_XCD}, s2, 7")
    a(f"s_lshr_b32 s{S_I16}, s2, 3")
    for i in range(1, 8):
        a(f"s_mov_b32 s{S_K8 + i}, {i * 8192}")
    a(f"s_mov_b32 s13, {SPIN}")
    a(f"s_cmp_ge_u32 s{S_I16}, 16")
    a("s_cbranch_scc1 L_B")

    S_H, S_J, S_A = 6, 7, 9
    a("s_mov_b32 s14, 0x05040100")
    a("s_mov_b32 s15, 0x07060302")
    a(f"s_lshl_b32 s{S_A}, s{S_XCD}, 4")
    a(f"s_add_u32 s{S_A}, s{S_A}, s{S_I16}")
    a(f"s_lshr_b32 s{S_H}, s{S_A}, 2")
    a(f"s_and_b32 s{S_J}, s{S_A}, 3")
    a(f"s_cmp_ge_u32 s{S_W}, 4")
    a("s_cbranch_scc1 L_Ahi")

    a("v_lshrrev_b32 v4, 2, v2")
    a("v_lshlrev_b32 v4, 10, v4")
    a("v_and_b32 v5, 3, v1")
    a("v_lshl_add_u32 v5, v3, 2, v5")
    a("v_lshl_add_u32 v5, v5, 4, v4")
    a(f"s_lshl_b32 s8, s{S_J}, 7")
    a(f"s_lshl_b32 s10, s{S_W}, 5")
    a("s_add_u32 s8, s8, s10")
    a("s_lshl_b32 s10, s8, 1")
    a("v_lshl_add_u32 v6, v3, 4, v4")
    a("v_add_u32 v6, s10, v6")
    a("s_lshl_b32 s10, s8, 13")
    a(f"s_lshl_b32 s11, s{S_H}, 8")
    a("s_add_u32 s10, s10, s11")
    a("v_lshlrev_b32 v7, 16, v3")
    a("v_lshl_add_u32 v7, v2, 4, v7")
    a("v_add_u32 v7, s10, v7")
    a("s_waitcnt lgkmcnt(0)")
    srd(SRD_A, S_WQ, 4 << 20)
    for i in range(4):
        a(f"global_load_dwordx4 {vr(8 + 4 * i, 4)}, v5, s[{S_X}:{S_X + 1}] offset:{256 * i}")
    a(f"global_load_dwordx4 v[24:27], v6, s[{S_X}:{S_X + 1}]")
    for jj in range(8):
        a(f"buffer_load_dwordx4 {vr(32 + 4 * jj, 4)}, v7, {RA}, {k8(jj)} offen nt")
    a(f"s_load_dword s44, s[{S_WS}:{S_WS + 1}], {WS_EPOCH}")
    srd(SRD_WS, S_WS, WS_SIZE)
    srd(SRD_B, S_WUV, 4 << 20)
    a("v_mov_b32 v28, 0")
    a("v_mov_b32 v29, 0")
    a("s_mov_b32 s10, 0x3f803f80")
    a("s_waitcnt vmcnt(9)")
    for i in range(16):
        a(f"v_dot2c_f32_bf16 v28, s10, v{8 + i}")
        a(f"v_dot2c_f32_bf16 v29, v{8 + i}, v{8 + i}")
    for x in (28, 29):
        a(f"v_add_f32_dpp v{x}, v{x}, v{x} quad_perm:[1,0,3,2] {DPPM}")
    for x in (28, 29):
        a(f"v_add_f32_dpp v{x}, v{x}, v{x} quad_perm:[2,3,0,1] {DPPM}")
    for wh in (16, 32):
        swap_reduce(28, 30, wh)
        swap_reduce(29, 31, wh)
    a(f"v_mul_f32 v28, {hex(f32(1.0 / 512))}, v28")
    a(f"v_mul_f32 v29, {hex(f32(1.0 / 512))}, v29")
    a("v_fma_f32 v29, -v28, v28, v29")
    a("v_max_f32 v29, 0, v29")
    a(f"v_add_f32 v29, {hex(f32(1e-5))}, v29")
    a("v_rsq_f32 v29, v29")
    a("s_waitcnt vmcnt(8)")
    a("v_mul_f32 v28, v28, v29")
    for p in range(4):
        a(f"v_lshlrev_b32 v{8 + 2 * p}, 16, v{24 + p}")
        a(f"v_and_b32 v{9 + 2 * p}, 0xffff0000, v{24 + p}")
    for k in range(8):
        a(f"v_fma_f32 v{8 + k}, v{8 + k}, v29, -v28")
    for p in range(4):
        a(f"v_cvt_pk_bf16_f32 v{24 + p}, v{8 + 2 * p}, v{9 + 2 * p}")
    a(f"s_lshl_b32 s10, s{S_W}, 11")
    a("v_lshlrev_b32 v8, 9, v3")
    a("v_lshl_add_u32 v8, v2, 5, v8")
    a("v_add_u32 v8, s10, v8")
    a("v_and_b32 v9, 3, v1")
    a("v_lshlrev_b32 v11, 4, v9")
    a("v_lshlrev_b32 v9, 9, v9")
    a("v_bfe_u32 v10, v1, 2, 2")
    a("v_lshl_add_u32 v9, v10, 5, v9")
    a("v_lshrrev_b32 v10, 5, v1")
    a("v_lshl_add_u32 v9, v10, 7, v9")
    a(f"s_lshl_b32 s10, s{S_W}, 8")
    a("v_add_u32 v9, s10, v9")
    a("v_and_b32 v10, 1, v3")
    a("v_lshl_add_u32 v9, v10, 4, v9")
    a("v_cmp_eq_u32 s[56:57], 1, v10")
    a(f"s_lshl_b32 s10, s{S_H}, 13")
    a(f"s_lshl_b32 s11, s{S_W}, 12")
    a("s_add_u32 s10, s10, s11")
    a(f"s_lshl_b32 s11, s{S_J}, 6")
    a("s_add_u32 s10, s10, s11")
    a(f"s_add_u32 s10, s10, {WS_QPG}")
    a("v_lshrrev_b32 v10, 2, v1")
    a("v_lshl_add_u32 v11, v10, 8, v11")
    a("v_add_u32 v11, s10, v11")
    a("s_waitcnt lgkmcnt(0)")
    tags()
    a("v_mov_b32 v12, s48")
    a("v_mov_b32 v13, s49")
    if cfg.pperm:
        for pp in range(4):
            a(f"s_waitcnt vmcnt({6 - 2 * pp})")
            for c in range(8):
                dw, e = c // 2, c % 2
                a(f"v_perm_b32 v{64 + 4 * c + pp}, v{32 + 4 * (2 * pp + 1) + dw}, v{32 + 4 * (2 * pp) + dw}, {'s14' if e == 0 else 's15'}")
    else:
        a("s_waitcnt vmcnt(0)")
    TS(1)

    def uv_loads():
        for jj in range(8):
            a(f"buffer_load_dwordx4 {vr(128 + 4 * jj, 4)}, v7, {RB}, {k8(jj)} offen nt")

    if cfg.uv_early == 1:
        uv_loads()
    if not cfg.pperm:
        perm_set(32, 64)
    for c in range(8):
        mfma16(96 + 4 * c, 24, 64 + 4 * c, None)
    for c in range(0, 8, 2):
        a(f"ds_write2_b32 v8, v{96 + 4 * c}, v{100 + 4 * c} offset0:{c} offset1:{c + 1}")
    a("s_waitcnt lgkmcnt(0)")
    a("s_barrier")
    a(f"s_cmp_ge_u32 s{S_W}, 2")
    a("s_cbranch_scc1 L_Alo_nopub")
    for i in range(4):
        a(f"ds_read_b128 {vr(32 + 4 * i, 4)}, v9 offset:{2048 * i}")
    a("s_waitcnt lgkmcnt(2)")
    for k in range(4):
        a(f"v_add_f32 v{32 + k}, v{32 + k}, v{36 + k}")
    a("s_waitcnt lgkmcnt(0)")
    for k in range(4):
        a(f"v_add_f32 v{40 + k}, v{40 + k}, v{44 + k}")
    for k in range(4):
        a(f"v_add_f32 v{32 + k}, v{32 + k}, v{40 + k}")
    a("v_cvt_pk_bf16_f32 v36, v32, v33")
    a("v_cvt_pk_bf16_f32 v37, v34, v35")
    a("v_cndmask_b32 v16, v12, v36, s[56:57]")
    a("v_cndmask_b32 v17, v13, v37, s[56:57]")
    a("v_cndmask_b32 v18, v36, v12, s[56:57]")
    a("v_cndmask_b32 v19, v37, v13, s[56:57]")
    if cfg.e1local:
        a(f"s_mov_b32 s10, {WS_QPG2 - WS_QPG}")
        a(f"buffer_store_dwordx4 v[16:19], v11, {WS}, s10 offen")
    a(f"buffer_store_dwordx4 v[16:19], v11, {WS}, 0 offen sc1")
    a.label("L_Alo_nopub")
    TS(2)
    if cfg.e1lds:
        a("s_barrier")
    if cfg.xgate in (1, 2):
        a(f"s_cmp_eq_u32 s{S_W}, 3")
        a("s_cbranch_scc0 L_Alo_nogate")
        a(f"s_lshl_b32 s10, s{S_A}, 7")
        a(f"s_add_u32 s10, s10, {WS_GO}")
        a("v_mov_b32 v16, s10")
        canary(16, 20, True)
        a.label("L_Alo_nogate")
    a("s_barrier")
    if cfg.ckpf:
        srd(SRD_A, S_CKV, 16 << 20)
        a(f"s_lshl_b32 s10, s{S_A}, 17")
        a(f"s_lshl_b32 s11, s{S_W}, 15")
        a("s_add_u32 s10, s10, s11")
        a("v_lshlrev_b32 v16, 10, v3")
        a("v_lshl_add_u32 v16, v2, 4, v16")
        for k in range(cfg.ckpf):
            i = 32 - cfg.ckpf + k
            a(f"s_add_u32 s11, s10, {(i % 8) * 4096 + (i // 8) * 256}")
            a(f"buffer_load_dwordx4 {vr(32 + 4 * k, 4)}, v16, {RA}, s11 offen")
    if cfg.xgate == 3:
        a(f"s_lshl_b32 s10, s{S_A}, 7")
        a(f"s_add_u32 s10, s10, {WS_GO}")
        a("v_mov_b32 v16, s10")
        canary(16, 20, True)
    if cfg.uv_early != 1:
        uv_loads()
    if cfg.ffnpf:
        ntf = " nt" if cfg.ffnpf == 1 else ""
        srd(SRD_A, S_WG, 512 * 2752)
        srd(SRD_B, S_WU, 512 * 2752)
        a("v_and_b32 v16, 7, v1")
        a("v_lshlrev_b32 v16, 6, v16")
        a("v_min_u32 v16, 348, v16")
        a("v_lshrrev_b32 v17, 3, v1")
        a("v_mul_u32_u24 v17, 2752, v17")
        a("v_add_u32 v16, v16, v17")
        a(f"s_lshl_b32 s10, s{S_I16}, 2")
        a(f"s_add_u32 s10, s10, s{S_W}")
        a(f"s_mul_i32 s10, s10, {8 * 2752}")
        a(f"s_mul_i32 s11, s{S_XCD}, 352")
        a("s_add_u32 s10, s10, s11")
        a(f"buffer_load_dword v18, v16, {RA}, s10 offen{ntf}")
        a(f"buffer_load_dword v19, v16, {RB}, s10 offen{ntf}")
        srd(SRD_A, S_WD, 1376 * 1024)
        a("v_lshlrev_b32 v16, 6, v0")
        a("v_min_u32 v16, 11200, v16")
        a(f"s_mul_i32 s10, s{S_A}, 11264")
        a(f"buffer_load_dword v20, v16, {RA}, s10 offen{ntf}")
        a("s_waitcnt vmcnt(3)")
    else:
        a("s_waitcnt vmcnt(0)")
    perm_set(128, 160)
    a("s_branch L_A_x")

    a.label("L_Ahi")
    a(f"s_sub_u32 s12, s{S_W}, 4")
    a(f"s_lshl_b32 s8, s{S_J}, 7")
    a("s_lshl_b32 s10, s12, 5")
    a("s_add_u32 s8, s8, s10")
    a("s_lshl_b32 s10, s8, 13")
    a(f"s_lshl_b32 s11, s{S_H}, 8")
    a("s_add_u32 s10, s10, s11")
    a("s_mov_b32 s57, s10")
    a("v_xor_b32 v7, v2, v3")
    a("v_lshlrev_b32 v7, 4, v7")
    a("v_lshl_add_u32 v30, v2, 8, v7")
    a("v_lshl_add_u32 v7, v3, 13, v7")
    a("s_lshl_b32 s11, s12, 13")
    a("s_add_u32 s11, s11, 16384")
    a("v_add_u32 v30, s11, v30")
    a("s_getpc_b64 s[62:63]")
    a.label("L_pc")
    a("s_sub_u32 s62, s62, L_pc-L_code_start")
    a("s_subb_u32 s63, s63, 0")
    a("s_lshl_b32 s10, s12, 4")
    a(f"s_add_u32 s10, s10, s{S_I16}")
    a("s_lshl_b32 s10, s10, 10")
    a("v_lshlrev_b32 v4, 4, v1")
    a("v_add_u32 v5, s10, v4")
    a("v_min_u32 v5, L_code_end-L_code_start-16, v5")
    a("global_load_dwordx4 v[8:11], v5, s[62:63]")
    a(f"s_lshl_b32 s10, s{S_H}, 13")
    a(f"s_add_u32 s10, s10, {WS_QPG2 if cfg.e1local else WS_QPG}")
    a("v_add_u32 v6, s10, v4")
    a(f"v_subrev_u32 v27, {WS_QPG2 - WS_QPG}, v6")
    a("v_mov_b32 v26, v6")
    a("s_waitcnt lgkmcnt(0)")
    srd(SRD_A, S_WUK, 4 << 20)
    srd(SRD_WS, S_WS, WS_SIZE)
    a(f"s_load_dword s44, s[{S_WS}:{S_WS + 1}], {WS_EPOCH}")
    a("s_mov_b32 s51, 4096")

    def qpg_load(k):
        so = "0" if k < 4 else "s51"
        a(f"buffer_load_dwordx4 {vr(64 + 4 * k, 4)}, v6, {WS}, {so} offen offset:{1024 * (k % 4)} sc1")

    if cfg.pretouch:
        a("s_lshl_b32 s10, s12, 11")
        a(f"buffer_load_dwordx4 v[64:67], v6, {WS}, s10 offen sc1")
        a(f"buffer_load_dwordx4 v[68:71], v6, {WS}, s10 offen offset:1024 sc1")
    def uk_dma():
        for k in range(8):
            a(f"s_add_u32 m0, s11, {1024 * k}")
            a(f"v_xor_b32 v{28 + k % 2}, {(k % 4) * 64}, v7")
            a(f"buffer_load_dwordx4 v{28 + k % 2}, {RA}, s57 offen nt lds")
            if k < 7:
                a("s_add_u32 s57, s57, 32768")

    if not cfg.uk_late:
        uk_dma()
    a(f"s_add_u32 s50, s12, s{S_J}")
    a("s_and_b32 s50, s50, 3")
    a(f"s_lshl_b32 s10, s{S_A}, 10")
    a("s_lshl_b32 s56, s50, 8")
    a("s_add_u32 s10, s10, s56")
    a(f"s_add_u32 s10, s10, {WS_AO}")
    a("v_lshlrev_b32 v31, 17, v3")
    a("v_lshl_add_u32 v31, v2, 4, v31")
    a("v_add_u32 v31, s10, v31")
    for k in range(4):
        a(f"v_mov_b32 v{12 + k}, -1")
    a(f"buffer_store_dwordx4 v[12:15], v31, {WS}, 0 offen sc1")
    a("s_cmp_eq_u32 s12, 0")
    a("s_cbranch_scc0 L_Ahi_noh")
    a(f"s_lshl_b32 s10, s{S_A}, 7")
    a(f"s_add_u32 s10, s10, {WS_H}")
    a("v_add_u32 v5, s10, v4")
    a("s_mov_b64 exec, 0xff")
    a(f"buffer_store_dwordx4 v[12:15], v5, {WS}, 0 offen sc1")
    a("s_mov_b64 exec, -1")
    a.label("L_Ahi_noh")
    a(f"s_lshl_b32 s10, s{S_H}, 11")
    a("s_lshl_b32 s56, s8, 2")
    a("s_add_u32 s10, s10, s56")
    a(f"s_add_u32 s10, s10, {WS_QL}")
    a("v_and_b32 v16, 3, v2")
    a("v_lshlrev_b32 v17, 16, v16")
    a("v_lshrrev_b32 v18, 2, v2")
    a("v_lshl_add_u32 v17, v18, 6, v17")
    a("v_lshl_add_u32 v17, v3, 4, v17")
    a("v_add_u32 v17, s10, v17")
    a("v_cmp_eq_u32 s[58:59], 1, v18")
    srd(SRD_B, S_WO, 4 << 20)
    a(f"s_lshl_b32 s10, s{S_H}, 17")
    a("s_lshl_b32 s56, s50, 8")
    a("s_add_u32 s10, s10, s56")
    a("v_lshlrev_b32 v19, 13, v3")
    a("v_lshl_add_u32 v19, v2, 4, v19")
    a("v_add_u32 v19, s10, v19")
    a("s_waitcnt lgkmcnt(0)")
    tags()
    a("v_mov_b32 v22, s48")
    a("v_mov_b32 v23, s49")
    if cfg.ts == 2:
        a("s_waitcnt vmcnt(11)")
        TS(3, 2)
        a("s_waitcnt vmcnt(9)")
        TS(4, 2)
        a("s_waitcnt vmcnt(1)")
        TS(5, 2)
    a("s_barrier")
    if cfg.uk_late:
        uk_dma()
    a("s_waitcnt vmcnt(0)")
    TS(1)
    for t in range(4):
        a(f"v_xor_b32 v28, {t * 64}, v30")
        for ct in range(2):
            a(f"ds_read_b128 {vr(32 + 16 * ct + 4 * t, 4)}, v28 offset:{4096 * ct}")
    if cfg.e1lds:
        a("s_lshl_b32 s10, s12, 11")
        a("s_lshl_b32 s11, s12, 10")
        a("v_add_u32 v5, 8192, v4")
        a("v_add_u32 v29, s11, v5")
        a.label("L_Ahi_poll")
        a(f"buffer_load_dwordx4 v[64:67], v6, {WS}, s10 offen sc1")
        a(f"buffer_load_dwordx4 v[68:71], v6, {WS}, s10 offen offset:1024 sc1")
        a("s_waitcnt vmcnt(1)")
        a("v_cmp_ne_u64 s[60:61], s[48:49], v[64:65]")
        a("s_waitcnt vmcnt(0)")
        a("v_cmp_ne_u64 vcc, s[48:49], v[70:71]")
        a("s_or_b64 s[60:61], s[60:61], vcc")
        a("s_cbranch_scc0 L_Ahi_got")
        if cfg.e1local:
            a("s_and_b32 s56, s13, 7")
            a("s_cmp_eq_u32 s56, 1")
            a("s_cselect_b64 vcc, -1, 0")
            a("v_cndmask_b32 v6, v26, v27, vcc")
        a("s_sub_u32 s13, s13, 1")
        a("s_cbranch_scc0 L_Ahi_poll")
        a.label("L_Ahi_got")
        a("ds_write_b128 v29, v[66:69]")
        a("s_waitcnt lgkmcnt(0)")
        a("s_barrier")
        for t in range(4):
            a(f"ds_read_b128 {vr(72 + 4 * t, 4)}, v5 offset:{1024 * t}")
        TS(2)
        for t in range(4):
            a(f"s_waitcnt lgkmcnt({3 - t})")
            for ct in range(2):
                mfma16(96 + 4 * ct, 32 + 16 * ct + 4 * t, 72 + 4 * t, None if t == 0 else 96 + 4 * ct)
    else:
        a.label("L_Ahi_poll")
        for k in range(8):
            qpg_load(k)
        a("s_mov_b64 s[60:61], 0")
        for k in range(8):
            a(f"s_waitcnt vmcnt({7 - k})")
            tr = 64 + 4 * k + (0 if k % 2 == 0 else 2)
            a(f"v_cmp_ne_u64 vcc, s[48:49], {vr(tr, 2)}")
            a("s_or_b64 s[60:61], s[60:61], vcc")
        a("s_cmp_eq_u64 s[60:61], 0")
        a("s_cbranch_scc1 L_Ahi_got")
        if cfg.e1local:
            a("s_and_b32 s10, s13, 7")
            a("s_cmp_eq_u32 s10, 1")
            a("s_cselect_b64 vcc, -1, 0")
            a("v_cndmask_b32 v6, v26, v27, vcc")
        a("s_sub_u32 s13, s13, 1")
        a("s_cbranch_scc0 L_Ahi_poll")
        a.label("L_Ahi_got")
        a("s_waitcnt lgkmcnt(0)")
        TS(2)
        for t in range(4):
            for ct in range(2):
                mfma16(96 + 4 * ct, 32 + 16 * ct + 4 * t, 66 + 8 * t, None if t == 0 else 96 + 4 * ct)
    dpp_ror_reduce(range(96, 104), (4, 8))
    for k in range(4):
        a(f"v_cndmask_b32 v{24 + k}, v{96 + k}, v{100 + k}, s[58:59]")
    sc = f32(128 ** -0.5 * math.log2(math.e))
    for k in range(4):
        a(f"v_mul_f32 v{24 + k}, {hex(sc)}, v{24 + k}")
    a("v_cvt_pk_bf16_f32 v20, v24, v25")
    a("v_cvt_pk_bf16_f32 v21, v26, v27")
    a("s_mov_b32 exec_lo, 0x00ff00ff")
    a("s_mov_b32 exec_hi, 0x00ff00ff")
    a(f"buffer_store_dwordx4 v[20:23], v17, {WS}, 0 offen sc1")
    a("s_mov_b64 exec, -1")
    a("s_barrier")
    for t in range(4):
        a(f"s_add_u32 s56, s{S_J}, {t}")
        a("s_and_b32 s56, s56, 3")
        a(f"s_lshl_b32 s{52 + t}, s56, 6")
        a("s_lshl_b32 s56, s56, 15")
        for hf in range(2):
            if hf:
                a("s_add_u32 s56, s56, 4096")
            for q in range(4):
                jj = hf * 4 + q
                if cfg.wo_depth and cfg.wo_depth <= 8 * t + jj < cfg.wo_n:
                    a(f"s_waitcnt vmcnt({cfg.wo_depth - 1})")
                a(f"buffer_load_dwordx4 {vr(128 + 32 * t + 4 * jj, 4)}, v19, {RB}, s56 offen offset:{1024 * q}{' nt' if cfg.nt_wo else ''}")
    for k in range(4):
        a(f"s_waitcnt vmcnt({8 * (3 - k)})")
        perm_set(128 + 32 * k, 96 + 32 * k)

    a.label("L_A_x")
    TS(3)
    T, AF, MK, D, STR = 32, 48, 64, 68, 72
    CL, CX = 0, 4096
    a(f"s_lshl_b32 s10, s{S_A}, 15")
    a(f"s_lshl_b32 s56, s{S_W}, 12")
    a("s_add_u32 s10, s10, s56")
    a(f"s_add_u32 s10, s10, {WS_OP}")
    a("v_lshlrev_b32 v5, 4, v1")
    a("v_add_u32 v5, s10, v5")
    a(f"s_lshr_b32 s10, s{S_W}, 1")
    a("s_lshl_b32 s10, s10, 14")
    a(f"s_lshl_b32 s56, s{S_H}, 4")
    a("s_add_u32 s10, s10, s56")
    a(f"s_add_u32 s10, s10, {WS_ST}")
    a("v_and_b32 v4, 31, v1")
    a("v_lshlrev_b32 v4, 9, v4")
    a("v_add_u32 v4, s10, v4")
    sel_masks(MK, 8)
    a(f"s_and_b32 s10, s{S_W}, 1")
    a("s_lshl_b32 s10, s10, 6")
    a("v_lshlrev_b32 v6, 2, v3")
    a("v_add_u32 v6, s10, v6")
    a(f"s_mul_i32 s10, s{S_W}, 272")
    a("v_lshlrev_b32 v8, 4, v2")
    a("v_lshl_add_u32 v8, v3, 3, v8")
    a("v_add_u32 v8, s10, v8")
    a("v_lshrrev_b32 v9, 2, v2")
    a("v_and_b32 v10, 1, v2")
    a("v_lshl_add_u32 v9, v9, 1, v10")
    a("v_mul_u32_u24 v9, 272, v9")
    a("v_lshl_add_u32 v9, v3, 4, v9")
    a(f"s_lshl_b32 s56, s{S_W}, 6")
    a("v_add_u32 v9, s56, v9")
    a("v_mul_u32_u24 v10, 1088, v3")
    a("v_lshl_add_u32 v10, v2, 4, v10")
    a(f"s_add_u32 s10, s10, {CX}")
    a("v_add_u32 v10, s10, v10")
    a("v_mul_u32_u24 v11, 272, v2")
    a("v_lshl_add_u32 v11, v3, 4, v11")
    a(f"v_add_u32 v11, {CX}, v11")
    a(f"s_lshl_b32 s10, s{S_J}, 14")
    a(f"s_lshl_b32 s56, s{S_W}, 11")
    a("s_add_u32 s10, s10, s56")
    a(f"s_add_u32 s10, s10, {WS_FL}")
    a("v_lshlrev_b32 v7, 7, v2")
    a("v_add_u32 v7, s10, v7")
    canary(4, STR, True)
    mpoll_tag(4, STR)
    TS(4)

    def op_loads():
        for i in range(4):
            a(f"buffer_load_dwordx4 {vr(T + 4 * i, 4)}, v5, {WS}, 0 offen offset:{1024 * i} sc1")

    if not cfg.fl:
        op_loads()
    a(f"v_mov_b32 v12, v{STR}")
    dpp_ror_reduce([12], (1, 2, 4, 8), "v_max_f32")
    swap_reduce(12, 13, 16, "v_max_f32")
    a(f"v_sub_f32 v12, v{STR}, v12")
    a("v_exp_f32 v12, v12")
    a("v_cvt_pk_bf16_f32 v12, v12, v12")
    for i in range(4):
        a(f"ds_bpermute_b32 v{16 + i}, v6, v12 offset:{16 * i}")
    a("v_and_b32 v13, 0xffff0000, v12")
    a(f"v_mul_f32 v13, v13, v{STR + 1}")
    dpp_ror_reduce([13], (1, 2, 4, 8))
    swap_reduce(13, 14, 16)
    a("v_rcp_f32 v13, v13")
    for i in range(4):
        a(f"s_waitcnt lgkmcnt({3 - i})")
        for p in range(4):
            a(f"v_and_b32 v{AF + 4 * i + p}, v{16 + i}, v{MK + p}")
    if cfg.fl:
        mpoll_tag(7, STR, "0xffff")
        op_loads()
    if cfg.ts:
        a("s_waitcnt vmcnt(0)")
    TS(5)
    for i in range(4):
        a(f"s_waitcnt vmcnt({3 - i})")
        mfma16(D, AF + 4 * i, T + 4 * i, None if i == 0 else D)
    for k in range(4):
        a(f"v_mul_f32 v{D + k}, v{D + k}, v13")
    a(f"v_cvt_pk_bf16_f32 v14, v{D}, v{D + 1}")
    a(f"v_cvt_pk_bf16_f32 v15, v{D + 2}, v{D + 3}")
    a("s_mov_b32 exec_hi, 0")
    a("ds_write_b64 v8, v[14:15]")
    a("s_mov_b64 exec, -1")
    a("s_waitcnt lgkmcnt(0)")
    a("s_barrier")
    a(f"s_cmp_ge_u32 s{S_W}, 4")
    a("s_cbranch_scc1 L_A_x3")
    a("ds_read_b128 v[16:19], v9")
    a("s_waitcnt lgkmcnt(0)")
    for c in range(8):
        mfma16(96 + 4 * c, 16, 160 + 4 * c, None)
    for c in range(8):
        a(f"v_add_f32 v{96 + 4 * c}, v{96 + 4 * c}, v{97 + 4 * c}")
    for p in range(4):
        a(f"v_cvt_pk_bf16_f32 v{20 + p}, v{96 + 8 * p}, v{100 + 8 * p}")
    a("ds_write_b128 v10, v[20:23]")
    a("s_waitcnt lgkmcnt(0)")
    a("s_barrier")
    TS(6)
    a(f"s_cmp_eq_u32 s{S_W}, 0")
    END_IF("scc0", 7)
    a("s_branch L_A_fin")
    a.label("L_A_x3")
    for t in range(4):
        a(f"v_add_u32 v{24 + t}, s{52 + t}, v11")
    a("s_barrier")
    for t in range(4):
        a(f"ds_read_b128 {vr(32 + 4 * t, 4)}, v{24 + t}")
    for t in range(4):
        a(f"s_waitcnt lgkmcnt({3 - t})")
        for c in range(8):
            mfma16(224 + 4 * c, 32 + 4 * t, 96 + 32 * t + 4 * c, None if t == 0 else 224 + 4 * c)
    for c in range(8):
        x = 224 + 4 * c
        a(f"v_add_f32 v{x}, v{x}, v{x + 1}")
        a(f"v_add_f32 v{x + 2}, v{x + 2}, v{x + 3}")
        a(f"v_add_f32 v{x}, v{x}, v{x + 2}")
    for p in range(4):
        a(f"v_cvt_pk_bf16_f32 v{20 + p}, v{224 + 8 * p}, v{228 + 8 * p}")
    a(f"buffer_store_dwordx4 v[20:23], v31, {WS}, 0 offen sc1")
    TS(6)
    END(7)

    a.label("L_A_fin")
    a(f"s_lshl_b32 s10, s{S_J}, 10")
    a(f"s_lshl_b32 s56, s{S_H}, 5")
    a("s_add_u32 s10, s10, s56")
    a("v_lshrrev_b32 v4, 1, v2")
    a("v_lshl_add_u32 v4, v3, 3, v4")
    a("v_and_b32 v5, 1, v2")
    a("v_lshlrev_b32 v5, 4, v5")
    a("v_lshl_add_u32 v6, v3, 3, v5")
    a("v_add_u32 v6, s10, v6")
    a(f"s_add_u32 s11, s10, {WS_FP}")
    a("v_lshl_add_u32 v8, v4, 12, v5")
    a("v_add_u32 v8, s11, v8")
    a(f"v_add_u32 v9, {64 * 4096}, v8")
    a("s_lshl_b32 s10, s10, 2")
    a(f"s_add_u32 s10, s10, {WS_H}")
    a("v_add_u32 v10, s10, v5")
    a(f"v_cmp_eq_u32 vcc, {NSLICE - 64}, v4")
    a("v_cndmask_b32 v9, v9, v10, vcc")
    a(f"v_cmp_ge_u32 s[56:57], {NSLICE - 64}, v4")
    for k in range(4):
        a(f"v_mov_b32 v{40 + k}, 0")
        a(f"v_and_b32 v{16 + k}, 0x3f803f80, v{MK + k}")
    a(f"s_mov_b32 s11, {32 * 4096}")
    srd(SRD_A, S_OUT, 4096)
    canary(8, 32, False)
    mpoll_data([(32, f"buffer_load_dwordx4 v[32:35], v8, {WS}, 0 offen sc1"),
                (36, f"buffer_load_dwordx4 v[36:39], v8, {WS}, s11 offen sc1"),
                (40, f"buffer_load_dwordx4 v[40:43], v9, {WS}, 0 offen sc1")], 24, 7, ["-1", "-1", "s[56:57]"])
    for i in range(3):
        mfma16(D, 16, 32 + 4 * i, None if i == 0 else D)
    dpp_ror_reduce(range(D, D + 4), (2, 4, 8))
    a(f"v_cvt_pk_bf16_f32 v14, v{D}, v{D + 1}")
    a(f"v_cvt_pk_bf16_f32 v15, v{D + 2}, v{D + 3}")
    a("s_mov_b64 exec, 0x00030003")
    a(f"buffer_store_dwordx2 v[14:15], v6, {RA}, 0 offen")
    a(f"s_cmp_eq_u32 s{S_A}, 0")
    a("s_cbranch_scc0 L_A_done")
    a("s_mov_b64 exec, 1")
    a("v_mov_b32 v9, s44")
    a("v_mov_b32 v10, 0")
    a(f"buffer_store_dword v9, v10, {WS}, 0 offen offset:{WS_EPOCH} sc1")
    a.label("L_A_done")
    if cfg.dbg >= 2:
        a.label("L_dbg_spin")
        a(f"s_memrealtime s[{S_TS + 2}:{S_TS + 3}]")
        a("s_waitcnt lgkmcnt(0)")
        a(f"s_sub_u32 s10, s{S_TS + 2}, s{S_TS}")
        a(f"s_cmp_lt_u32 s10, {cfg.dbg * 100}")
        a("s_cbranch_scc1 L_dbg_spin")
    if cfg.dbg:
        a(f"s_memrealtime s[{S_TS + 2}:{S_TS + 3}]")
        a("s_waitcnt lgkmcnt(0)")
        a("s_mov_b64 exec, 1")
        a(f"v_mov_b32 v12, s{S_TS}")
        a(f"v_mov_b32 v13, s{S_TS + 2}")
        a(f"s_lshl_b32 s10, s{S_A}, 3")
        a(f"s_add_u32 s10, s10, {WS_DBG}")
        a("v_mov_b32 v10, s10")
        a(f"buffer_store_dwordx2 v[12:13], v10, {WS}, 0 offen")
    TS(7)
    END(8)

    a.label("L_B")
    inA[0] = False
    S_BB, S_CH, S_R, S_SL = 6, 7, 9, 51
    QB = 131072
    a(f"s_and_b32 s{S_I16}, s{S_I16}, 15")
    a(f"s_lshl_b32 s{S_R}, s{S_XCD}, 4")
    a(f"s_add_u32 s{S_R}, s{S_R}, s{S_I16}")
    a(f"s_lshr_b32 s{S_BB}, s{S_R}, 5")
    a(f"s_and_b32 s{S_CH}, s{S_R}, 31")
    MXB, PB, SB, STG = QB, QB + 1024, QB + 9728, 0
    for k in range(4):
        a(f"v_mov_b32 v{26 + k}, -1")
    a(f"s_mul_i32 s{S_SL}, s{S_XCD}, 11")
    a(f"s_add_u32 s{S_SL}, s{S_SL}, s{S_I16}")
    a(f"s_cmp_lt_u32 s{S_I16}, 11")
    a(f"s_cselect_b32 s{S_SL}, s{S_SL}, 127")
    a(f"s_lshl_b32 s10, s{S_SL}, 12")
    a(f"s_lshl_b32 s11, s{S_W}, 7")
    a("s_add_u32 s10, s10, s11")
    a(f"s_add_u32 s10, s10, {WS_FP}")
    a("v_and_b32 v31, 3, v2")
    a("v_lshlrev_b32 v31, 10, v31")
    a("v_lshrrev_b32 v12, 2, v2")
    a("v_lshl_add_u32 v31, v12, 5, v31")
    a("v_lshl_add_u32 v31, v3, 3, v31")
    a("v_add_u32 v31, s10, v31")
    a("v_and_b32 v12, 31, v1")
    a("v_lshrrev_b32 v13, 5, v1")
    a(f"s_cmp_ge_u32 s{S_W}, 4")
    a("s_cbranch_scc1 L_B_pv")

    a(f"s_lshl_b32 s8, s{S_R}, 17")
    a(f"s_lshl_b32 s10, s{S_W}, 15")
    a("s_add_u32 s8, s8, s10")
    a("v_lshlrev_b32 v4, 2, v3")
    a("v_xor_b32 v4, v4, v2")
    a("v_lshlrev_b32 v4, 4, v4")
    a("v_lshl_add_u32 v4, v3, 10, v4")
    for k in range(1, 4):
        a(f"v_xor_b32 v{4 + k}, {G(k) * 16}, v4")
    a("v_lshrrev_b32 v8, 2, v2")
    a("v_lshlrev_b32 v8, 1, v8")
    a("v_mov_b32 v9, 0x78")
    a("v_lshrrev_b32 v8, v8, v9")
    a("v_and_b32 v8, 3, v8")
    a("v_and_b32 v9, 3, v2")
    a("v_lshl_add_u32 v8, v9, 2, v8")
    a("v_xor_b32 v8, v8, v13")
    a("v_lshlrev_b32 v8, 4, v8")
    a("v_lshl_add_u32 v8, v12, 8, v8")
    a("v_add_u32 v8, s10, v8")
    for tt in range(8):
        a(f"v_xor_b32 v{48 + tt}, {tt * 32}, v8")
    a("s_waitcnt lgkmcnt(0)")
    a(f"s_load_dword s44, s[{S_WS}:{S_WS + 1}], {WS_EPOCH}")
    srd(SRD_A, S_CKV, 16 << 20)
    srd(SRD_WS, S_WS, WS_SIZE)
    a(f"buffer_store_dwordx2 v[26:27], v31, {WS}, 0 offen sc1")
    if cfg.b_delay == 1:
        a("s_waitcnt lgkmcnt(0)")
    DD = cfg.dma_depth
    assert DD <= 8

    def go_store():
        a(f"s_cmp_eq_u32 s{S_W}, 3")
        a("s_cbranch_scc0 L_B_nogo")
        a(f"s_lshl_b32 s12, s{S_R}, 7")
        a(f"s_add_u32 s12, s12, {WS_GO}")
        a("v_mov_b32 v24, s12")
        a("s_mov_b64 exec, 1")
        a(f"buffer_store_dwordx4 v[26:29], v24, {WS}, 0 offen sc1")
        a("s_mov_b64 exec, -1")
        a.label("L_B_nogo")

    def afrag_reads(q):
        for tt in range(8):
            a(f"ds_read_b128 {vr(128 + 32 * q + 4 * tt, 4)}, v{48 + tt} offset:{8192 * q}")

    for i in range(32):
        q, rr = i // 8, i % 8
        if i == cfg.bs_at:
            a("s_barrier")
        if i >= DD:
            a(f"s_waitcnt vmcnt({DD - 1})")
        a(f"s_add_u32 m0, s10, {1024 * i}")
        a(f"s_add_u32 s11, s8, {rr * 4096 + q * 256}")
        a(f"buffer_load_dwordx4 v{4 + rr % 4}, {RA}, s11 offen nt lds")
        if i == 1:
            a("v_xor_b32 v8, v2, v13")
            a("v_lshlrev_b32 v8, 4, v8")
            a("v_lshl_add_u32 v8, v12, 10, v8")
            a(f"v_add_u32 v8, {QB}, v8")
            for tt in range(8):
                a(f"v_xor_b32 v{56 + tt}, {tt * 32}, v8")
            a("v_lshlrev_b32 v65, 4, v12")
            a(f"v_add_u32 v65, {MXB}, v65")
            a(f"s_lshl_b32 s12, s{S_W}, 2")
            a("v_add_u32 v64, s12, v65")
            a("v_mul_u32_u24 v66, 272, v12")
            a("v_lshl_add_u32 v66, v13, 3, v66")
            a(f"s_lshl_b32 s12, s{S_W}, 6")
            a(f"s_add_u32 s12, s12, {PB}")
            a("v_add_u32 v66, s12, v66")
            a("v_lshlrev_b32 v68, 5, v12")
            a(f"v_add_u32 v68, {SB}, v68")
            a("v_lshl_add_u32 v67, v13, 2, v68")
            a(f"s_lshl_b32 s12, s{S_W}, 3")
            a("v_add_u32 v67, s12, v67")
            a(f"s_lshl_b32 s12, s{S_R}, 9")
            a(f"s_add_u32 s12, s12, {WS_ST}")
            a("v_lshlrev_b32 v25, 4, v12")
            a("v_add_u32 v25, s12, v25")
        if i == 3 and cfg.ffnpf2:
            a("v_lshrrev_b32 v69, 1, v1")
            a("v_mul_u32_u24 v69, 2752, v69")
            a("v_and_b32 v70, 1, v1")
            a("v_lshl_add_u32 v69, v70, 6, v69")
            a(f"s_and_b32 s56, s{S_SL}, 3")
            a("s_lshl_b32 s56, s56, 2")
            a(f"s_add_u32 s56, s56, s{S_W}")
            a(f"s_mul_i32 s56, s56, {32 * 2752}")
            a(f"s_lshr_b32 s57, s{S_SL}, 2")
            a("s_lshl_b32 s57, s57, 7")
            a("s_add_u32 s56, s56, s57")
            srd(SRD_B, S_WG, 512 * 2752)
            srd(20, S_WU, 512 * 2752)
        if i == 9:
            a("s_waitcnt lgkmcnt(0)")
            tags()
            a("v_mov_b32 v28, s48")
            a("v_mov_b32 v29, s49")
        if cfg.xgate and i == cfg.go_at:
            go_store()
        if i in (16, 24):
            afrag_reads(i // 8 - 2)
        if i == cfg.b0_at:
            a("s_barrier")
    TS(1)
    if cfg.xgate and cfg.go_at == 32:
        go_store()
    a("s_waitcnt vmcnt(8)")
    afrag_reads(2)
    a("s_waitcnt lgkmcnt(0)")
    TS(2)
    a("s_barrier")
    if cfg.xgate and cfg.go_at == 33:
        go_store()
    TS(1, 3)
    if cfg.ts == 3:
        a(f"s_memtime s[{S_TS + 6}:{S_TS + 7}]")
        a("s_waitcnt lgkmcnt(0)")
    pend = []

    def lds(tag, text):
        a(text)
        pend.append(tag)

    def need_lds(*tags_):
        idxs = [pend.index(t_) for t_ in tags_ if t_ in pend]
        if not idxs:
            return
        idx = max(idxs)
        assert len(pend) - 1 - idx <= 15
        a(f"s_waitcnt lgkmcnt({len(pend) - 1 - idx})")
        del pend[:idx + 1]

    def qread(t):
        lds(("q", t), f"ds_read_b128 {vr(96 + 4 * (t % 8), 4)}, v{56 + t % 8} offset:{256 * (t // 8)}")

    QD = 6
    for t in range(QD):
        qread(t)
    for t in range(32):
        if t == cfg.q3_at:
            a("s_waitcnt vmcnt(0)")
            for tt in range(8):
                lds(("a", 24 + tt), f"ds_read_b128 {vr(224 + 4 * tt, 4)}, v{48 + tt} offset:{8192 * 3}")
            if cfg.ffnpf2:
                a(f"s_cmp_ge_u32 s{S_SL}, {NSLICE}")
                a("s_cbranch_scc1 L_B_nopf2")
                a(f"buffer_load_dword v70, v69, {RB}, s56 offen")
                a("buffer_load_dword v71, v69, s[20:23], s56 offen")
                a.label("L_B_nopf2")
        need_lds(("a", t), ("q", t))
        cin = "0" if t == 0 else "v[32:47]"
        a(f"v_mfma_f32_32x32x16_bf16 v[32:47], {vr(128 + 4 * t, 4)}, {vr(96 + 4 * (t % 8), 4)}, {cin}")
        if t + QD < 32:
            qread(t + QD)
    a("s_barrier")
    a("v_max3_f32 v22, v32, v33, v34")
    a("v_max3_f32 v23, v35, v36, v37")
    TS(2, 3)
    if cfg.ts == 3:
        a(f"s_memtime s[{S_TS + 10}:{S_TS + 11}]")
        a("s_waitcnt lgkmcnt(0)")
    for k in range(38, 46, 4):
        a(f"v_max3_f32 v22, v22, v{k}, v{k + 1}")
        a(f"v_max3_f32 v23, v23, v{k + 2}, v{k + 3}")
    a("v_max3_f32 v22, v22, v46, v47")
    a("v_max_f32 v22, v22, v23")
    swap_reduce(22, 23, 32, "v_max_f32")
    a("ds_write_b32 v64, v22")
    a("s_waitcnt lgkmcnt(0)")
    a("s_barrier")
    TS(6, 3)
    a("ds_read_b128 v[96:99], v65")
    a("s_waitcnt lgkmcnt(0)")
    a("v_max3_f32 v26, v96, v97, v98")
    a("v_max_f32 v26, v26, v99")
    for g4 in range(4):
        x = 32 + 4 * g4
        for r in range(4):
            a(f"v_sub_f32 v{x + r}, v{x + r}, v26")
        for r in range(4):
            a(f"v_exp_f32 v{x + r}, v{x + r}")
        a(f"v_cvt_pk_bf16_f32 v{8 + 2 * (g4 % 2)}, v{x}, v{x + 1}")
        a(f"v_cvt_pk_bf16_f32 v{9 + 2 * (g4 % 2)}, v{x + 2}, v{x + 3}")
        a(f"ds_write_b64 v66, {vr(8 + 2 * (g4 % 2), 2)} offset:{16 * g4}")
    a("s_waitcnt lgkmcnt(0)")
    a("s_barrier")
    TS(4)
    for k in range(8):
        a(f"v_add_f32 v{32 + k}, v{32 + k}, v{40 + k}")
    for k in range(4):
        a(f"v_add_f32 v{32 + k}, v{32 + k}, v{36 + k}")
    a("v_add_f32 v32, v32, v34")
    a("v_add_f32 v33, v33, v35")
    a("v_add_f32 v32, v32, v33")
    a("ds_write_b32 v67, v32")
    a("s_waitcnt lgkmcnt(0)")
    a("s_barrier")
    a("ds_read_b128 v[32:35], v68")
    a("ds_read_b128 v[36:39], v68 offset:16")
    a("s_waitcnt lgkmcnt(0)")
    for k in range(4):
        a(f"v_add_f32 v{32 + k}, v{32 + k}, v{36 + k}")
    a("v_add_f32 v32, v32, v34")
    a("v_add_f32 v33, v33, v35")
    a("v_add_f32 v27, v32, v33")
    if not cfg.fl:
        a("s_barrier")
    a(f"s_cmp_eq_u32 s{S_W}, 0")
    a("s_cbranch_scc0 L_B_nost")
    a("s_mov_b32 exec_hi, 0")
    a(f"buffer_store_dwordx4 v[26:29], v25, {WS}, 0 offen sc1")
    a("s_mov_b64 exec, -1")
    a.label("L_B_nost")
    if cfg.fl:
        a("s_barrier")
    a.haz_flush(3)
    a("s_branch L_B_post")

    a.label("L_B_pv")
    a(f"s_sub_u32 s12, s{S_W}, 4")
    a(f"s_lshl_b32 s11, s{S_BB}, 16")
    a("s_lshl_b32 s10, s12, 10")
    a("s_add_u32 s11, s11, s10")
    a(f"s_add_u32 s11, s11, {WS_QL}")
    a("v_lshlrev_b32 v7, 4, v1")
    a("v_add_u32 v7, s11, v7")
    a("v_add_u32 v6, 4096, v7")
    a("s_waitcnt lgkmcnt(0)")
    a(f"s_load_dword s44, s[{S_WS}:{S_WS + 1}], {WS_EPOCH}")
    srd(SRD_WS, S_WS, WS_SIZE)

    def q_load(i):
        a(f"buffer_load_dwordx4 {vr(128 + 4 * i, 4)}, v{7 - i % 2}, {WS}, {k8(i // 2)} offen sc1")

    if cfg.uk_delay:
        a("s_waitcnt lgkmcnt(0)")
    if cfg.ukpf:
        srd(SRD_B, S_WUK, 4 << 20)
        a(f"s_and_b32 s11, s{S_R}, 3")
        a("s_lshl_b32 s11, s11, 20")
        a("s_lshl_b32 s10, s12, 18")
        a("s_add_u32 s11, s11, s10")
        a(f"s_lshr_b32 s10, s{S_R}, 2")
        a("s_lshl_b32 s10, s10, 8")
        a("s_add_u32 s11, s11, s10")
        a(f"s_add_u32 s11, s11, {(8 - cfg.ukpf_n) * 32768}")
        a("v_lshlrev_b32 v8, 13, v3")
        a("v_lshl_add_u32 v8, v2, 4, v8")
        for k in range(cfg.ukpf_n):
            a(f"buffer_load_dwordx4 {vr(32 + 4 * k, 4)}, v8, {RB}, s11 offen nt")
            a("s_add_u32 s11, s11, 32768")
    if cfg.bs_at >= 0 and cfg.bs_mode == 1:
        a("s_barrier")
    if cfg.pretouch:
        a(f"s_lshl_b32 s11, s{S_I16}, 12")
        a(f"buffer_load_dwordx4 v[128:131], v7, {WS}, s11 offen sc1")
    a(f"buffer_store_dwordx2 v[26:27], v31, {WS}, 0 offen sc1")
    a("s_lshr_b32 s10, s12, 1")
    a("s_and_b32 s11, s12, 1")
    a("s_lshl_b32 s11, s11, 5")
    a("s_xor_b32 s11, s11, s10")
    a("v_lshrrev_b32 v8, 1, v1")
    a("v_xor_b32 v8, s11, v8")
    a("v_lshlrev_b32 v8, 4, v8")
    a("v_and_b32 v9, 1, v1")
    a("v_lshl_add_u32 v8, v9, 3, v8")
    a("s_lshl_b32 s10, s10, 10")
    a(f"s_add_u32 s10, s10, {QB}")
    a("v_add_u32 v8, s10, v8")
    for k in range(8):
        a(f"v_xor_b32 v{64 + k}, {k * 32}, v8")
    a("v_lshrrev_b32 v22, 2, v2")
    a("v_lshl_add_u32 v23, v13, 3, v22")
    a("v_lshlrev_b32 v23, 8, v23")
    a("v_lshl_add_u32 v23, v9, 3, v23")
    a("v_and_b32 v24, 1, v3")
    a("v_bfe_u32 v10, v1, 1, 1")
    a("v_lshl_add_u32 v24, v24, 1, v10")
    a("v_lshlrev_b32 v22, 2, v22")
    a("v_xor_b32 v24, v24, v22")
    a("v_mul_u32_u24 v22, 3, v13")
    a("v_xor_b32 v24, v24, v22")
    a("v_lshl_add_u32 v23, v24, 4, v23")
    a("s_lshl_b32 s10, s12, 13")
    a("v_add_u32 v23, s10, v23")
    a("v_xor_b32 v24, 32, v23")
    a("v_add_u32 v24, 1024, v24")
    for ct in range(4):
        for u in range(2):
            a(f"v_xor_b32 v{72 + 2 * ct + u}, {ct * 64}, v{23 + u}")
            a(f"v_add_u32 v{80 + 2 * ct + u}, 0x10000, v{72 + 2 * ct + u}")
    a("v_mul_u32_u24 v88, 272, v12")
    a("v_lshl_add_u32 v88, v13, 4, v88")
    a(f"v_add_u32 v88, {PB}, v88")
    a("s_lshl_b32 s10, s12, 14")
    a("v_mul_u32_u24 v89, 144, v12")
    a("v_lshl_add_u32 v89, v13, 3, v89")
    a("v_add_u32 v89, s10, v89")
    a("v_lshrrev_b32 v22, 3, v1")
    a("v_and_b32 v23, 7, v1")
    a("v_mul_u32_u24 v90, 144, v22")
    a("v_lshl_add_u32 v90, v23, 4, v90")
    a("v_add_u32 v90, s10, v90")
    a("s_lshl_b32 s10, s12, 15")
    a(f"s_lshl_b32 s11, s{S_R}, 8")
    a("s_add_u32 s10, s10, s11")
    a(f"s_add_u32 s10, s10, {WS_OP}")
    a("v_lshlrev_b32 v30, 17, v22")
    a("v_lshl_add_u32 v30, v23, 4, v30")
    a("v_add_u32 v30, s10, v30")
    for i in range(1, 4):
        a(f"s_mov_b32 s{52 + i}, {i << 20}")
    a("s_lshl_b32 s10, s12, 14")
    a(f"s_lshl_b32 s11, s{S_R}, 7")
    a("s_add_u32 s10, s10, s11")
    a(f"s_add_u32 s10, s10, {WS_FL}")
    a("v_mov_b32 v25, s10")
    a("s_waitcnt lgkmcnt(0)")
    tags()
    a("v_mov_b32 v28, s48")
    a("v_mov_b32 v29, s49")
    TS(1)
    if cfg.bs_at >= 0 and cfg.bs_mode == 0:
        a("s_waitcnt vmcnt(0)")
        a("s_barrier")
    if cfg.scout:
        a(f"s_lshl_b32 s11, s{S_BB}, 16")
        a("s_lshl_b32 s10, s12, 10")
        a("s_add_u32 s11, s11, s10")
        a(f"s_add_u32 s11, s11, {WS_QL + 496}")
        a("v_lshrrev_b32 v10, 1, v12")
        a("v_lshlrev_b32 v10, 12, v10")
        a("v_and_b32 v11, 1, v1")
        a("v_lshl_add_u32 v10, v11, 9, v10")
        a("v_add_u32 v10, s11, v10")
        a("s_mov_b32 s56, -1")
        a("s_mov_b32 s57, 0")
    a("s_barrier")
    if cfg.scout:
        mpoll_tag(10, 128, "s[56:57]", cfg.ssleep)
    TS(2)
    for i in range(16):
        q_load(i)
    a("s_mov_b32 s60, 0")
    for i in range(16):
        a(f"s_waitcnt vmcnt({15 - i})")
        a(f"v_cmp_ne_u64 vcc, s[48:49], {vr(130 + 4 * i, 2)}")
        a(f"ds_write_b64 v{64 + i % 8}, {vr(128 + 4 * i, 2)} offset:{2048 * i}")
        a("s_cmp_lg_u64 vcc, 0")
        a("s_addc_u32 s60, s60, s60")
    a("s_cmp_eq_u32 s60, 0")
    a("s_cbranch_scc1 L_B_gotq")
    a.label("L_B_qretry")
    if cfg.qsleep:
        a(f"s_sleep {cfg.qsleep}")
    for i in range(16):
        lab = a.newlabel("Lq")
        a(f"s_bitcmp1_b32 s60, {15 - i}")
        a(f"s_cbranch_scc0 {lab}")
        q_load(i)
        a.label(lab)
    a("s_waitcnt vmcnt(0)")
    for i in range(16):
        lab = a.newlabel("Lq")
        a(f"s_bitcmp1_b32 s60, {15 - i}")
        a(f"s_cbranch_scc0 {lab}")
        a(f"v_cmp_ne_u64 vcc, s[48:49], {vr(130 + 4 * i, 2)}")
        a(f"s_cbranch_vccnz {lab}")
        a(f"ds_write_b64 v{64 + i % 8}, {vr(128 + 4 * i, 2)} offset:{2048 * i}")
        a(f"s_bitset0_b32 s60, {15 - i}")
        a.label(lab)
    a("s_cmp_eq_u32 s60, 0")
    a("s_cbranch_scc1 L_B_gotq")
    a("s_sub_u32 s13, s13, 1")
    a("s_cbranch_scc0 L_B_qretry")
    a.label("L_B_gotq")
    a("s_waitcnt lgkmcnt(0)")
    TS(3)
    a("s_barrier")
    TS(1, 3)
    a("s_cmp_lt_u32 s12, 3")
    a("s_cbranch_scc1 L_B_trr")
    a("s_barrier")
    a.label("L_B_trr")
    for ct in range(4):
        for s in range(8):
            for u in range(2):
                base = (72 if s < 4 else 80) + 2 * ct + u
                a(f"ds_read_b64_tr_b16 {vr(128 + (ct * 8 + s) * 4 + 2 * u, 2)}, v{base} offset:{32768 * ((s // 2) % 2) + 4096 * (s % 2)}")
    a("s_cmp_lt_u32 s12, 3")
    a("s_cbranch_scc0 L_B_trd")
    a("s_barrier")
    a.label("L_B_trd")
    a("s_barrier")
    a("s_waitcnt lgkmcnt(0)")
    a("s_barrier")
    TS(4)
    for s in range(8):
        a(f"ds_read_b128 {vr(96 + 4 * s, 4)}, v88 offset:{32 * s}")
    ACC = [32, 48, 32, 48]
    ACC = [32, 48, 64 - 0, 0]
    a("v_mov_b32 v22, v89")
    a("v_mov_b32 v23, v90")
    ACC = [32, 48, 64, 80]

    def stage_w(ct, g4):
        x = ACC[ct] + 4 * g4
        d = 14 + 2 * (g4 % 4)
        a(f"v_cvt_pk_bf16_f32 v{d}, v{x}, v{x + 1}")
        a(f"v_cvt_pk_bf16_f32 v{d + 1}, v{x + 2}, v{x + 3}")
        a(f"ds_write_b64 v22, {vr(d, 2)} offset:{8192 * (ct // 2) + 64 * (ct % 2) + 16 * g4}")

    def stage_r(pair, dst):
        for i in range(4):
            a(f"ds_read_b128 {vr(dst + 4 * i, 4)}, v23 offset:{8192 * pair + 1152 * i}")

    def op_store(pair, dst, i):
        so = "0" if i == 0 else f"s{52 + i}"
        a(f"buffer_store_dwordx4 {vr(dst + 4 * i, 4)}, v30, {WS}, {so} offen offset:{128 * pair} sc1")

    for ct in range(4):
        for s in range(8):
            if ct == 0:
                a(f"s_waitcnt lgkmcnt({7 - s})")
            cin = "0" if s == 0 else vr(ACC[ct], 16)
            a(f"v_mfma_f32_32x32x16_bf16 {vr(ACC[ct], 16)}, {vr(128 + (ct * 8 + s) * 4, 4)}, {vr(96 + 4 * s, 4)}, {cin}")
            if ct >= 1 and 3 <= s <= 6:
                stage_w(ct - 1, s - 3)
            if ct == 1 and s == 0:
                a("s_barrier")
            if ct == 2 and s == 7:
                stage_r(0, 128)
            if ct == 3 and s < 2:
                a(f"s_waitcnt lgkmcnt({2 - 2 * s})")
                op_store(0, 128, 2 * s)
                op_store(0, 128, 2 * s + 1)
    for g4 in range(4):
        stage_w(3, g4)
    stage_r(1, 144)
    TS(7, 3)
    for i in range(4):
        a(f"s_waitcnt lgkmcnt({3 - i})")
        op_store(1, 144, i)
    TS(5)
    a("s_mov_b64 exec, 1")
    a("s_waitcnt vmcnt(0)")
    if cfg.fl:
        a(f"buffer_store_dwordx4 v[26:29], v25, {WS}, 0 offen sc1")
    a("s_mov_b64 exec, -1")
    a("s_barrier")
    a.label("L_B_post")
    if cfg.ts:
        TS(1)

    GW, UW, DW = 0, 16384, 32768
    GP, AB, ZB = 65536, 65536 + 4096, 65536 + 8192
    S1B, S2B = GP + 2048, GP + 2048 + 64
    a(f"s_cmp_ge_u32 s{S_SL}, {NSLICE}")
    a("s_cbranch_scc1 L_B_red")
    srd(SRD_A, S_WG, 512 * 2752)
    srd(SRD_B, S_WU, 512 * 2752)
    a("v_lshrrev_b32 v4, 1, v1")
    a("v_mul_u32_u24 v4, 2752, v4")
    a("v_and_b32 v5, 1, v1")
    a("v_lshl_add_u32 v4, v5, 4, v4")
    a(f"s_lshl_b32 s12, s{S_SL}, 1")
    a(f"s_add_u32 s12, s12, s{S_W}")
    a("s_and_b32 s12, s12, 7")
    a(f"s_mul_i32 s10, s12, {64 * 2752}")
    a(f"s_lshl_b32 s11, s{S_SL}, 5")
    a("s_add_u32 s10, s10, s11")
    a(f"s_add_u32 s11, s10, {32 * 2752}")
    a("s_lshl_b32 s12, s12, 11")
    for (R, base) in ((RA, GW), (RB, UW)):
        for k in range(2):
            a(f"s_add_u32 m0, s12, {base + 1024 * k}")
            a("s_nop 0")
            a(f"buffer_load_dwordx4 v4, {R}, s{10 + k} offen{' nt' if cfg.nt_ffn else ''} lds")
    srd(SRD_A, S_WD, 1376 * 1024)
    a("v_lshlrev_b32 v4, 4, v1")
    a(f"s_lshl_b32 s10, s{S_SL}, 14")
    a("s_add_u32 s10, s10, s12")
    a("s_add_u32 s11, s10, 1024")
    for k in range(2):
        a(f"s_add_u32 m0, s12, {DW + 1024 * k}")
        a("s_nop 0")
        a(f"buffer_load_dwordx4 v4, {RA}, s{10 + k} offen nt lds")
    a("v_mov_b32 v4, 0")
    a("v_mov_b32 v5, 0")
    a(f"v_mov_b32 v6, {ZB}")
    a("ds_write_b64 v6, v[4:5]")
    a(f"s_and_b32 s10, s{S_W}, 3")
    a("s_lshl_b32 s11, s10, 12")
    a("v_lshlrev_b32 v8, 8, v3")
    a("v_lshl_add_u32 v8, v2, 3, v8")
    a("v_add_u32 v8, s11, v8")
    a("v_lshrrev_b32 v9, 2, v2")
    a("v_lshl_add_u32 v10, v3, 2, v9")
    a("v_lshlrev_b32 v10, 10, v10")
    a("v_and_b32 v11, 3, v2")
    a("v_lshl_add_u32 v10, v11, 3, v10")
    a(f"s_lshl_b32 s11, s{S_W}, 7")
    a(f"s_add_u32 s12, s11, {DW}")
    a("v_add_u32 v10, s12, v10")
    a("v_lshlrev_b32 v12, 12, v9")
    a("v_lshrrev_b32 v13, 1, v3")
    a("v_lshl_add_u32 v12, v13, 7, v12")
    a("v_and_b32 v13, 1, v3")
    a("v_lshl_add_u32 v12, v13, 4, v12")
    a("s_lshl_b32 s12, s10, 10")
    a(f"s_add_u32 s12, s12, {WS_H}")
    a("v_add_u32 v12, s12, v12")
    a("s_lshl_b32 s12, s10, 2")
    a("v_lshlrev_b32 v13, 4, v1")
    a(f"v_add_u32 v13, {GP}, v13")
    a("v_add_u32 v14, s12, v13")
    a("v_lshlrev_b32 v15, 4, v3")
    a(f"v_add_u32 v15, {S1B}, v15")
    a("v_add_u32 v16, s12, v15")
    a("v_cmp_eq_u32 s[56:57], v9, v3")
    a(f"s_add_u32 s11, s11, {AB}")
    a("v_lshlrev_b32 v17, 1, v1")
    a("v_add_u32 v17, s11, v17")
    a("v_lshlrev_b32 v18, 5, v11")
    a("v_lshl_add_u32 v18, v3, 3, v18")
    a("v_add_u32 v18, s11, v18")
    for tau in range(4):
        a(f"v_cmp_eq_u32 vcc, {tau}, v9")
        a(f"v_cndmask_b32 v{20 + tau}, v6, v18, vcc")
    a("s_waitcnt vmcnt(0) lgkmcnt(0)")
    a("s_barrier")
    for tau in range(4):
        a(f"ds_read_b64_tr_b16 {vr(64 + 2 * tau, 2)}, v10 offset:{32 * tau}")
    for mtx in range(2):
        for t in range(4):
            for u in range(2):
                a(f"ds_read_b64_tr_b16 {vr(32 + 16 * mtx + 4 * t + 2 * u, 2)}, v8 offset:{UW * mtx + 1024 * t + 128 * u}")
    for p in range(4):
        a(f"v_mov_b32 v{72 + p}, 0x3f803f80")
    a("s_waitcnt lgkmcnt(0)")
    for t in range(4):
        for mtx in range(2):
            mfma16(76 + 4 * mtx, 72, 32 + 16 * mtx + 4 * t, None if t == 0 else 76 + 4 * mtx)
    a("ds_write_b32 v14, v76")
    a("ds_write_b32 v14, v80 offset:1024")
    a("s_waitcnt lgkmcnt(0)")
    a("s_barrier")
    a("ds_read_b128 v[76:79], v13")
    a("ds_read_b128 v[80:83], v13 offset:1024")
    a("s_waitcnt lgkmcnt(0)")
    for x, o in ((76, 24), (80, 25)):
        a(f"v_add_f32 v{x}, v{x}, v{x + 1}")
        a(f"v_add_f32 v{x + 2}, v{x + 2}, v{x + 3}")
        a(f"v_add_f32 v{o}, v{x}, v{x + 2}")
    a("s_barrier")

    TS(6)
    a("s_branch L_B_hcan")
    a.label("L_B_red")
    TS(6)
    a(f"s_cmp_lt_u32 s{S_I16}, 12")
    END_IF("scc1", 8)
    a(f"s_cmp_ge_u32 s{S_W}, 4")
    END_IF("scc1", 8)
    a(f"s_lshl_b32 s{S_R}, s{S_XCD}, 2")
    a(f"s_add_u32 s{S_R}, s{S_R}, s{S_I16}")
    a(f"s_sub_u32 s{S_R}, s{S_R}, 12")
    a(f"s_lshl_b32 s{S_R}, s{S_R}, 2")
    a(f"s_add_u32 s{S_R}, s{S_R}, s{S_W}")
    a(f"s_lshr_b32 s{S_BB}, s{S_R}, 5")
    a(f"s_and_b32 s{S_CH}, s{S_R}, 31")
    MK2, D2 = 112, 116
    sel_masks(MK2, 4)
    for k in range(4):
        a(f"v_and_b32 v{MK2 + k}, 0x3f803f80, v{MK2 + k}")
    a("v_lshrrev_b32 v4, 1, v2")
    a("v_lshl_add_u32 v4, v3, 3, v4")
    a("v_and_b32 v5, 1, v2")
    a("v_lshlrev_b32 v5, 4, v5")
    a("v_lshl_add_u32 v26, v3, 3, v5")
    a(f"s_lshl_b32 s10, s{S_R}, 5")
    a("v_and_b32 v27, 31, v26")
    a("v_add_u32 v27, s10, v27")
    a(f"global_load_dwordx2 v[28:29], v27, s[{S_X}:{S_X + 1}]")
    a(f"s_lshl_b32 s10, s{S_BB}, 17")
    a(f"s_lshl_b32 s11, s{S_CH}, 5")
    a("s_add_u32 s10, s10, s11")
    a(f"s_add_u32 s10, s10, {WS_AO}")
    a("v_lshl_add_u32 v4, v4, 10, v5")
    a("v_add_u32 v4, s10, v4")
    a(f"s_lshl_b32 s10, s{S_R}, 7")
    a(f"s_add_u32 s10, s10, {WS_H}")
    a("v_add_u32 v26, s10, v26")
    a("s_mov_b32 s10, 65536")
    a("s_mov_b32 s11, 98304")
    a("v_cmp_gt_u32 vcc, 2, v2")
    a("s_waitcnt vmcnt(0)")
    a("v_cndmask_b32 v28, 0, v28, vcc")
    a("v_cndmask_b32 v29, 0, v29, vcc")
    a("v_lshlrev_b32 v120, 16, v28")
    a("v_and_b32 v121, 0xffff0000, v28")
    a("v_lshlrev_b32 v122, 16, v29")
    a("v_and_b32 v123, 0xffff0000, v29")
    canary(4, 96, False)
    mpoll_data([(96 + 4 * i, f"buffer_load_dwordx4 {vr(96 + 4 * i, 4)}, v4, {WS}, {['0', k8(4), 's10', 's11'][i]} offen sc1") for i in range(4)], 20, 5)
    for i in range(4):
        mfma16(D2, MK2, 96 + 4 * i, 120 if i == 0 else D2)
    dpp_ror_reduce(range(D2, D2 + 4), (2, 4, 8))
    a(f"v_cvt_pk_bf16_f32 v28, v{D2}, v{D2 + 1}")
    a(f"v_cvt_pk_bf16_f32 v29, v{D2 + 2}, v{D2 + 3}")
    a("s_mov_b64 exec, 0x00030003")
    a(f"buffer_store_dwordx2 v[28:29], v26, {WS}, 0 offen sc1")
    TS(7)
    END(8)

    a.label("L_B_hcan")
    canary(12, 96, False)
    mpoll_data([(96 + 4 * t, f"buffer_load_dwordx4 {vr(96 + 4 * t, 4)}, v12, {WS}, 0 offen offset:{256 * t} sc1") for t in range(4)], 20, 5)
    TS(7)
    a(f"s_cmp_ge_u32 s{S_W}, 4")
    a("s_cbranch_scc1 L_B_stats")
    for t in range(4):
        for mtx in range(2):
            mfma16(76 + 4 * mtx, 96 + 4 * t, 32 + 16 * mtx + 4 * t, None if t == 0 else 76 + 4 * mtx)
    a("ds_write_b32 v14, v76")
    a("ds_write_b32 v14, v80 offset:1024")
    a("s_branch L_B_f1done")
    a.label("L_B_stats")
    for t in range(4):
        mfma16(76, 96 + 4 * t, 72, None if t == 0 else 76)
        mfma16(80, 96 + 4 * t, 96 + 4 * t, None if t == 0 else 80)
    a("s_mov_b64 exec, s[56:57]")
    a("ds_write_b32 v16, v76")
    a("ds_write_b32 v16, v80 offset:64")
    a("s_mov_b64 exec, -1")
    a.label("L_B_f1done")
    a("s_waitcnt lgkmcnt(0)")
    a("s_barrier")
    a("ds_read_b128 v[84:87], v15")
    a("ds_read_b128 v[88:91], v15 offset:64")
    a("ds_read_b128 v[76:79], v13")
    a("ds_read_b128 v[80:83], v13 offset:1024")
    a("s_waitcnt lgkmcnt(2)")
    for x in (84, 88):
        a(f"v_add_f32 v{x}, v{x}, v{x + 1}")
        a(f"v_add_f32 v{x + 2}, v{x + 2}, v{x + 3}")
        a(f"v_add_f32 v{x}, v{x}, v{x + 2}")
    a(f"v_mul_f32 v84, {hex(f32(1.0 / 512))}, v84")
    a(f"v_mul_f32 v88, {hex(f32(1.0 / 512))}, v88")
    a("v_fma_f32 v88, -v84, v84, v88")
    a("v_max_f32 v88, 0, v88")
    a(f"v_add_f32 v88, {hex(f32(1e-5))}, v88")
    a("v_rsq_f32 v88, v88")
    a("s_waitcnt lgkmcnt(0)")
    for x in (76, 80):
        a(f"v_add_f32 v{x}, v{x}, v{x + 1}")
        a(f"v_add_f32 v{x + 2}, v{x + 2}, v{x + 3}")
        a(f"v_add_f32 v{x}, v{x}, v{x + 2}")
    a("v_fma_f32 v76, -v84, v24, v76")
    a("v_fma_f32 v80, -v84, v25, v80")
    a("v_mul_f32 v76, v76, v88")
    a("v_mul_f32 v80, v80, v88")
    a(f"v_mul_f32 v77, {hex(f32(-math.log2(math.e)))}, v76")
    a("v_exp_f32 v77, v77")
    a("v_mul_f32 v76, v76, v80")
    a("v_add_f32 v77, 1.0, v77")
    a("v_rcp_f32 v77, v77")
    a("v_mul_f32 v76, v76, v77")
    a("v_cvt_pk_bf16_f32 v76, v76, v76")
    a("ds_write_b16 v17, v76")
    a("s_waitcnt lgkmcnt(0)")
    for tau in range(4):
        a(f"ds_read_b64 {vr(84 + 2 * tau, 2)}, v{20 + tau}")
    for tau in range(4):
        a(f"s_waitcnt lgkmcnt({3 - tau})")
        cin = "0" if tau == 0 else "v[76:79]"
        a(f"v_mfma_f32_16x16x16_bf16 v[76:79], {vr(64 + 2 * tau, 2)}, {vr(84 + 2 * tau, 2)}, {cin}")
    a("v_cvt_pk_bf16_f32 v80, v76, v77")
    a("v_cvt_pk_bf16_f32 v81, v78, v79")
    a(f"buffer_store_dwordx2 v[80:81], v31, {WS}, 0 offen sc1")
    TS(2)
    if cfg.ts:
        END(8)
    a.label("L_end")
    a("s_endpgm")
    a.label("L_code_end")

    body = a.render()
    hdr = open("sequential_preLN__compressed_kv_cla__swiglu_ffn__decode.s.ref").read().split("\n")
    head = []
    for line in hdr:
        if line.startswith("; @launch"):
            head.append("; @launch grid=(256,1,1) block=(512,1,1) lds=163840")
            break
        head.append(line)
    text = "\n".join(head) + f"""
.amdgcn_target "amdgcn-amd-amdhsa--gfx950"
.text
.globl {KNAME}
.p2align 8
.type {KNAME},@function
{KNAME}:
{body}.section .rodata,"a"
.p2align 6
.amdhsa_kernel {KNAME}
  .amdhsa_next_free_vgpr 256
  .amdhsa_next_free_sgpr 102
  .amdhsa_accum_offset 256
  .amdhsa_group_segment_fixed_size 0
  .amdhsa_kernarg_size 104
  .amdhsa_user_sgpr_count 2
  .amdhsa_user_sgpr_kernarg_segment_ptr 1
  .amdhsa_system_sgpr_workgroup_id_x 1
.end_amdhsa_kernel
"""
    return text


if __name__ == "__main__":
    cfg = Cfg()
    out = "sequential_preLN__compressed_kv_cla__swiglu_ffn__decode.s"
    for arg in sys.argv[1:]:
        if arg.startswith("out="):
            out = arg[4:]
        else:
            k, v = arg.split("=")
            assert hasattr(cfg, k), k
            setattr(cfg, k, int(v))
    open(out, "w").write(gen(cfg))
    print("wrote", out)
```

```python
import sys, math, struct
sys.path.insert(0, "dev")
from asmgen import Asm, vr, sr

KNAME = "sequential_preLN__compressed_kv_cla__swiglu_ffn__decode_kernel"

WS_EPOCH = 0x0
WS_H = 0x004000
WS_GO = 0x008000
WS_QPG = 0x010000
WS_FL = 0x0E0000
WS_QPG2 = 0x600000
WS_QL = 0x080000
WS_ST = 0x0C0000
WS_AO = 0x100000
WS_FP = 0x180000
WS_OP = 0x200000
WS_DBG = 0x800000
WS_SIZE = 0x1000000

NSLICE = 86
SPIN = 1 << 19


def f32(x):
    return struct.unpack("<I", struct.pack("<f", x))[0]


def G(x):
    return [0, 2, 3, 1][x]


def FSW(k):
    return ((k % 4) << 2) | G((k // 4) % 4)


class Cfg:
    ts = 0
    dbg = 0
    prio_pv = 1
    b_delay = 1
    qsleep = 1
    uv_early = 0
    pretouch = 1
    clr_pos = 0
    csleep = 1
    nt_wo = 1
    nt_ffn = 1
    xgate = 3
    e1full = 1
    dma_depth = 8
    dma_n = 16
    ukpf = 0
    ffn_early = 0
    e1local = 1
    wo_depth = 0
    wo_n = 32
    ckpf = 0
    ukpf_n = 8
    q3_at = 20
    b0_at = 31
    ffnpf = 0
    mp = 0
    fl = 0
    scout = 0
    ssleep = 4
    go_at = 32
    bs_at = -1
    pperm = 1
    e1lds = 1
    uk_delay = 0
    bs_mode = 0
    uk_late = 0
    ffnpf2 = 0
    x3i = 1
    out_sc1 = 0
    tlb = 0


def gen(cfg):
    a = Asm()
    S_X, S_CKV, S_WQ, S_WUK, S_WUV, S_WO, S_WG, S_WU, S_WD, S_OUT, S_WS = 16, 18, 20, 22, 24, 26, 30, 32, 34, 36, 40
    S_W, S_XCD, S_I16 = 3, 4, 5
    S_K8 = 64
    SRD_WS, SRD_A, SRD_B = 72, 76, 80
    S_TS = 84
    WS = f"s[{SRD_WS}:{SRD_WS + 3}]"
    RA = f"s[{SRD_A}:{SRD_A + 3}]"
    RB = f"s[{SRD_B}:{SRD_B + 3}]"
    DPPM = "row_mask:0xf bank_mask:0xf"
    inA = [True]

    def TS(idx, lvl=1):
        if not cfg.ts:
            return
        if cfg.ts == 2 and lvl == 1 and idx in (3, 4, 5) and inA[0]:
            return
        if lvl == 2 and cfg.ts != 2:
            return
        if lvl == 3 and cfg.ts != 3:
            return
        if cfg.ts == 3 and lvl == 1 and idx in (1, 2, 6, 7) and not inA[0]:
            return
        a(f"s_memrealtime s[{S_TS + 2 * idx}:{S_TS + 2 * idx + 1}]")
        a("s_waitcnt lgkmcnt(0)")

    def END(n=8):
        if cfg.ts:
            a("s_mov_b64 exec, 1")
            a(f"s_lshl_b32 s8, s2, 3")
            a(f"s_add_u32 s8, s8, s{S_W}")
            a(f"s_lshl_b32 s8, s8, 6")
            a(f"s_add_u32 s8, s8, {WS_DBG}")
            a("v_mov_b32 v2, s8")
            for i in range(n):
                a(f"v_mov_b32 v3, s{S_TS + 2 * i}")
                a(f"buffer_store_dword v3, v2, {WS}, 0 offen offset:{4 * i}")
            a("s_waitcnt vmcnt(0)")
        a("s_endpgm")

    def END_IF(cond_branch_true, n=8):
        if cfg.ts:
            lab = a.newlabel("Lcont")
            a(f"s_cbranch_{'scc0' if cond_branch_true == 'scc1' else 'scc1'} {lab}")
            END(n)
            a.label(lab)
        else:
            a(f"s_cbranch_{cond_branch_true} L_end")

    def srd(dst, ptr, nbytes):
        a(f"s_mov_b32 s{dst}, s{ptr}")
        a(f"s_mov_b32 s{dst + 1}, s{ptr + 1}")
        a(f"s_mov_b32 s{dst + 2}, {nbytes}")
        a(f"s_mov_b32 s{dst + 3}, 0x20000")

    def k8(i):
        return "0" if i == 0 else f"s{S_K8 + i}"

    def tags():
        a("s_add_u32 s44, s44, 1")
        a("s_mul_i32 s48, s44, 0x9E3779B1")
        a("s_xor_b32 s48, s48, 0x85EBCA6B")
        a("s_mul_i32 s49, s44, 0xC2B2AE35")
        a("s_add_u32 s49, s49, 0x27D4EB2F")

    def perm_set(src, dst):
        for c in range(8):
            dw, e = c // 2, c % 2
            sel = "s14" if e == 0 else "s15"
            for p in range(4):
                a(f"v_perm_b32 v{dst + 4 * c + p}, v{src + 4 * (2 * p + 1) + dw}, v{src + 4 * (2 * p) + dw}, {sel}")

    def swap_reduce(reg, tmp, which, op="v_add_f32"):
        a(f"v_mov_b32 v{tmp}, v{reg}")
        a(f"v_permlane{which}_swap_b32 v{reg}, v{tmp}")
        a(f"{op} v{reg}, v{reg}, v{tmp}")

    def dpp_ror_reduce(regs, rors, op="v_add_f32"):
        for r in rors:
            for x in regs:
                a(f"{op}_dpp v{x}, v{x}, v{x} row_ror:{r} {DPPM}")

    def mfma16(d, A, B, c):
        cin = "0" if c is None else vr(c, 4)
        a(f"v_mfma_f32_16x16x32_bf16 {vr(d, 4)}, {vr(A, 4)}, {vr(B, 4)}, {cin}")

    def valid_check(regs, tmp, fail_label):
        regs = list(regs)
        a(f"v_max3_u32 v{tmp}, v{regs[0]}, v{regs[1]}, v{regs[2]}")
        rest = regs[3:]
        while len(rest) >= 2:
            a(f"v_max3_u32 v{tmp}, v{tmp}, v{rest[0]}, v{rest[1]}")
            rest = rest[2:]
        if rest:
            a(f"v_max_u32 v{tmp}, v{tmp}, v{rest[0]}")
        a(f"v_cmp_eq_u32 vcc, -1, v{tmp}")
        ok = a.newlabel("Lok")
        a(f"s_cbranch_vccz {ok}")
        a("s_sub_u32 s13, s13, 1")
        a(f"s_cbranch_scc0 {fail_label}")
        a("s_mov_b32 s13, 0")
        a.label(ok)

    def canary(addr, dst, tagged, so="0", lanes=1):
        lab = a.newlabel("Lcan")
        done = a.newlabel("Lcand")
        a(f"s_mov_b64 exec, {hex(lanes)}")
        a.label(lab)
        a(f"buffer_load_dwordx4 {vr(dst, 4)}, v{addr}, {WS}, {so} offen sc1")
        a("s_waitcnt vmcnt(0)")
        if tagged:
            a(f"v_cmp_ne_u64 vcc, s[48:49], {vr(dst + 2, 2)}")
        else:
            a(f"v_cmp_eq_u32 vcc, -1, v{dst}")
        a(f"s_cbranch_vccz {done}")
        if cfg.csleep:
            a(f"s_sleep {cfg.csleep}")
        a("s_sub_u32 s13, s13, 1")
        a(f"s_cbranch_scc0 {lab}")
        a("s_mov_b32 s13, 0")
        a.label(done)
        a("s_mov_b64 exec, -1")

    def mpoll_tag(addr, dst, init="-1", sleep=0):
        lab = a.newlabel("Lmp")
        done = a.newlabel("Lmpd")
        a(f"s_mov_b64 exec, {init}")
        a.label(lab)
        a(f"buffer_load_dwordx4 {vr(dst, 4)}, v{addr}, {WS}, 0 offen sc1")
        a("s_waitcnt vmcnt(0)")
        a(f"v_cmp_ne_u64 vcc, s[48:49], {vr(dst + 2, 2)}")
        a("s_and_b64 exec, exec, vcc")
        a(f"s_cbranch_scc0 {done}")
        if sleep:
            a(f"s_sleep {sleep}")
        a("s_sub_u32 s13, s13, 1")
        a(f"s_cbranch_scc0 {lab}")
        a("s_mov_b32 s13, 0")
        a.label(done)
        a("s_mov_b64 exec, -1")

    def mpoll_data(loads, M, tmp, inits=None):
        n = len(loads)
        if not cfg.mp:
            lab = a.newlabel("Lsp")
            a.label(lab)
            regs = []
            for i, (dst, text) in enumerate(loads):
                if inits and inits[i] != "-1":
                    a(f"s_mov_b64 exec, {inits[i]}")
                a(text)
                if inits and inits[i] != "-1":
                    a("s_mov_b64 exec, -1")
                regs += list(range(dst, dst + 4))
            a("s_waitcnt vmcnt(0)")
            valid_check(regs, tmp, lab)
            return
        lab = a.newlabel("Lmd")
        done = a.newlabel("Lmdd")
        ANY = M + 2 * n
        for i in range(n):
            a(f"s_mov_b64 s[{M + 2 * i}:{M + 2 * i + 1}], {inits[i] if inits else '-1'}")
        a.label(lab)
        for i, (dst, text) in enumerate(loads):
            sk = a.newlabel("Lsk")
            a(f"s_mov_b64 exec, s[{M + 2 * i}:{M + 2 * i + 1}]")
            a(f"s_cbranch_execz {sk}")
            a(text)
            a.label(sk)
        a(f"s_mov_b64 s[{ANY}:{ANY + 1}], 0")
        a("s_waitcnt vmcnt(0)")
        for i, (dst, text) in enumerate(loads):
            a(f"s_mov_b64 exec, s[{M + 2 * i}:{M + 2 * i + 1}]")
            a(f"v_max3_u32 v{tmp}, v{dst}, v{dst + 1}, v{dst + 2}")
            a(f"v_max_u32 v{tmp}, v{tmp}, v{dst + 3}")
            a(f"v_cmp_eq_u32 vcc, -1, v{tmp}")
            a(f"s_and_b64 s[{M + 2 * i}:{M + 2 * i + 1}], s[{M + 2 * i}:{M + 2 * i + 1}], vcc")
            a(f"s_or_b64 s[{ANY}:{ANY + 1}], s[{ANY}:{ANY + 1}], s[{M + 2 * i}:{M + 2 * i + 1}]")
        a(f"s_cbranch_scc0 {done}")
        a("s_sub_u32 s13, s13, 1")
        a(f"s_cbranch_scc0 {lab}")
        a("s_mov_b32 s13, 0")
        a.label(done)
        a("s_mov_b64 exec, -1")

    def sel_masks(M, tmp):
        a(f"v_and_b32 v{tmp}, 1, v2")
        a(f"v_lshlrev_b32 v{tmp}, 4, v{tmp}")
        a(f"v_mov_b32 v{tmp + 1}, 0xffff")
        a(f"v_lshlrev_b32 v{tmp}, v{tmp}, v{tmp + 1}")
        a(f"v_lshrrev_b32 v{tmp + 1}, 1, v2")
        for p in range(4):
            a(f"v_cmp_eq_u32 vcc, {p}, v{tmp + 1}")
            a(f"v_cndmask_b32 v{M + p}, 0, v{tmp}, vcc")

    a.label("L_code_start")
    a("s_cmp_ge_u32 s2, 256")
    a("s_cbranch_scc1 L_end")
    a("s_load_dwordx16 s[16:31], s[0:1], 0")
    a("s_load_dwordx8 s[32:39], s[0:1], 64")
    a("s_load_dwordx2 s[40:41], s[0:1], 96")
    if cfg.ts or cfg.dbg:
        a(f"s_memrealtime s[{S_TS}:{S_TS + 1}]")
    a("v_lshrrev_b32 v2, 6, v0")
    a("v_and_b32 v1, 63, v0")
    a(f"v_readfirstlane_b32 s{S_W}, v2")
    a("v_and_b32 v2, 15, v1")
    a("v_lshrrev_b32 v3, 4, v1")
    a(f"s_and_b32 s{S_XCD}, s2, 7")
    a(f"s_lshr_b32 s{S_I16}, s2, 3")
    for i in range(1, 8):
        a(f"s_mov_b32 s{S_K8 + i}, {i * 8192}")
    a(f"s_mov_b32 s13, {SPIN}")
    a(f"s_cmp_ge_u32 s{S_I16}, 16")
    a("s_cbranch_scc1 L_B")

    S_H, S_J, S_A = 6, 7, 9
    a("s_mov_b32 s14, 0x05040100")
    a("s_mov_b32 s15, 0x07060302")
    a(f"s_lshl_b32 s{S_A}, s{S_XCD}, 4")
    a(f"s_add_u32 s{S_A}, s{S_A}, s{S_I16}")
    a(f"s_lshr_b32 s{S_H}, s{S_A}, 2")
    a(f"s_and_b32 s{S_J}, s{S_A}, 3")
    a(f"s_cmp_ge_u32 s{S_W}, 4")
    a("s_cbranch_scc1 L_Ahi")

    a("v_lshrrev_b32 v4, 2, v2")
    a("v_lshlrev_b32 v4, 10, v4")
    a("v_and_b32 v5, 3, v1")
    a("v_lshl_add_u32 v5, v3, 2, v5")
    a("v_lshl_add_u32 v5, v5, 4, v4")
    a(f"s_lshl_b32 s8, s{S_J}, 7")
    a(f"s_lshl_b32 s10, s{S_W}, 5")
    a("s_add_u32 s8, s8, s10")
    a("s_lshl_b32 s10, s8, 1")
    a("v_lshl_add_u32 v6, v3, 4, v4")
    a("v_add_u32 v6, s10, v6")
    a("s_lshl_b32 s10, s8, 13")
    a(f"s_lshl_b32 s11, s{S_H}, 8")
    a("s_add_u32 s10, s10, s11")
    a("v_lshlrev_b32 v7, 16, v3")
    a("v_lshl_add_u32 v7, v2, 4, v7")
    a("v_add_u32 v7, s10, v7")
    a("s_waitcnt lgkmcnt(0)")
    srd(SRD_A, S_WQ, 4 << 20)
    for i in range(4):
        a(f"global_load_dwordx4 {vr(8 + 4 * i, 4)}, v5, s[{S_X}:{S_X + 1}] offset:{256 * i}")
    a(f"global_load_dwordx4 v[24:27], v6, s[{S_X}:{S_X + 1}]")
    for jj in range(8):
        a(f"buffer_load_dwordx4 {vr(32 + 4 * jj, 4)}, v7, {RA}, {k8(jj)} offen nt")
    a(f"s_load_dword s44, s[{S_WS}:{S_WS + 1}], {WS_EPOCH}")
    srd(SRD_WS, S_WS, WS_SIZE)
    srd(SRD_B, S_WUV, 4 << 20)
    a("v_mov_b32 v28, 0")
    a("v_mov_b32 v29, 0")
    a("s_mov_b32 s10, 0x3f803f80")
    a("s_waitcnt vmcnt(9)")
    for i in range(16):
        a(f"v_dot2c_f32_bf16 v28, s10, v{8 + i}")
        a(f"v_dot2c_f32_bf16 v29, v{8 + i}, v{8 + i}")
    for x in (28, 29):
        a(f"v_add_f32_dpp v{x}, v{x}, v{x} quad_perm:[1,0,3,2] {DPPM}")
    for x in (28, 29):
        a(f"v_add_f32_dpp v{x}, v{x}, v{x} quad_perm:[2,3,0,1] {DPPM}")
    for wh in (16, 32):
        swap_reduce(28, 30, wh)
        swap_reduce(29, 31, wh)
    a(f"v_mul_f32 v28, {hex(f32(1.0 / 512))}, v28")
    a(f"v_mul_f32 v29, {hex(f32(1.0 / 512))}, v29")
    a("v_fma_f32 v29, -v28, v28, v29")
    a("v_max_f32 v29, 0, v29")
    a(f"v_add_f32 v29, {hex(f32(1e-5))}, v29")
    a("v_rsq_f32 v29, v29")
    a("s_waitcnt vmcnt(8)")
    a("v_mul_f32 v28, v28, v29")
    for p in range(4):
        a(f"v_lshlrev_b32 v{8 + 2 * p}, 16, v{24 + p}")
        a(f"v_and_b32 v{9 + 2 * p}, 0xffff0000, v{24 + p}")
    for k in range(8):
        a(f"v_fma_f32 v{8 + k}, v{8 + k}, v29, -v28")
    for p in range(4):
        a(f"v_cvt_pk_bf16_f32 v{24 + p}, v{8 + 2 * p}, v{9 + 2 * p}")
    a(f"s_lshl_b32 s10, s{S_W}, 11")
    a("v_lshlrev_b32 v8, 9, v3")
    a("v_lshl_add_u32 v8, v2, 5, v8")
    a("v_add_u32 v8, s10, v8")
    a("v_and_b32 v9, 3, v1")
    a("v_lshlrev_b32 v11, 4, v9")
    a("v_lshlrev_b32 v9, 9, v9")
    a("v_bfe_u32 v10, v1, 2, 2")
    a("v_lshl_add_u32 v9, v10, 5, v9")
    a("v_lshrrev_b32 v10, 5, v1")
    a("v_lshl_add_u32 v9, v10, 7, v9")
    a(f"s_lshl_b32 s10, s{S_W}, 8")
    a("v_add_u32 v9, s10, v9")
    a("v_and_b32 v10, 1, v3")
    a("v_lshl_add_u32 v9, v10, 4, v9")
    a("v_cmp_eq_u32 s[56:57], 1, v10")
    a(f"s_lshl_b32 s10, s{S_H}, 13")
    a(f"s_lshl_b32 s11, s{S_W}, 12")
    a("s_add_u32 s10, s10, s11")
    a(f"s_lshl_b32 s11, s{S_J}, 6")
    a("s_add_u32 s10, s10, s11")
    a(f"s_add_u32 s10, s10, {WS_QPG}")
    a("v_lshrrev_b32 v10, 2, v1")
    a("v_lshl_add_u32 v11, v10, 8, v11")
    a("v_add_u32 v11, s10, v11")
    a("s_waitcnt lgkmcnt(0)")
    tags()
    a("v_mov_b32 v12, s48")
    a("v_mov_b32 v13, s49")
    if cfg.pperm:
        for pp in range(4):
            a(f"s_waitcnt vmcnt({6 - 2 * pp})")
            for c in range(8):
                dw, e = c // 2, c % 2
                a(f"v_perm_b32 v{64 + 4 * c + pp}, v{32 + 4 * (2 * pp + 1) + dw}, v{32 + 4 * (2 * pp) + dw}, {'s14' if e == 0 else 's15'}")
    else:
        a("s_waitcnt vmcnt(0)")
    TS(1)

    def uv_loads():
        for jj in range(8):
            a(f"buffer_load_dwordx4 {vr(128 + 4 * jj, 4)}, v7, {RB}, {k8(jj)} offen nt")

    if cfg.uv_early == 1:
        uv_loads()
    if not cfg.pperm:
        perm_set(32, 64)
    for c in range(8):
        mfma16(96 + 4 * c, 24, 64 + 4 * c, None)
    for c in range(0, 8, 2):
        a(f"ds_write2_b32 v8, v{96 + 4 * c}, v{100 + 4 * c} offset0:{c} offset1:{c + 1}")
    a("s_waitcnt lgkmcnt(0)")
    a("s_barrier")
    a(f"s_cmp_ge_u32 s{S_W}, 2")
    a("s_cbranch_scc1 L_Alo_nopub")
    for i in range(4):
        a(f"ds_read_b128 {vr(32 + 4 * i, 4)}, v9 offset:{2048 * i}")
    a("s_waitcnt lgkmcnt(2)")
    for k in range(4):
        a(f"v_add_f32 v{32 + k}, v{32 + k}, v{36 + k}")
    a("s_waitcnt lgkmcnt(0)")
    for k in range(4):
        a(f"v_add_f32 v{40 + k}, v{40 + k}, v{44 + k}")
    for k in range(4):
        a(f"v_add_f32 v{32 + k}, v{32 + k}, v{40 + k}")
    a("v_cvt_pk_bf16_f32 v36, v32, v33")
    a("v_cvt_pk_bf16_f32 v37, v34, v35")
    a("v_cndmask_b32 v16, v12, v36, s[56:57]")
    a("v_cndmask_b32 v17, v13, v37, s[56:57]")
    a("v_cndmask_b32 v18, v36, v12, s[56:57]")
    a("v_cndmask_b32 v19, v37, v13, s[56:57]")
    if cfg.e1local:
        a(f"s_mov_b32 s10, {WS_QPG2 - WS_QPG}")
        a(f"buffer_store_dwordx4 v[16:19], v11, {WS}, s10 offen")
    a(f"buffer_store_dwordx4 v[16:19], v11, {WS}, 0 offen sc1")
    a.label("L_Alo_nopub")
    TS(2)
    if cfg.e1lds:
        a("s_barrier")
    if cfg.xgate in (1, 2):
        a(f"s_cmp_eq_u32 s{S_W}, 3")
        a("s_cbranch_scc0 L_Alo_nogate")
        a(f"s_lshl_b32 s10, s{S_A}, 7")
        a(f"s_add_u32 s10, s10, {WS_GO}")
        a("v_mov_b32 v16, s10")
        canary(16, 20, True)
        a.label("L_Alo_nogate")
    a("s_barrier")
    if cfg.ckpf:
        srd(SRD_A, S_CKV, 16 << 20)
        a(f"s_lshl_b32 s10, s{S_A}, 17")
        a(f"s_lshl_b32 s11, s{S_W}, 15")
        a("s_add_u32 s10, s10, s11")
        a("v_lshlrev_b32 v16, 10, v3")
        a("v_lshl_add_u32 v16, v2, 4, v16")
        for k in range(cfg.ckpf):
            i = 32 - cfg.ckpf + k
            a(f"s_add_u32 s11, s10, {(i % 8) * 4096 + (i // 8) * 256}")
            a(f"buffer_load_dwordx4 {vr(32 + 4 * k, 4)}, v16, {RA}, s11 offen")
    if cfg.xgate == 3:
        a(f"s_lshl_b32 s10, s{S_A}, 7")
        a(f"s_add_u32 s10, s10, {WS_GO}")
        a("v_mov_b32 v16, s10")
        canary(16, 20, True)
    if cfg.uv_early != 1:
        uv_loads()
    if cfg.ffnpf:
        ntf = " nt" if cfg.ffnpf == 1 else ""
        srd(SRD_A, S_WG, 512 * 2752)
        srd(SRD_B, S_WU, 512 * 2752)
        a("v_and_b32 v16, 7, v1")
        a("v_lshlrev_b32 v16, 6, v16")
        a("v_min_u32 v16, 348, v16")
        a("v_lshrrev_b32 v17, 3, v1")
        a("v_mul_u32_u24 v17, 2752, v17")
        a("v_add_u32 v16, v16, v17")
        a(f"s_lshl_b32 s10, s{S_I16}, 2")
        a(f"s_add_u32 s10, s10, s{S_W}")
        a(f"s_mul_i32 s10, s10, {8 * 2752}")
        a(f"s_mul_i32 s11, s{S_XCD}, 352")
        a("s_add_u32 s10, s10, s11")
        a(f"buffer_load_dword v18, v16, {RA}, s10 offen{ntf}")
        a(f"buffer_load_dword v19, v16, {RB}, s10 offen{ntf}")
        srd(SRD_A, S_WD, 1376 * 1024)
        a("v_lshlrev_b32 v16, 6, v0")
        a("v_min_u32 v16, 11200, v16")
        a(f"s_mul_i32 s10, s{S_A}, 11264")
        a(f"buffer_load_dword v20, v16, {RA}, s10 offen{ntf}")
        a("s_waitcnt vmcnt(3)")
    else:
        a("s_waitcnt vmcnt(0)")
    perm_set(128, 160)
    a("s_branch L_A_x")

    a.label("L_Ahi")
    a(f"s_sub_u32 s12, s{S_W}, 4")
    a(f"s_lshl_b32 s8, s{S_J}, 7")
    a("s_lshl_b32 s10, s12, 5")
    a("s_add_u32 s8, s8, s10")
    a("s_lshl_b32 s10, s8, 13")
    a(f"s_lshl_b32 s11, s{S_H}, 8")
    a("s_add_u32 s10, s10, s11")
    a("s_mov_b32 s57, s10")
    a("v_xor_b32 v7, v2, v3")
    a("v_lshlrev_b32 v7, 4, v7")
    a("v_lshl_add_u32 v30, v2, 8, v7")
    a("v_lshl_add_u32 v7, v3, 13, v7")
    a("s_lshl_b32 s11, s12, 13")
    a("s_add_u32 s11, s11, 16384")
    a("v_add_u32 v30, s11, v30")
    a("s_getpc_b64 s[62:63]")
    a.label("L_pc")
    a("s_sub_u32 s62, s62, L_pc-L_code_start")
    a("s_subb_u32 s63, s63, 0")
    a("s_lshl_b32 s10, s12, 4")
    a(f"s_add_u32 s10, s10, s{S_I16}")
    a("s_lshl_b32 s10, s10, 10")
    a("v_lshlrev_b32 v4, 4, v1")
    a("v_add_u32 v5, s10, v4")
    a("v_min_u32 v5, L_code_end-L_code_start-16, v5")
    a("global_load_dwordx4 v[8:11], v5, s[62:63]")
    a(f"s_lshl_b32 s10, s{S_H}, 13")
    a(f"s_add_u32 s10, s10, {WS_QPG2 if cfg.e1local else WS_QPG}")
    a("v_add_u32 v6, s10, v4")
    a(f"v_subrev_u32 v27, {WS_QPG2 - WS_QPG}, v6")
    a("v_mov_b32 v26, v6")
    a("s_waitcnt lgkmcnt(0)")
    srd(SRD_A, S_WUK, 4 << 20)
    srd(SRD_WS, S_WS, WS_SIZE)
    a(f"s_load_dword s44, s[{S_WS}:{S_WS + 1}], {WS_EPOCH}")
    a("s_mov_b32 s51, 4096")

    def qpg_load(k):
        so = "0" if k < 4 else "s51"
        a(f"buffer_load_dwordx4 {vr(64 + 4 * k, 4)}, v6, {WS}, {so} offen offset:{1024 * (k % 4)} sc1")

    if cfg.pretouch:
        a("s_lshl_b32 s10, s12, 11")
        a(f"buffer_load_dwordx4 v[64:67], v6, {WS}, s10 offen sc1")
        a(f"buffer_load_dwordx4 v[68:71], v6, {WS}, s10 offen offset:1024 sc1")
    def uk_dma():
        for k in range(8):
            a(f"s_add_u32 m0, s11, {1024 * k}")
            a(f"v_xor_b32 v{28 + k % 2}, {(k % 4) * 64}, v7")
            a(f"buffer_load_dwordx4 v{28 + k % 2}, {RA}, s57 offen nt lds")
            if k < 7:
                a("s_add_u32 s57, s57, 32768")

    if not cfg.uk_late:
        uk_dma()
    a(f"s_add_u32 s50, s12, s{S_J}")
    a("s_and_b32 s50, s50, 3")
    a(f"s_lshl_b32 s10, s{S_A}, 10")
    a("s_lshl_b32 s56, s50, 8")
    a("s_add_u32 s10, s10, s56")
    a(f"s_add_u32 s10, s10, {WS_AO}")
    a("v_lshlrev_b32 v31, 17, v3")
    a("v_lshl_add_u32 v31, v2, 4, v31")
    a("v_add_u32 v31, s10, v31")
    for k in range(4):
        a(f"v_mov_b32 v{12 + k}, -1")
    a(f"buffer_store_dwordx4 v[12:15], v31, {WS}, 0 offen sc1")
    a("s_cmp_eq_u32 s12, 0")
    a("s_cbranch_scc0 L_Ahi_noh")
    a(f"s_lshl_b32 s10, s{S_A}, 7")
    a(f"s_add_u32 s10, s10, {WS_H}")
    a("v_add_u32 v5, s10, v4")
    a("s_mov_b64 exec, 0xff")
    a(f"buffer_store_dwordx4 v[12:15], v5, {WS}, 0 offen sc1")
    a("s_mov_b64 exec, -1")
    a.label("L_Ahi_noh")
    a(f"s_lshl_b32 s10, s{S_H}, 11")
    a("s_lshl_b32 s56, s8, 2")
    a("s_add_u32 s10, s10, s56")
    a(f"s_add_u32 s10, s10, {WS_QL}")
    a("v_and_b32 v16, 3, v2")
    a("v_lshlrev_b32 v17, 16, v16")
    a("v_lshrrev_b32 v18, 2, v2")
    a("v_lshl_add_u32 v17, v18, 6, v17")
    a("v_lshl_add_u32 v17, v3, 4, v17")
    a("v_add_u32 v17, s10, v17")
    a("v_cmp_eq_u32 s[58:59], 1, v18")
    srd(SRD_B, S_WO, 4 << 20)
    a(f"s_lshl_b32 s10, s{S_H}, 17")
    a("s_lshl_b32 s56, s50, 8")
    a("s_add_u32 s10, s10, s56")
    a("v_lshlrev_b32 v19, 13, v3")
    a("v_lshl_add_u32 v19, v2, 4, v19")
    a("v_add_u32 v19, s10, v19")
    a("s_waitcnt lgkmcnt(0)")
    tags()
    a("v_mov_b32 v22, s48")
    a("v_mov_b32 v23, s49")
    if cfg.ts == 2:
        a("s_waitcnt vmcnt(11)")
        TS(3, 2)
        a("s_waitcnt vmcnt(9)")
        TS(4, 2)
        a("s_waitcnt vmcnt(1)")
        TS(5, 2)
    a("s_barrier")
    if cfg.uk_late:
        uk_dma()
    a("s_waitcnt vmcnt(0)")
    TS(1)
    for t in range(4):
        a(f"v_xor_b32 v28, {t * 64}, v30")
        for ct in range(2):
            a(f"ds_read_b128 {vr(32 + 16 * ct + 4 * t, 4)}, v28 offset:{4096 * ct}")
    if cfg.e1lds:
        a("s_lshl_b32 s10, s12, 11")
        a("s_lshl_b32 s11, s12, 10")
        a("v_add_u32 v5, 8192, v4")
        a("v_add_u32 v29, s11, v5")
        a.label("L_Ahi_poll")
        a(f"buffer_load_dwordx4 v[64:67], v6, {WS}, s10 offen sc1")
        a(f"buffer_load_dwordx4 v[68:71], v6, {WS}, s10 offen offset:1024 sc1")
        a("s_waitcnt vmcnt(1)")
        a("v_cmp_ne_u64 s[60:61], s[48:49], v[64:65]")
        a("s_waitcnt vmcnt(0)")
        a("v_cmp_ne_u64 vcc, s[48:49], v[70:71]")
        a("s_or_b64 s[60:61], s[60:61], vcc")
        a("s_cbranch_scc0 L_Ahi_got")
        if cfg.e1local:
            a("s_and_b32 s56, s13, 7")
            a("s_cmp_eq_u32 s56, 1")
            a("s_cselect_b64 vcc, -1, 0")
            a("v_cndmask_b32 v6, v26, v27, vcc")
        a("s_sub_u32 s13, s13, 1")
        a("s_cbranch_scc0 L_Ahi_poll")
        a("s_mov_b32 s13, 0")
        a.label("L_Ahi_got")
        a("ds_write_b128 v29, v[66:69]")
        a("s_waitcnt lgkmcnt(0)")
        a("s_barrier")
        for t in range(4):
            a(f"ds_read_b128 {vr(72 + 4 * t, 4)}, v5 offset:{1024 * t}")
        TS(2)
        for t in range(4):
            a(f"s_waitcnt lgkmcnt({3 - t})")
            for ct in range(2):
                mfma16(96 + 4 * ct, 32 + 16 * ct + 4 * t, 72 + 4 * t, None if t == 0 else 96 + 4 * ct)
    else:
        a.label("L_Ahi_poll")
        for k in range(8):
            qpg_load(k)
        a("s_mov_b64 s[60:61], 0")
        for k in range(8):
            a(f"s_waitcnt vmcnt({7 - k})")
            tr = 64 + 4 * k + (0 if k % 2 == 0 else 2)
            a(f"v_cmp_ne_u64 vcc, s[48:49], {vr(tr, 2)}")
            a("s_or_b64 s[60:61], s[60:61], vcc")
        a("s_cmp_eq_u64 s[60:61], 0")
        a("s_cbranch_scc1 L_Ahi_got")
        if cfg.e1local:
            a("s_and_b32 s10, s13, 7")
            a("s_cmp_eq_u32 s10, 1")
            a("s_cselect_b64 vcc, -1, 0")
            a("v_cndmask_b32 v6, v26, v27, vcc")
        a("s_sub_u32 s13, s13, 1")
        a("s_cbranch_scc0 L_Ahi_poll")
        a("s_mov_b32 s13, 0")
        a.label("L_Ahi_got")
        a("s_waitcnt lgkmcnt(0)")
        TS(2)
        for t in range(4):
            for ct in range(2):
                mfma16(96 + 4 * ct, 32 + 16 * ct + 4 * t, 66 + 8 * t, None if t == 0 else 96 + 4 * ct)
    dpp_ror_reduce(range(96, 104), (4, 8))
    for k in range(4):
        a(f"v_cndmask_b32 v{24 + k}, v{96 + k}, v{100 + k}, s[58:59]")
    sc = f32(128 ** -0.5 * math.log2(math.e))
    for k in range(4):
        a(f"v_mul_f32 v{24 + k}, {hex(sc)}, v{24 + k}")
    a("v_cvt_pk_bf16_f32 v20, v24, v25")
    a("v_cvt_pk_bf16_f32 v21, v26, v27")
    a("s_mov_b32 exec_lo, 0x00ff00ff")
    a("s_mov_b32 exec_hi, 0x00ff00ff")
    a(f"buffer_store_dwordx4 v[20:23], v17, {WS}, 0 offen sc1")
    a("s_mov_b64 exec, -1")
    a("s_barrier")
    for t in range(4):
        a(f"s_add_u32 s56, s{S_J}, {t}")
        a("s_and_b32 s56, s56, 3")
        a(f"s_lshl_b32 s{52 + t}, s56, 6")
        a("s_lshl_b32 s56, s56, 15")
        for hf in range(2):
            if hf:
                a("s_add_u32 s56, s56, 4096")
            for q in range(4):
                jj = hf * 4 + q
                if cfg.wo_depth and cfg.wo_depth <= 8 * t + jj < cfg.wo_n:
                    a(f"s_waitcnt vmcnt({cfg.wo_depth - 1})")
                a(f"buffer_load_dwordx4 {vr(128 + 32 * t + 4 * jj, 4)}, v19, {RB}, s56 offen offset:{1024 * q}{' nt' if cfg.nt_wo else ''}")
    for k in range(4):
        a(f"s_waitcnt vmcnt({8 * (3 - k)})")
        perm_set(128 + 32 * k, 96 + 32 * k)

    a.label("L_A_x")
    TS(3)
    T, AF, MK, D, STR = 32, 48, 64, 68, 72
    CL, CX = 0, 4096
    a(f"s_lshl_b32 s10, s{S_A}, 15")
    a(f"s_lshl_b32 s56, s{S_W}, 12")
    a("s_add_u32 s10, s10, s56")
    a(f"s_add_u32 s10, s10, {WS_OP}")
    a("v_lshlrev_b32 v5, 4, v1")
    a("v_add_u32 v5, s10, v5")
    a(f"s_lshr_b32 s10, s{S_W}, 1")
    a("s_lshl_b32 s10, s10, 14")
    a(f"s_lshl_b32 s56, s{S_H}, 4")
    a("s_add_u32 s10, s10, s56")
    a(f"s_add_u32 s10, s10, {WS_ST}")
    a("v_and_b32 v4, 31, v1")
    a("v_lshlrev_b32 v4, 9, v4")
    a("v_add_u32 v4, s10, v4")
    sel_masks(MK, 8)
    a(f"s_and_b32 s10, s{S_W}, 1")
    a("s_lshl_b32 s10, s10, 6")
    a("v_lshlrev_b32 v6, 2, v3")
    a("v_add_u32 v6, s10, v6")
    a(f"s_mul_i32 s10, s{S_W}, 272")
    a("v_lshlrev_b32 v8, 4, v2")
    a("v_lshl_add_u32 v8, v3, 3, v8")
    a("v_add_u32 v8, s10, v8")
    a("v_lshrrev_b32 v9, 2, v2")
    a("v_and_b32 v10, 1, v2")
    a("v_lshl_add_u32 v9, v9, 1, v10")
    a("v_mul_u32_u24 v9, 272, v9")
    a("v_lshl_add_u32 v9, v3, 4, v9")
    a(f"s_lshl_b32 s56, s{S_W}, 6")
    a("v_add_u32 v9, s56, v9")
    a("v_mul_u32_u24 v10, 1088, v3")
    a("v_lshl_add_u32 v10, v2, 4, v10")
    a(f"s_add_u32 s10, s10, {CX}")
    a("v_add_u32 v10, s10, v10")
    a("v_mul_u32_u24 v11, 272, v2")
    a("v_lshl_add_u32 v11, v3, 4, v11")
    a(f"v_add_u32 v11, {CX}, v11")
    a(f"s_lshl_b32 s10, s{S_J}, 14")
    a(f"s_lshl_b32 s56, s{S_W}, 11")
    a("s_add_u32 s10, s10, s56")
    a(f"s_add_u32 s10, s10, {WS_FL}")
    a("v_lshlrev_b32 v7, 7, v2")
    a("v_add_u32 v7, s10, v7")
    if cfg.tlb:
        a("s_mov_b64 exec, 1")
        a(f"buffer_load_dword v12, v5, {WS}, 0 offen nt")
        a("v_mov_b32 v13, 0")
        a(f"global_load_dword v14, v13, s[{S_OUT}:{S_OUT + 1}]")
        a("s_mov_b64 exec, 0xff")
        a("v_lshlrev_b32 v13, 16, v1")
        a(f"v_add_u32 v13, {WS_FP + 65536 - 128}, v13")
        a(f"buffer_load_dword v15, v13, {WS}, 0 offen nt")
        a("s_mov_b64 exec, -1")
    canary(4, STR, True)
    mpoll_tag(4, STR)
    TS(4)

    def op_loads():
        for i in range(4):
            a(f"buffer_load_dwordx4 {vr(T + 4 * i, 4)}, v5, {WS}, 0 offen offset:{1024 * i} sc1")

    if not cfg.fl:
        op_loads()
    a(f"v_mov_b32 v12, v{STR}")
    dpp_ror_reduce([12], (1, 2, 4, 8), "v_max_f32")
    swap_reduce(12, 13, 16, "v_max_f32")
    a(f"v_sub_f32 v12, v{STR}, v12")
    a("v_exp_f32 v12, v12")
    a("v_cvt_pk_bf16_f32 v12, v12, v12")
    for i in range(4):
        a(f"ds_bpermute_b32 v{16 + i}, v6, v12 offset:{16 * i}")
    a("v_and_b32 v13, 0xffff0000, v12")
    a(f"v_mul_f32 v13, v13, v{STR + 1}")
    dpp_ror_reduce([13], (1, 2, 4, 8))
    swap_reduce(13, 14, 16)
    a("v_rcp_f32 v13, v13")
    for i in range(4):
        a(f"s_waitcnt lgkmcnt({3 - i})")
        for p in range(4):
            a(f"v_and_b32 v{AF + 4 * i + p}, v{16 + i}, v{MK + p}")
    if cfg.fl:
        mpoll_tag(7, STR, "0xffff")
        op_loads()
    if cfg.ts:
        a("s_waitcnt vmcnt(0)")
    TS(5)
    for i in range(4):
        a(f"s_waitcnt vmcnt({3 - i})")
        mfma16(D, AF + 4 * i, T + 4 * i, None if i == 0 else D)
    for k in range(4):
        a(f"v_mul_f32 v{D + k}, v{D + k}, v13")
    a(f"v_cvt_pk_bf16_f32 v14, v{D}, v{D + 1}")
    a(f"v_cvt_pk_bf16_f32 v15, v{D + 2}, v{D + 3}")
    a("s_mov_b32 exec_hi, 0")
    a("ds_write_b64 v8, v[14:15]")
    a("s_mov_b64 exec, -1")
    a("s_waitcnt lgkmcnt(0)")
    a("s_barrier")
    a(f"s_cmp_ge_u32 s{S_W}, 4")
    a("s_cbranch_scc1 L_A_x3")
    a("ds_read_b128 v[16:19], v9")
    a("s_waitcnt lgkmcnt(0)")
    for c in range(8):
        mfma16(96 + 4 * c, 16, 160 + 4 * c, None)
    for c in range(8):
        a(f"v_add_f32 v{96 + 4 * c}, v{96 + 4 * c}, v{97 + 4 * c}")
    for p in range(4):
        a(f"v_cvt_pk_bf16_f32 v{20 + p}, v{96 + 8 * p}, v{100 + 8 * p}")
    a("ds_write_b128 v10, v[20:23]")
    a("s_waitcnt lgkmcnt(0)")
    a("s_barrier")
    TS(6)
    a(f"s_cmp_eq_u32 s{S_W}, 0")
    END_IF("scc0", 7)
    a("s_branch L_A_fin")
    a.label("L_A_x3")
    for t in range(4):
        a(f"v_add_u32 v{24 + t}, s{52 + t}, v11")
    a("s_barrier")
    for t in range(4):
        a(f"ds_read_b128 {vr(32 + 4 * t, 4)}, v{24 + t}")
    def x3_tail(c):
        x = 224 + 4 * c
        a(f"v_add_f32 v{x}, v{x}, v{x + 1}")
        a(f"v_add_f32 v{x + 2}, v{x + 2}, v{x + 3}")
        a(f"v_add_f32 v{x}, v{x}, v{x + 2}")
        if c % 2:
            a(f"v_cvt_pk_bf16_f32 v{20 + c // 2}, v{x - 4}, v{x}")

    if cfg.x3i:
        for t in range(2):
            a(f"s_waitcnt lgkmcnt({3 - t})")
            for c in range(8):
                mfma16(224 + 4 * c, 32 + 4 * t, 96 + 32 * t + 4 * c, None if t == 0 else 224 + 4 * c)
        a("s_waitcnt lgkmcnt(0)")
        for c in range(8):
            for t in (2, 3):
                mfma16(224 + 4 * c, 32 + 4 * t, 96 + 32 * t + 4 * c, 224 + 4 * c)
            if c >= 2:
                x3_tail(c - 2)
        x3_tail(6)
        x3_tail(7)
    else:
        for t in range(4):
            a(f"s_waitcnt lgkmcnt({3 - t})")
            for c in range(8):
                mfma16(224 + 4 * c, 32 + 4 * t, 96 + 32 * t + 4 * c, None if t == 0 else 224 + 4 * c)
        for c in range(8):
            x3_tail(c)
    a(f"buffer_store_dwordx4 v[20:23], v31, {WS}, 0 offen sc1")
    TS(6)
    END(7)

    a.label("L_A_fin")
    a(f"s_lshl_b32 s10, s{S_J}, 10")
    a(f"s_lshl_b32 s56, s{S_H}, 5")
    a("s_add_u32 s10, s10, s56")
    a("v_lshrrev_b32 v4, 1, v2")
    a("v_lshl_add_u32 v4, v3, 3, v4")
    a("v_and_b32 v5, 1, v2")
    a("v_lshlrev_b32 v5, 4, v5")
    a("v_lshl_add_u32 v6, v3, 3, v5")
    a("v_add_u32 v6, s10, v6")
    a(f"s_add_u32 s11, s10, {WS_FP}")
    a("v_lshl_add_u32 v8, v4, 12, v5")
    a("v_add_u32 v8, s11, v8")
    a(f"v_add_u32 v9, {64 * 4096}, v8")
    a("s_lshl_b32 s10, s10, 2")
    a(f"s_add_u32 s10, s10, {WS_H}")
    a("v_add_u32 v10, s10, v5")
    a(f"v_cmp_eq_u32 vcc, {NSLICE - 64}, v4")
    a("v_cndmask_b32 v9, v9, v10, vcc")
    a(f"v_cmp_ge_u32 s[56:57], {NSLICE - 64}, v4")
    for k in range(4):
        a(f"v_mov_b32 v{40 + k}, 0")
        a(f"v_and_b32 v{16 + k}, 0x3f803f80, v{MK + k}")
    a(f"s_mov_b32 s11, {32 * 4096}")
    srd(SRD_A, S_OUT, 4096)
    canary(8, 32, False)
    mpoll_data([(32, f"buffer_load_dwordx4 v[32:35], v8, {WS}, 0 offen sc1"),
                (36, f"buffer_load_dwordx4 v[36:39], v8, {WS}, s11 offen sc1"),
                (40, f"buffer_load_dwordx4 v[40:43], v9, {WS}, 0 offen sc1")], 24, 7, ["-1", "-1", "s[56:57]"])
    for i in range(3):
        mfma16(D, 16, 32 + 4 * i, None if i == 0 else D)
    dpp_ror_reduce(range(D, D + 4), (2, 4, 8))
    a(f"v_cvt_pk_bf16_f32 v14, v{D}, v{D + 1}")
    a(f"v_cvt_pk_bf16_f32 v15, v{D + 2}, v{D + 3}")
    a("s_mov_b64 exec, 0x00030003")
    a(f"buffer_store_dwordx2 v[14:15], v6, {RA}, 0 offen{' sc1' if cfg.out_sc1 else ''}")
    a(f"s_cmp_eq_u32 s{S_A}, 0")
    a("s_cbranch_scc0 L_A_done")
    a("s_mov_b64 exec, 1")
    a("v_mov_b32 v9, s44")
    a("v_mov_b32 v10, 0")
    a(f"buffer_store_dword v9, v10, {WS}, 0 offen offset:{WS_EPOCH} sc1")
    a.label("L_A_done")
    if cfg.dbg >= 2:
        a.label("L_dbg_spin")
        a(f"s_memrealtime s[{S_TS + 2}:{S_TS + 3}]")
        a("s_waitcnt lgkmcnt(0)")
        a(f"s_sub_u32 s10, s{S_TS + 2}, s{S_TS}")
        a(f"s_cmp_lt_u32 s10, {cfg.dbg * 100}")
        a("s_cbranch_scc1 L_dbg_spin")
    if cfg.dbg:
        a(f"s_memrealtime s[{S_TS + 2}:{S_TS + 3}]")
        a("s_waitcnt lgkmcnt(0)")
        a("s_mov_b64 exec, 1")
        a(f"v_mov_b32 v12, s{S_TS}")
        a(f"v_mov_b32 v13, s{S_TS + 2}")
        a(f"s_lshl_b32 s10, s{S_A}, 3")
        a(f"s_add_u32 s10, s10, {WS_DBG}")
        a("v_mov_b32 v10, s10")
        a(f"buffer_store_dwordx2 v[12:13], v10, {WS}, 0 offen")
    TS(7)
    END(8)

    a.label("L_B")
    inA[0] = False
    S_BB, S_CH, S_R, S_SL = 6, 7, 9, 51
    QB = 131072
    a(f"s_and_b32 s{S_I16}, s{S_I16}, 15")
    a(f"s_lshl_b32 s{S_R}, s{S_XCD}, 4")
    a(f"s_add_u32 s{S_R}, s{S_R}, s{S_I16}")
    a(f"s_lshr_b32 s{S_BB}, s{S_R}, 5")
    a(f"s_and_b32 s{S_CH}, s{S_R}, 31")
    MXB, PB, SB, STG = QB, QB + 1024, QB + 9728, 0
    for k in range(4):
        a(f"v_mov_b32 v{26 + k}, -1")
    a(f"s_mul_i32 s{S_SL}, s{S_XCD}, 11")
    a(f"s_add_u32 s{S_SL}, s{S_SL}, s{S_I16}")
    a(f"s_cmp_lt_u32 s{S_I16}, 11")
    a(f"s_cselect_b32 s{S_SL}, s{S_SL}, 127")
    a(f"s_lshl_b32 s10, s{S_SL}, 12")
    a(f"s_lshl_b32 s11, s{S_W}, 7")
    a("s_add_u32 s10, s10, s11")
    a(f"s_add_u32 s10, s10, {WS_FP}")
    a("v_and_b32 v31, 3, v2")
    a("v_lshlrev_b32 v31, 10, v31")
    a("v_lshrrev_b32 v12, 2, v2")
    a("v_lshl_add_u32 v31, v12, 5, v31")
    a("v_lshl_add_u32 v31, v3, 3, v31")
    a("v_add_u32 v31, s10, v31")
    a("v_and_b32 v12, 31, v1")
    a("v_lshrrev_b32 v13, 5, v1")
    a(f"s_cmp_ge_u32 s{S_W}, 4")
    a("s_cbranch_scc1 L_B_pv")

    a(f"s_lshl_b32 s8, s{S_R}, 17")
    a(f"s_lshl_b32 s10, s{S_W}, 15")
    a("s_add_u32 s8, s8, s10")
    a("v_lshlrev_b32 v4, 2, v3")
    a("v_xor_b32 v4, v4, v2")
    a("v_lshlrev_b32 v4, 4, v4")
    a("v_lshl_add_u32 v4, v3, 10, v4")
    for k in range(1, 4):
        a(f"v_xor_b32 v{4 + k}, {G(k) * 16}, v4")
    a("v_lshrrev_b32 v8, 2, v2")
    a("v_lshlrev_b32 v8, 1, v8")
    a("v_mov_b32 v9, 0x78")
    a("v_lshrrev_b32 v8, v8, v9")
    a("v_and_b32 v8, 3, v8")
    a("v_and_b32 v9, 3, v2")
    a("v_lshl_add_u32 v8, v9, 2, v8")
    a("v_xor_b32 v8, v8, v13")
    a("v_lshlrev_b32 v8, 4, v8")
    a("v_lshl_add_u32 v8, v12, 8, v8")
    a("v_add_u32 v8, s10, v8")
    for tt in range(8):
        a(f"v_xor_b32 v{48 + tt}, {tt * 32}, v8")
    a("s_waitcnt lgkmcnt(0)")
    a(f"s_load_dword s44, s[{S_WS}:{S_WS + 1}], {WS_EPOCH}")
    srd(SRD_A, S_CKV, 16 << 20)
    srd(SRD_WS, S_WS, WS_SIZE)
    a(f"buffer_store_dwordx2 v[26:27], v31, {WS}, 0 offen sc1")
    if cfg.b_delay == 1:
        a("s_waitcnt lgkmcnt(0)")
    DD = cfg.dma_depth
    assert DD <= 8

    def go_store():
        a(f"s_cmp_eq_u32 s{S_W}, 3")
        a("s_cbranch_scc0 L_B_nogo")
        a(f"s_lshl_b32 s12, s{S_R}, 7")
        a(f"s_add_u32 s12, s12, {WS_GO}")
        a("v_mov_b32 v24, s12")
        a("s_mov_b64 exec, 1")
        a(f"buffer_store_dwordx4 v[26:29], v24, {WS}, 0 offen sc1")
        a("s_mov_b64 exec, -1")
        a.label("L_B_nogo")

    def afrag_reads(q):
        for tt in range(8):
            a(f"ds_read_b128 {vr(128 + 32 * q + 4 * tt, 4)}, v{48 + tt} offset:{8192 * q}")

    for i in range(32):
        q, rr = i // 8, i % 8
        if i == cfg.bs_at:
            a("s_barrier")
        if i >= DD:
            a(f"s_waitcnt vmcnt({DD - 1})")
        a(f"s_add_u32 m0, s10, {1024 * i}")
        a(f"s_add_u32 s11, s8, {rr * 4096 + q * 256}")
        a(f"buffer_load_dwordx4 v{4 + rr % 4}, {RA}, s11 offen nt lds")
        if i == 1:
            a("v_xor_b32 v8, v2, v13")
            a("v_lshlrev_b32 v8, 4, v8")
            a("v_lshl_add_u32 v8, v12, 10, v8")
            a(f"v_add_u32 v8, {QB}, v8")
            for tt in range(8):
                a(f"v_xor_b32 v{56 + tt}, {tt * 32}, v8")
            a("v_lshlrev_b32 v65, 4, v12")
            a(f"v_add_u32 v65, {MXB}, v65")
            a(f"s_lshl_b32 s12, s{S_W}, 2")
            a("v_add_u32 v64, s12, v65")
            a("v_mul_u32_u24 v66, 272, v12")
            a("v_lshl_add_u32 v66, v13, 3, v66")
            a(f"s_lshl_b32 s12, s{S_W}, 6")
            a(f"s_add_u32 s12, s12, {PB}")
            a("v_add_u32 v66, s12, v66")
            a("v_lshlrev_b32 v68, 5, v12")
            a(f"v_add_u32 v68, {SB}, v68")
            a("v_lshl_add_u32 v67, v13, 2, v68")
            a(f"s_lshl_b32 s12, s{S_W}, 3")
            a("v_add_u32 v67, s12, v67")
            a(f"s_lshl_b32 s12, s{S_R}, 9")
            a(f"s_add_u32 s12, s12, {WS_ST}")
            a("v_lshlrev_b32 v25, 4, v12")
            a("v_add_u32 v25, s12, v25")
        if i == 3 and cfg.ffnpf2:
            a("v_lshrrev_b32 v69, 1, v1")
            a("v_mul_u32_u24 v69, 2752, v69")
            a("v_and_b32 v70, 1, v1")
            a("v_lshl_add_u32 v69, v70, 6, v69")
            a(f"s_and_b32 s56, s{S_SL}, 3")
            a("s_lshl_b32 s56, s56, 2")
            a(f"s_add_u32 s56, s56, s{S_W}")
            a(f"s_mul_i32 s56, s56, {32 * 2752}")
            a(f"s_lshr_b32 s57, s{S_SL}, 2")
            a("s_lshl_b32 s57, s57, 7")
            a("s_add_u32 s56, s56, s57")
            srd(SRD_B, S_WG, 512 * 2752)
            srd(20, S_WU, 512 * 2752)
        if i == 9:
            a("s_waitcnt lgkmcnt(0)")
            tags()
            a("v_mov_b32 v28, s48")
            a("v_mov_b32 v29, s49")
        if cfg.xgate and i == cfg.go_at:
            go_store()
        if i in (16, 24):
            afrag_reads(i // 8 - 2)
        if i == cfg.b0_at:
            a("s_barrier")
    TS(1)
    if cfg.xgate and cfg.go_at == 32:
        go_store()
    a("s_waitcnt vmcnt(8)")
    afrag_reads(2)
    a("s_waitcnt lgkmcnt(0)")
    TS(2)
    a("s_barrier")
    if cfg.xgate and cfg.go_at == 33:
        go_store()
    TS(1, 3)
    if cfg.ts == 3:
        a(f"s_memtime s[{S_TS + 6}:{S_TS + 7}]")
        a("s_waitcnt lgkmcnt(0)")
    pend = []

    def lds(tag, text):
        a(text)
        pend.append(tag)

    def need_lds(*tags_):
        idxs = [pend.index(t_) for t_ in tags_ if t_ in pend]
        if not idxs:
            return
        idx = max(idxs)
        assert len(pend) - 1 - idx <= 15
        a(f"s_waitcnt lgkmcnt({len(pend) - 1 - idx})")
        del pend[:idx + 1]

    def qread(t):
        lds(("q", t), f"ds_read_b128 {vr(96 + 4 * (t % 8), 4)}, v{56 + t % 8} offset:{256 * (t // 8)}")

    QD = 6
    for t in range(QD):
        qread(t)
    for t in range(32):
        if t == cfg.q3_at:
            a("s_waitcnt vmcnt(0)")
            for tt in range(8):
                lds(("a", 24 + tt), f"ds_read_b128 {vr(224 + 4 * tt, 4)}, v{48 + tt} offset:{8192 * 3}")
            if cfg.ffnpf2:
                a(f"s_cmp_ge_u32 s{S_SL}, {NSLICE}")
                a("s_cbranch_scc1 L_B_nopf2")
                a(f"buffer_load_dword v70, v69, {RB}, s56 offen")
                a("buffer_load_dword v71, v69, s[20:23], s56 offen")
                a.label("L_B_nopf2")
        need_lds(("a", t), ("q", t))
        cin = "0" if t == 0 else "v[32:47]"
        a(f"v_mfma_f32_32x32x16_bf16 v[32:47], {vr(128 + 4 * t, 4)}, {vr(96 + 4 * (t % 8), 4)}, {cin}")
        if t + QD < 32:
            qread(t + QD)
    a("s_barrier")
    a("v_max3_f32 v22, v32, v33, v34")
    a("v_max3_f32 v23, v35, v36, v37")
    TS(2, 3)
    if cfg.ts == 3:
        a(f"s_memtime s[{S_TS + 10}:{S_TS + 11}]")
        a("s_waitcnt lgkmcnt(0)")
    for k in range(38, 46, 4):
        a(f"v_max3_f32 v22, v22, v{k}, v{k + 1}")
        a(f"v_max3_f32 v23, v23, v{k + 2}, v{k + 3}")
    a("v_max3_f32 v22, v22, v46, v47")
    a("v_max_f32 v22, v22, v23")
    swap_reduce(22, 23, 32, "v_max_f32")
    a("ds_write_b32 v64, v22")
    a("s_waitcnt lgkmcnt(0)")
    a("s_barrier")
    TS(6, 3)
    a("ds_read_b128 v[96:99], v65")
    a("s_waitcnt lgkmcnt(0)")
    a("v_max3_f32 v26, v96, v97, v98")
    a("v_max_f32 v26, v26, v99")
    for g4 in range(4):
        x = 32 + 4 * g4
        for r in range(4):
            a(f"v_sub_f32 v{x + r}, v{x + r}, v26")
        for r in range(4):
            a(f"v_exp_f32 v{x + r}, v{x + r}")
        a(f"v_cvt_pk_bf16_f32 v{8 + 2 * (g4 % 2)}, v{x}, v{x + 1}")
        a(f"v_cvt_pk_bf16_f32 v{9 + 2 * (g4 % 2)}, v{x + 2}, v{x + 3}")
        a(f"ds_write_b64 v66, {vr(8 + 2 * (g4 % 2), 2)} offset:{16 * g4}")
    a("s_waitcnt lgkmcnt(0)")
    a("s_barrier")
    TS(4)
    for k in range(8):
        a(f"v_add_f32 v{32 + k}, v{32 + k}, v{40 + k}")
    for k in range(4):
        a(f"v_add_f32 v{32 + k}, v{32 + k}, v{36 + k}")
    a("v_add_f32 v32, v32, v34")
    a("v_add_f32 v33, v33, v35")
    a("v_add_f32 v32, v32, v33")
    a("ds_write_b32 v67, v32")
    a("s_waitcnt lgkmcnt(0)")
    a("s_barrier")
    a("ds_read_b128 v[32:35], v68")
    a("ds_read_b128 v[36:39], v68 offset:16")
    a("s_waitcnt lgkmcnt(0)")
    for k in range(4):
        a(f"v_add_f32 v{32 + k}, v{32 + k}, v{36 + k}")
    a("v_add_f32 v32, v32, v34")
    a("v_add_f32 v33, v33, v35")
    a("v_add_f32 v27, v32, v33")
    if not cfg.fl:
        a("s_barrier")
    a(f"s_cmp_eq_u32 s{S_W}, 0")
    a("s_cbranch_scc0 L_B_nost")
    a("s_mov_b32 exec_hi, 0")
    a(f"buffer_store_dwordx4 v[26:29], v25, {WS}, 0 offen sc1")
    a("s_mov_b64 exec, -1")
    a.label("L_B_nost")
    if cfg.fl:
        a("s_barrier")
    a.haz_flush(3)
    a("s_branch L_B_post")

    a.label("L_B_pv")
    a(f"s_sub_u32 s12, s{S_W}, 4")
    a(f"s_lshl_b32 s11, s{S_BB}, 16")
    a("s_lshl_b32 s10, s12, 10")
    a("s_add_u32 s11, s11, s10")
    a(f"s_add_u32 s11, s11, {WS_QL}")
    a("v_lshlrev_b32 v7, 4, v1")
    a("v_add_u32 v7, s11, v7")
    a("v_add_u32 v6, 4096, v7")
    a("s_waitcnt lgkmcnt(0)")
    a(f"s_load_dword s44, s[{S_WS}:{S_WS + 1}], {WS_EPOCH}")
    srd(SRD_WS, S_WS, WS_SIZE)

    def q_load(i):
        a(f"buffer_load_dwordx4 {vr(128 + 4 * i, 4)}, v{7 - i % 2}, {WS}, {k8(i // 2)} offen sc1")

    if cfg.uk_delay:
        a("s_waitcnt lgkmcnt(0)")
    if cfg.ukpf:
        srd(SRD_B, S_WUK, 4 << 20)
        a(f"s_and_b32 s11, s{S_R}, 3")
        a("s_lshl_b32 s11, s11, 20")
        a("s_lshl_b32 s10, s12, 18")
        a("s_add_u32 s11, s11, s10")
        a(f"s_lshr_b32 s10, s{S_R}, 2")
        a("s_lshl_b32 s10, s10, 8")
        a("s_add_u32 s11, s11, s10")
        a(f"s_add_u32 s11, s11, {(8 - cfg.ukpf_n) * 32768}")
        a("v_lshlrev_b32 v8, 13, v3")
        a("v_lshl_add_u32 v8, v2, 4, v8")
        for k in range(cfg.ukpf_n):
            a(f"buffer_load_dwordx4 {vr(32 + 4 * k, 4)}, v8, {RB}, s11 offen nt")
            a("s_add_u32 s11, s11, 32768")
    if cfg.bs_at >= 0 and cfg.bs_mode == 1:
        a("s_barrier")
    if cfg.pretouch:
        a(f"s_lshl_b32 s11, s{S_I16}, 12")
        a(f"buffer_load_dwordx4 v[128:131], v7, {WS}, s11 offen sc1")
    a(f"buffer_store_dwordx2 v[26:27], v31, {WS}, 0 offen sc1")
    a("s_lshr_b32 s10, s12, 1")
    a("s_and_b32 s11, s12, 1")
    a("s_lshl_b32 s11, s11, 5")
    a("s_xor_b32 s11, s11, s10")
    a("v_lshrrev_b32 v8, 1, v1")
    a("v_xor_b32 v8, s11, v8")
    a("v_lshlrev_b32 v8, 4, v8")
    a("v_and_b32 v9, 1, v1")
    a("v_lshl_add_u32 v8, v9, 3, v8")
    a("s_lshl_b32 s10, s10, 10")
    a(f"s_add_u32 s10, s10, {QB}")
    a("v_add_u32 v8, s10, v8")
    for k in range(8):
        a(f"v_xor_b32 v{64 + k}, {k * 32}, v8")
    a("v_lshrrev_b32 v22, 2, v2")
    a("v_lshl_add_u32 v23, v13, 3, v22")
    a("v_lshlrev_b32 v23, 8, v23")
    a("v_lshl_add_u32 v23, v9, 3, v23")
    a("v_and_b32 v24, 1, v3")
    a("v_bfe_u32 v10, v1, 1, 1")
    a("v_lshl_add_u32 v24, v24, 1, v10")
    a("v_lshlrev_b32 v22, 2, v22")
    a("v_xor_b32 v24, v24, v22")
    a("v_mul_u32_u24 v22, 3, v13")
    a("v_xor_b32 v24, v24, v22")
    a("v_lshl_add_u32 v23, v24, 4, v23")
    a("s_lshl_b32 s10, s12, 13")
    a("v_add_u32 v23, s10, v23")
    a("v_xor_b32 v24, 32, v23")
    a("v_add_u32 v24, 1024, v24")
    for ct in range(4):
        for u in range(2):
            a(f"v_xor_b32 v{72 + 2 * ct + u}, {ct * 64}, v{23 + u}")
            a(f"v_add_u32 v{80 + 2 * ct + u}, 0x10000, v{72 + 2 * ct + u}")
    a("v_mul_u32_u24 v88, 272, v12")
    a("v_lshl_add_u32 v88, v13, 4, v88")
    a(f"v_add_u32 v88, {PB}, v88")
    a("s_lshl_b32 s10, s12, 14")
    a("v_mul_u32_u24 v89, 144, v12")
    a("v_lshl_add_u32 v89, v13, 3, v89")
    a("v_add_u32 v89, s10, v89")
    a("v_lshrrev_b32 v22, 3, v1")
    a("v_and_b32 v23, 7, v1")
    a("v_mul_u32_u24 v90, 144, v22")
    a("v_lshl_add_u32 v90, v23, 4, v90")
    a("v_add_u32 v90, s10, v90")
    a("s_lshl_b32 s10, s12, 15")
    a(f"s_lshl_b32 s11, s{S_R}, 8")
    a("s_add_u32 s10, s10, s11")
    a(f"s_add_u32 s10, s10, {WS_OP}")
    a("v_lshlrev_b32 v30, 17, v22")
    a("v_lshl_add_u32 v30, v23, 4, v30")
    a("v_add_u32 v30, s10, v30")
    if cfg.tlb:
        a("v_lshlrev_b32 v10, 17, v12")
        a("v_add_u32 v10, s10, v10")
        a(f"buffer_load_dword v11, v10, {WS}, 0 offen nt")
    for i in range(1, 4):
        a(f"s_mov_b32 s{52 + i}, {i << 20}")
    a("s_lshl_b32 s10, s12, 14")
    a(f"s_lshl_b32 s11, s{S_R}, 7")
    a("s_add_u32 s10, s10, s11")
    a(f"s_add_u32 s10, s10, {WS_FL}")
    a("v_mov_b32 v25, s10")
    a("s_waitcnt lgkmcnt(0)")
    tags()
    a("v_mov_b32 v28, s48")
    a("v_mov_b32 v29, s49")
    TS(1)
    if cfg.bs_at >= 0 and cfg.bs_mode == 0:
        a("s_waitcnt vmcnt(0)")
        a("s_barrier")
    if cfg.scout:
        a(f"s_lshl_b32 s11, s{S_BB}, 16")
        a("s_lshl_b32 s10, s12, 10")
        a("s_add_u32 s11, s11, s10")
        a(f"s_add_u32 s11, s11, {WS_QL + 496}")
        a("v_lshrrev_b32 v10, 1, v12")
        a("v_lshlrev_b32 v10, 12, v10")
        a("v_and_b32 v11, 1, v1")
        a("v_lshl_add_u32 v10, v11, 9, v10")
        a("v_add_u32 v10, s11, v10")
        a("s_mov_b32 s56, -1")
        a("s_mov_b32 s57, 0")
    a("s_barrier")
    if cfg.scout:
        mpoll_tag(10, 128, "s[56:57]", cfg.ssleep)
    TS(2)
    for i in range(16):
        q_load(i)
    a("s_mov_b32 s60, 0")
    for i in range(16):
        a(f"s_waitcnt vmcnt({15 - i})")
        a(f"v_cmp_ne_u64 vcc, s[48:49], {vr(130 + 4 * i, 2)}")
        a(f"ds_write_b64 v{64 + i % 8}, {vr(128 + 4 * i, 2)} offset:{2048 * i}")
        a("s_cmp_lg_u64 vcc, 0")
        a("s_addc_u32 s60, s60, s60")
    a("s_cmp_eq_u32 s60, 0")
    a("s_cbranch_scc1 L_B_gotq")
    a.label("L_B_qretry")
    if cfg.qsleep:
        a(f"s_sleep {cfg.qsleep}")
    for i in range(16):
        lab = a.newlabel("Lq")
        a(f"s_bitcmp1_b32 s60, {15 - i}")
        a(f"s_cbranch_scc0 {lab}")
        q_load(i)
        a.label(lab)
    a("s_waitcnt vmcnt(0)")
    for i in range(16):
        lab = a.newlabel("Lq")
        a(f"s_bitcmp1_b32 s60, {15 - i}")
        a(f"s_cbranch_scc0 {lab}")
        a(f"v_cmp_ne_u64 vcc, s[48:49], {vr(130 + 4 * i, 2)}")
        a(f"s_cbranch_vccnz {lab}")
        a(f"ds_write_b64 v{64 + i % 8}, {vr(128 + 4 * i, 2)} offset:{2048 * i}")
        a(f"s_bitset0_b32 s60, {15 - i}")
        a.label(lab)
    a("s_cmp_eq_u32 s60, 0")
    a("s_cbranch_scc1 L_B_gotq")
    a("s_sub_u32 s13, s13, 1")
    a("s_cbranch_scc0 L_B_qretry")
    a("s_mov_b32 s13, 0")
    a.label("L_B_gotq")
    a("s_waitcnt lgkmcnt(0)")
    TS(3)
    a("s_barrier")
    TS(1, 3)
    a("s_cmp_lt_u32 s12, 3")
    a("s_cbranch_scc1 L_B_trr")
    a("s_barrier")
    a.label("L_B_trr")
    for ct in range(4):
        for s in range(8):
            for u in range(2):
                base = (72 if s < 4 else 80) + 2 * ct + u
                a(f"ds_read_b64_tr_b16 {vr(128 + (ct * 8 + s) * 4 + 2 * u, 2)}, v{base} offset:{32768 * ((s // 2) % 2) + 4096 * (s % 2)}")
    a("s_cmp_lt_u32 s12, 3")
    a("s_cbranch_scc0 L_B_trd")
    a("s_barrier")
    a.label("L_B_trd")
    a("s_barrier")
    a("s_waitcnt lgkmcnt(0)")
    a("s_barrier")
    TS(4)
    for s in range(8):
        a(f"ds_read_b128 {vr(96 + 4 * s, 4)}, v88 offset:{32 * s}")
    ACC = [32, 48, 32, 48]
    ACC = [32, 48, 64 - 0, 0]
    a("v_mov_b32 v22, v89")
    a("v_mov_b32 v23, v90")
    ACC = [32, 48, 64, 80]

    def stage_w(ct, g4):
        x = ACC[ct] + 4 * g4
        d = 14 + 2 * (g4 % 4)
        a(f"v_cvt_pk_bf16_f32 v{d}, v{x}, v{x + 1}")
        a(f"v_cvt_pk_bf16_f32 v{d + 1}, v{x + 2}, v{x + 3}")
        a(f"ds_write_b64 v22, {vr(d, 2)} offset:{8192 * (ct // 2) + 64 * (ct % 2) + 16 * g4}")

    def stage_r(pair, dst):
        for i in range(4):
            a(f"ds_read_b128 {vr(dst + 4 * i, 4)}, v23 offset:{8192 * pair + 1152 * i}")

    def op_store(pair, dst, i):
        so = "0" if i == 0 else f"s{52 + i}"
        a(f"buffer_store_dwordx4 {vr(dst + 4 * i, 4)}, v30, {WS}, {so} offen offset:{128 * pair} sc1")

    for ct in range(4):
        for s in range(8):
            if ct == 0:
                a(f"s_waitcnt lgkmcnt({7 - s})")
            cin = "0" if s == 0 else vr(ACC[ct], 16)
            a(f"v_mfma_f32_32x32x16_bf16 {vr(ACC[ct], 16)}, {vr(128 + (ct * 8 + s) * 4, 4)}, {vr(96 + 4 * s, 4)}, {cin}")
            if ct >= 1 and 3 <= s <= 6:
                stage_w(ct - 1, s - 3)
            if ct == 1 and s == 0:
                a("s_barrier")
            if ct == 2 and s == 7:
                stage_r(0, 128)
            if ct == 3 and s < 2:
                a(f"s_waitcnt lgkmcnt({2 - 2 * s})")
                op_store(0, 128, 2 * s)
                op_store(0, 128, 2 * s + 1)
    for g4 in range(4):
        stage_w(3, g4)
    stage_r(1, 144)
    TS(7, 3)
    for i in range(4):
        a(f"s_waitcnt lgkmcnt({3 - i})")
        op_store(1, 144, i)
    TS(5)
    a("s_mov_b64 exec, 1")
    a("s_waitcnt vmcnt(0)")
    if cfg.fl:
        a(f"buffer_store_dwordx4 v[26:29], v25, {WS}, 0 offen sc1")
    a("s_mov_b64 exec, -1")
    a("s_barrier")
    a.label("L_B_post")
    if cfg.ts:
        TS(1)

    GW, UW, DW = 0, 16384, 32768
    GP, AB, ZB = 65536, 65536 + 4096, 65536 + 8192
    S1B, S2B = GP + 2048, GP + 2048 + 64
    a(f"s_cmp_ge_u32 s{S_SL}, {NSLICE}")
    a("s_cbranch_scc1 L_B_red")
    srd(SRD_A, S_WG, 512 * 2752)
    srd(SRD_B, S_WU, 512 * 2752)
    a("v_lshrrev_b32 v4, 1, v1")
    a("v_mul_u32_u24 v4, 2752, v4")
    a("v_and_b32 v5, 1, v1")
    a("v_lshl_add_u32 v4, v5, 4, v4")
    a(f"s_lshl_b32 s12, s{S_SL}, 1")
    a(f"s_add_u32 s12, s12, s{S_W}")
    a("s_and_b32 s12, s12, 7")
    a(f"s_mul_i32 s10, s12, {64 * 2752}")
    a(f"s_lshl_b32 s11, s{S_SL}, 5")
    a("s_add_u32 s10, s10, s11")
    a(f"s_add_u32 s11, s10, {32 * 2752}")
    a("s_lshl_b32 s12, s12, 11")
    for (R, base) in ((RA, GW), (RB, UW)):
        for k in range(2):
            a(f"s_add_u32 m0, s12, {base + 1024 * k}")
            a("s_nop 0")
            a(f"buffer_load_dwordx4 v4, {R}, s{10 + k} offen{' nt' if cfg.nt_ffn else ''} lds")
    srd(SRD_A, S_WD, 1376 * 1024)
    a("v_lshlrev_b32 v4, 4, v1")
    a(f"s_lshl_b32 s10, s{S_SL}, 14")
    a("s_add_u32 s10, s10, s12")
    a("s_add_u32 s11, s10, 1024")
    for k in range(2):
        a(f"s_add_u32 m0, s12, {DW + 1024 * k}")
        a("s_nop 0")
        a(f"buffer_load_dwordx4 v4, {RA}, s{10 + k} offen nt lds")
    a("v_mov_b32 v4, 0")
    a("v_mov_b32 v5, 0")
    a(f"v_mov_b32 v6, {ZB}")
    a("ds_write_b64 v6, v[4:5]")
    a(f"s_and_b32 s10, s{S_W}, 3")
    a("s_lshl_b32 s11, s10, 12")
    a("v_lshlrev_b32 v8, 8, v3")
    a("v_lshl_add_u32 v8, v2, 3, v8")
    a("v_add_u32 v8, s11, v8")
    a("v_lshrrev_b32 v9, 2, v2")
    a("v_lshl_add_u32 v10, v3, 2, v9")
    a("v_lshlrev_b32 v10, 10, v10")
    a("v_and_b32 v11, 3, v2")
    a("v_lshl_add_u32 v10, v11, 3, v10")
    a(f"s_lshl_b32 s11, s{S_W}, 7")
    a(f"s_add_u32 s12, s11, {DW}")
    a("v_add_u32 v10, s12, v10")
    a("v_lshlrev_b32 v12, 12, v9")
    a("v_lshrrev_b32 v13, 1, v3")
    a("v_lshl_add_u32 v12, v13, 7, v12")
    a("v_and_b32 v13, 1, v3")
    a("v_lshl_add_u32 v12, v13, 4, v12")
    a("s_lshl_b32 s12, s10, 10")
    a(f"s_add_u32 s12, s12, {WS_H}")
    a("v_add_u32 v12, s12, v12")
    a("s_lshl_b32 s12, s10, 2")
    a("v_lshlrev_b32 v13, 4, v1")
    a(f"v_add_u32 v13, {GP}, v13")
    a("v_add_u32 v14, s12, v13")
    a("v_lshlrev_b32 v15, 4, v3")
    a(f"v_add_u32 v15, {S1B}, v15")
    a("v_add_u32 v16, s12, v15")
    a("v_cmp_eq_u32 s[56:57], v9, v3")
    a(f"s_add_u32 s11, s11, {AB}")
    a("v_lshlrev_b32 v17, 1, v1")
    a("v_add_u32 v17, s11, v17")
    a("v_lshlrev_b32 v18, 5, v11")
    a("v_lshl_add_u32 v18, v3, 3, v18")
    a("v_add_u32 v18, s11, v18")
    for tau in range(4):
        a(f"v_cmp_eq_u32 vcc, {tau}, v9")
        a(f"v_cndmask_b32 v{20 + tau}, v6, v18, vcc")
    a("s_waitcnt vmcnt(0) lgkmcnt(0)")
    a("s_barrier")
    for tau in range(4):
        a(f"ds_read_b64_tr_b16 {vr(64 + 2 * tau, 2)}, v10 offset:{32 * tau}")
    for mtx in range(2):
        for t in range(4):
            for u in range(2):
                a(f"ds_read_b64_tr_b16 {vr(32 + 16 * mtx + 4 * t + 2 * u, 2)}, v8 offset:{UW * mtx + 1024 * t + 128 * u}")
    for p in range(4):
        a(f"v_mov_b32 v{72 + p}, 0x3f803f80")
    a("s_waitcnt lgkmcnt(0)")
    for t in range(4):
        for mtx in range(2):
            mfma16(76 + 4 * mtx, 72, 32 + 16 * mtx + 4 * t, None if t == 0 else 76 + 4 * mtx)
    a("ds_write_b32 v14, v76")
    a("ds_write_b32 v14, v80 offset:1024")
    a("s_waitcnt lgkmcnt(0)")
    a("s_barrier")
    a("ds_read_b128 v[76:79], v13")
    a("ds_read_b128 v[80:83], v13 offset:1024")
    a("s_waitcnt lgkmcnt(0)")
    for x, o in ((76, 24), (80, 25)):
        a(f"v_add_f32 v{x}, v{x}, v{x + 1}")
        a(f"v_add_f32 v{x + 2}, v{x + 2}, v{x + 3}")
        a(f"v_add_f32 v{o}, v{x}, v{x + 2}")
    a("s_barrier")

    TS(6)
    a("s_branch L_B_hcan")
    a.label("L_B_red")
    TS(6)
    a(f"s_cmp_lt_u32 s{S_I16}, 12")
    END_IF("scc1", 8)
    a(f"s_cmp_ge_u32 s{S_W}, 4")
    END_IF("scc1", 8)
    a(f"s_lshl_b32 s{S_R}, s{S_XCD}, 2")
    a(f"s_add_u32 s{S_R}, s{S_R}, s{S_I16}")
    a(f"s_sub_u32 s{S_R}, s{S_R}, 12")
    a(f"s_lshl_b32 s{S_R}, s{S_R}, 2")
    a(f"s_add_u32 s{S_R}, s{S_R}, s{S_W}")
    a(f"s_lshr_b32 s{S_BB}, s{S_R}, 5")
    a(f"s_and_b32 s{S_CH}, s{S_R}, 31")
    MK2, D2 = 112, 116
    sel_masks(MK2, 4)
    for k in range(4):
        a(f"v_and_b32 v{MK2 + k}, 0x3f803f80, v{MK2 + k}")
    a("v_lshrrev_b32 v4, 1, v2")
    a("v_lshl_add_u32 v4, v3, 3, v4")
    a("v_and_b32 v5, 1, v2")
    a("v_lshlrev_b32 v5, 4, v5")
    a("v_lshl_add_u32 v26, v3, 3, v5")
    a(f"s_lshl_b32 s10, s{S_R}, 5")
    a("v_and_b32 v27, 31, v26")
    a("v_add_u32 v27, s10, v27")
    a(f"global_load_dwordx2 v[28:29], v27, s[{S_X}:{S_X + 1}]")
    a(f"s_lshl_b32 s10, s{S_BB}, 17")
    a(f"s_lshl_b32 s11, s{S_CH}, 5")
    a("s_add_u32 s10, s10, s11")
    a(f"s_add_u32 s10, s10, {WS_AO}")
    a("v_lshl_add_u32 v4, v4, 10, v5")
    a("v_add_u32 v4, s10, v4")
    a(f"s_lshl_b32 s10, s{S_R}, 7")
    a(f"s_add_u32 s10, s10, {WS_H}")
    a("v_add_u32 v26, s10, v26")
    a("s_mov_b32 s10, 65536")
    a("s_mov_b32 s11, 98304")
    a("v_cmp_gt_u32 vcc, 2, v2")
    a("s_waitcnt vmcnt(0)")
    a("v_cndmask_b32 v28, 0, v28, vcc")
    a("v_cndmask_b32 v29, 0, v29, vcc")
    a("v_lshlrev_b32 v120, 16, v28")
    a("v_and_b32 v121, 0xffff0000, v28")
    a("v_lshlrev_b32 v122, 16, v29")
    a("v_and_b32 v123, 0xffff0000, v29")
    canary(4, 96, False)
    mpoll_data([(96 + 4 * i, f"buffer_load_dwordx4 {vr(96 + 4 * i, 4)}, v4, {WS}, {['0', k8(4), 's10', 's11'][i]} offen sc1") for i in range(4)], 20, 5)
    for i in range(4):
        mfma16(D2, MK2, 96 + 4 * i, 120 if i == 0 else D2)
    dpp_ror_reduce(range(D2, D2 + 4), (2, 4, 8))
    a(f"v_cvt_pk_bf16_f32 v28, v{D2}, v{D2 + 1}")
    a(f"v_cvt_pk_bf16_f32 v29, v{D2 + 2}, v{D2 + 3}")
    a("s_mov_b64 exec, 0x00030003")
    a(f"buffer_store_dwordx2 v[28:29], v26, {WS}, 0 offen sc1")
    TS(7)
    END(8)

    a.label("L_B_hcan")
    canary(12, 96, False)
    mpoll_data([(96 + 4 * t, f"buffer_load_dwordx4 {vr(96 + 4 * t, 4)}, v12, {WS}, 0 offen offset:{256 * t} sc1") for t in range(4)], 20, 5)
    TS(7)
    a(f"s_cmp_ge_u32 s{S_W}, 4")
    a("s_cbranch_scc1 L_B_stats")
    for t in range(4):
        for mtx in range(2):
            mfma16(76 + 4 * mtx, 96 + 4 * t, 32 + 16 * mtx + 4 * t, None if t == 0 else 76 + 4 * mtx)
    a("ds_write_b32 v14, v76")
    a("ds_write_b32 v14, v80 offset:1024")
    a("s_branch L_B_f1done")
    a.label("L_B_stats")
    for t in range(4):
        mfma16(76, 96 + 4 * t, 72, None if t == 0 else 76)
        mfma16(80, 96 + 4 * t, 96 + 4 * t, None if t == 0 else 80)
    a("s_mov_b64 exec, s[56:57]")
    a("ds_write_b32 v16, v76")
    a("ds_write_b32 v16, v80 offset:64")
    a("s_mov_b64 exec, -1")
    a.label("L_B_f1done")
    a("s_waitcnt lgkmcnt(0)")
    a("s_barrier")
    a("ds_read_b128 v[84:87], v15")
    a("ds_read_b128 v[88:91], v15 offset:64")
    a("ds_read_b128 v[76:79], v13")
    a("ds_read_b128 v[80:83], v13 offset:1024")
    a("s_waitcnt lgkmcnt(2)")
    for x in (84, 88):
        a(f"v_add_f32 v{x}, v{x}, v{x + 1}")
        a(f"v_add_f32 v{x + 2}, v{x + 2}, v{x + 3}")
        a(f"v_add_f32 v{x}, v{x}, v{x + 2}")
    a(f"v_mul_f32 v84, {hex(f32(1.0 / 512))}, v84")
    a(f"v_mul_f32 v88, {hex(f32(1.0 / 512))}, v88")
    a("v_fma_f32 v88, -v84, v84, v88")
    a("v_max_f32 v88, 0, v88")
    a(f"v_add_f32 v88, {hex(f32(1e-5))}, v88")
    a("v_rsq_f32 v88, v88")
    a("s_waitcnt lgkmcnt(0)")
    for x in (76, 80):
        a(f"v_add_f32 v{x}, v{x}, v{x + 1}")
        a(f"v_add_f32 v{x + 2}, v{x + 2}, v{x + 3}")
        a(f"v_add_f32 v{x}, v{x}, v{x + 2}")
    a("v_fma_f32 v76, -v84, v24, v76")
    a("v_fma_f32 v80, -v84, v25, v80")
    a("v_mul_f32 v76, v76, v88")
    a("v_mul_f32 v80, v80, v88")
    a(f"v_mul_f32 v77, {hex(f32(-math.log2(math.e)))}, v76")
    a("v_exp_f32 v77, v77")
    a("v_mul_f32 v76, v76, v80")
    a("v_add_f32 v77, 1.0, v77")
    a("v_rcp_f32 v77, v77")
    a("v_mul_f32 v76, v76, v77")
    a("v_cvt_pk_bf16_f32 v76, v76, v76")
    a("ds_write_b16 v17, v76")
    a("s_waitcnt lgkmcnt(0)")
    for tau in range(4):
        a(f"ds_read_b64 {vr(84 + 2 * tau, 2)}, v{20 + tau}")
    for tau in range(4):
        a(f"s_waitcnt lgkmcnt({3 - tau})")
        cin = "0" if tau == 0 else "v[76:79]"
        a(f"v_mfma_f32_16x16x16_bf16 v[76:79], {vr(64 + 2 * tau, 2)}, {vr(84 + 2 * tau, 2)}, {cin}")
    a("v_cvt_pk_bf16_f32 v80, v76, v77")
    a("v_cvt_pk_bf16_f32 v81, v78, v79")
    a(f"buffer_store_dwordx2 v[80:81], v31, {WS}, 0 offen sc1")
    TS(2)
    if cfg.ts:
        END(8)
    a.label("L_end")
    a("s_endpgm")
    a.label("L_code_end")

    body = a.render()
    hdr = open("sequential_preLN__compressed_kv_cla__swiglu_ffn__decode.s.ref").read().split("\n")
    head = []
    for line in hdr:
        if line.startswith("; @launch"):
            head.append("; @launch grid=(256,1,1) block=(512,1,1) lds=163840")
            break
        head.append(line)
    text = "\n".join(head) + f"""
.amdgcn_target "amdgcn-amd-amdhsa--gfx950"
.text
.globl {KNAME}
.p2align 8
.type {KNAME},@function
{KNAME}:
{body}.section .rodata,"a"
.p2align 6
.amdhsa_kernel {KNAME}
  .amdhsa_next_free_vgpr 256
  .amdhsa_next_free_sgpr 102
  .amdhsa_accum_offset 256
  .amdhsa_group_segment_fixed_size 0
  .amdhsa_kernarg_size 104
  .amdhsa_user_sgpr_count 2
  .amdhsa_user_sgpr_kernarg_segment_ptr 1
  .amdhsa_system_sgpr_workgroup_id_x 1
.end_amdhsa_kernel
"""
    return text


if __name__ == "__main__":
    cfg = Cfg()
    out = "sequential_preLN__compressed_kv_cla__swiglu_ffn__decode.s"
    for arg in sys.argv[1:]:
        if arg.startswith("out="):
            out = arg[4:]
        else:
            k, v = arg.split("=")
            assert hasattr(cfg, k), k
            setattr(cfg, k, int(v))
    open(out, "w").write(gen(cfg))
    print("wrote", out)
```

```python
import sys, math, struct
sys.path.insert(0, "dev")
from asmgen import Asm, vr, sr

KNAME = "sequential_preLN__compressed_kv_cla__swiglu_ffn__decode_kernel"

WS_EPOCH = 0x0
WS_H = 0x004000
WS_GO = 0x008000
WS_QPG = 0x010000
WS_CLR = 0x00C000
WS_FL = 0x0E0000
WS_CK = 0x700000
WS_QPG2 = 0x600000
WS_QL = 0x080000
WS_ST = 0x0C0000
WS_AO = 0x100000
WS_FP = 0x180000
WS_OP = 0x200000
WS_DBG = 0x800000
WS_SIZE = 0x1000000

NSLICE = 86
SPIN = 1 << 19


def f32(x):
    return struct.unpack("<I", struct.pack("<f", x))[0]


def G(x):
    return [0, 2, 3, 1][x]


def FSW(k):
    return ((k % 4) << 2) | G((k // 4) % 4)


class Cfg:
    ts = 0
    dbg = 0
    prio_pv = 1
    b_delay = 0
    qsleep = 1
    uv_early = 0
    pretouch = 0
    clr_pos = 0
    csleep = 1
    nt_wo = 1
    nt_ffn = 1
    xgate = 3
    e1full = 1
    dma_depth = 8
    dma_n = 16
    ukpf = 0
    ffn_early = 0
    e1local = 1
    wo_depth = 0
    wo_n = 32
    ckpf = 0
    ukpf_n = 8
    q3_at = 0
    b0_at = 31
    ffnpf = 0
    mp = 0
    fl = 0
    scout = 0
    ssleep = 4
    go_at = 32
    bs_at = -1
    pperm = 1
    e1lds = 1
    uk_delay = 0
    bs_mode = 0
    uk_late = 0
    ffnpf2 = 0
    x3i = 1
    out_sc1 = 0
    tlb = 0
    fmap = 0
    direct = 0
    ck = 3
    stpre = 1
    noack = 1
    fe = 3


def gen(cfg):
    a = Asm()
    S_X, S_CKV, S_WQ, S_WUK, S_WUV, S_WO, S_WG, S_WU, S_WD, S_OUT, S_WS = 16, 18, 20, 22, 24, 26, 30, 32, 34, 36, 40
    S_W, S_XCD, S_I16 = 3, 4, 5
    S_K8 = 64
    SRD_WS, SRD_A, SRD_B = 72, 76, 80
    S_TS = 84
    WS = f"s[{SRD_WS}:{SRD_WS + 3}]"
    RA = f"s[{SRD_A}:{SRD_A + 3}]"
    RB = f"s[{SRD_B}:{SRD_B + 3}]"
    DPPM = "row_mask:0xf bank_mask:0xf"
    inA = [True]

    def TS(idx, lvl=1):
        if not cfg.ts:
            return
        if cfg.ts == 2 and lvl == 1 and idx in (3, 4, 5) and inA[0]:
            return
        if lvl == 2 and cfg.ts != 2:
            return
        if lvl == 3 and cfg.ts != 3:
            return
        if cfg.ts == 3 and lvl == 1 and idx in (1, 2, 6, 7) and not inA[0]:
            return
        a(f"s_memrealtime s[{S_TS + 2 * idx}:{S_TS + 2 * idx + 1}]")
        a("s_waitcnt lgkmcnt(0)")

    def END(n=8):
        if cfg.ts:
            a("s_mov_b64 exec, 1")
            a(f"s_lshl_b32 s8, s2, 3")
            a(f"s_add_u32 s8, s8, s{S_W}")
            a(f"s_lshl_b32 s8, s8, 6")
            a(f"s_add_u32 s8, s8, {WS_DBG}")
            a("v_mov_b32 v2, s8")
            for i in range(n):
                a(f"v_mov_b32 v3, s{S_TS + 2 * i}")
                a(f"buffer_store_dword v3, v2, {WS}, 0 offen offset:{4 * i}")
            a("s_waitcnt vmcnt(0)")
        a("s_endpgm")

    def END_IF(cond_branch_true, n=8):
        if cfg.ts:
            lab = a.newlabel("Lcont")
            a(f"s_cbranch_{'scc0' if cond_branch_true == 'scc1' else 'scc1'} {lab}")
            END(n)
            a.label(lab)
        else:
            a(f"s_cbranch_{cond_branch_true} L_end")

    def srd(dst, ptr, nbytes):
        a(f"s_mov_b32 s{dst}, s{ptr}")
        a(f"s_mov_b32 s{dst + 1}, s{ptr + 1}")
        a(f"s_mov_b32 s{dst + 2}, {nbytes}")
        a(f"s_mov_b32 s{dst + 3}, 0x20000")

    def k8(i):
        return "0" if i == 0 else f"s{S_K8 + i}"

    def tags():
        a("s_add_u32 s44, s44, 1")
        a("s_mul_i32 s48, s44, 0x9E3779B1")
        a("s_xor_b32 s48, s48, 0x85EBCA6B")
        a("s_mul_i32 s49, s44, 0xC2B2AE35")
        a("s_add_u32 s49, s49, 0x27D4EB2F")

    def perm_set(src, dst):
        for c in range(8):
            dw, e = c // 2, c % 2
            sel = "s14" if e == 0 else "s15"
            for p in range(4):
                a(f"v_perm_b32 v{dst + 4 * c + p}, v{src + 4 * (2 * p + 1) + dw}, v{src + 4 * (2 * p) + dw}, {sel}")

    def swap_reduce(reg, tmp, which, op="v_add_f32"):
        a(f"v_mov_b32 v{tmp}, v{reg}")
        a(f"v_permlane{which}_swap_b32 v{reg}, v{tmp}")
        a(f"{op} v{reg}, v{reg}, v{tmp}")

    def dpp_ror_reduce(regs, rors, op="v_add_f32"):
        for r in rors:
            for x in regs:
                a(f"{op}_dpp v{x}, v{x}, v{x} row_ror:{r} {DPPM}")

    def mfma16(d, A, B, c):
        cin = "0" if c is None else vr(c, 4)
        a(f"v_mfma_f32_16x16x32_bf16 {vr(d, 4)}, {vr(A, 4)}, {vr(B, 4)}, {cin}")

    def valid_check(regs, tmp, fail_label):
        regs = list(regs)
        a(f"v_max3_u32 v{tmp}, v{regs[0]}, v{regs[1]}, v{regs[2]}")
        rest = regs[3:]
        while len(rest) >= 2:
            a(f"v_max3_u32 v{tmp}, v{tmp}, v{rest[0]}, v{rest[1]}")
            rest = rest[2:]
        if rest:
            a(f"v_max_u32 v{tmp}, v{tmp}, v{rest[0]}")
        a(f"v_cmp_eq_u32 vcc, -1, v{tmp}")
        ok = a.newlabel("Lok")
        a(f"s_cbranch_vccz {ok}")
        a("s_sub_u32 s13, s13, 1")
        a(f"s_cbranch_scc0 {fail_label}")
        a("s_mov_b32 s13, 0")
        a.label(ok)

    def canary(addr, dst, tagged, so="0", lanes=1):
        lab = a.newlabel("Lcan")
        done = a.newlabel("Lcand")
        a(f"s_mov_b64 exec, {hex(lanes)}")
        a.label(lab)
        a(f"buffer_load_dwordx4 {vr(dst, 4)}, v{addr}, {WS}, {so} offen sc1")
        a("s_waitcnt vmcnt(0)")
        if tagged:
            a(f"v_cmp_ne_u64 vcc, s[48:49], {vr(dst + 2, 2)}")
        else:
            a(f"v_cmp_eq_u32 vcc, -1, v{dst}")
        a(f"s_cbranch_vccz {done}")
        if cfg.csleep:
            a(f"s_sleep {cfg.csleep}")
        a("s_sub_u32 s13, s13, 1")
        a(f"s_cbranch_scc0 {lab}")
        a("s_mov_b32 s13, 0")
        a.label(done)
        a("s_mov_b64 exec, -1")

    def mpoll_tag(addr, dst, init="-1", sleep=0):
        lab = a.newlabel("Lmp")
        done = a.newlabel("Lmpd")
        a(f"s_mov_b64 exec, {init}")
        a.label(lab)
        a(f"buffer_load_dwordx4 {vr(dst, 4)}, v{addr}, {WS}, 0 offen sc1")
        a("s_waitcnt vmcnt(0)")
        a(f"v_cmp_ne_u64 vcc, s[48:49], {vr(dst + 2, 2)}")
        a("s_and_b64 exec, exec, vcc")
        a(f"s_cbranch_scc0 {done}")
        if sleep:
            a(f"s_sleep {sleep}")
        a("s_sub_u32 s13, s13, 1")
        a(f"s_cbranch_scc0 {lab}")
        a("s_mov_b32 s13, 0")
        a.label(done)
        a("s_mov_b64 exec, -1")

    def mpoll_data(loads, M, tmp, inits=None):
        n = len(loads)
        if not cfg.mp:
            lab = a.newlabel("Lsp")
            a.label(lab)
            regs = []
            for i, (dst, text) in enumerate(loads):
                if inits and inits[i] != "-1":
                    a(f"s_mov_b64 exec, {inits[i]}")
                a(text)
                if inits and inits[i] != "-1":
                    a("s_mov_b64 exec, -1")
                regs += list(range(dst, dst + 4))
            a("s_waitcnt vmcnt(0)")
            valid_check(regs, tmp, lab)
            return
        lab = a.newlabel("Lmd")
        done = a.newlabel("Lmdd")
        ANY = M + 2 * n
        for i in range(n):
            a(f"s_mov_b64 s[{M + 2 * i}:{M + 2 * i + 1}], {inits[i] if inits else '-1'}")
        a.label(lab)
        for i, (dst, text) in enumerate(loads):
            sk = a.newlabel("Lsk")
            a(f"s_mov_b64 exec, s[{M + 2 * i}:{M + 2 * i + 1}]")
            a(f"s_cbranch_execz {sk}")
            a(text)
            a.label(sk)
        a(f"s_mov_b64 s[{ANY}:{ANY + 1}], 0")
        a("s_waitcnt vmcnt(0)")
        for i, (dst, text) in enumerate(loads):
            a(f"s_mov_b64 exec, s[{M + 2 * i}:{M + 2 * i + 1}]")
            a(f"v_max3_u32 v{tmp}, v{dst}, v{dst + 1}, v{dst + 2}")
            a(f"v_max_u32 v{tmp}, v{tmp}, v{dst + 3}")
            a(f"v_cmp_eq_u32 vcc, -1, v{tmp}")
            a(f"s_and_b64 s[{M + 2 * i}:{M + 2 * i + 1}], s[{M + 2 * i}:{M + 2 * i + 1}], vcc")
            a(f"s_or_b64 s[{ANY}:{ANY + 1}], s[{ANY}:{ANY + 1}], s[{M + 2 * i}:{M + 2 * i + 1}]")
        a(f"s_cbranch_scc0 {done}")
        a("s_sub_u32 s13, s13, 1")
        a(f"s_cbranch_scc0 {lab}")
        a("s_mov_b32 s13, 0")
        a.label(done)
        a("s_mov_b64 exec, -1")

    def sel_masks(M, tmp):
        a(f"v_and_b32 v{tmp}, 1, v2")
        a(f"v_lshlrev_b32 v{tmp}, 4, v{tmp}")
        a(f"v_mov_b32 v{tmp + 1}, 0xffff")
        a(f"v_lshlrev_b32 v{tmp}, v{tmp}, v{tmp + 1}")
        a(f"v_lshrrev_b32 v{tmp + 1}, 1, v2")
        for p in range(4):
            a(f"v_cmp_eq_u32 vcc, {p}, v{tmp + 1}")
            a(f"v_cndmask_b32 v{M + p}, 0, v{tmp}, vcc")

    a.label("L_code_start")
    a("s_cmp_ge_u32 s2, 256")
    a("s_cbranch_scc1 L_end")
    a("s_load_dwordx16 s[16:31], s[0:1], 0")
    a("s_load_dwordx8 s[32:39], s[0:1], 64")
    a("s_load_dwordx2 s[40:41], s[0:1], 96")
    if cfg.ts or cfg.dbg:
        a(f"s_memrealtime s[{S_TS}:{S_TS + 1}]")
    a("v_lshrrev_b32 v2, 6, v0")
    a("v_and_b32 v1, 63, v0")
    a(f"v_readfirstlane_b32 s{S_W}, v2")
    a("v_and_b32 v2, 15, v1")
    a("v_lshrrev_b32 v3, 4, v1")
    a(f"s_and_b32 s{S_XCD}, s2, 7")
    a(f"s_lshr_b32 s{S_I16}, s2, 3")
    for i in range(1, 8):
        a(f"s_mov_b32 s{S_K8 + i}, {i * 8192}")
    a(f"s_mov_b32 s13, {SPIN}")
    a(f"s_cmp_ge_u32 s{S_I16}, 16")
    a("s_cbranch_scc1 L_B")

    S_H, S_J, S_A = 6, 7, 9
    a("s_mov_b32 s14, 0x05040100")
    a("s_mov_b32 s15, 0x07060302")
    a(f"s_lshl_b32 s{S_A}, s{S_XCD}, 4")
    a(f"s_add_u32 s{S_A}, s{S_A}, s{S_I16}")
    a(f"s_lshr_b32 s{S_H}, s{S_A}, 2")
    a(f"s_and_b32 s{S_J}, s{S_A}, 3")
    S_HF, S_JF = 42, 43
    if cfg.fmap == 0:
        a(f"s_mov_b32 s{S_HF}, s{S_H}")
        a(f"s_mov_b32 s{S_JF}, s{S_J}")
    elif cfg.fmap == 1:
        a(f"s_lshr_b32 s{S_HF}, s{S_XCD}, 1")
        a(f"s_lshl_b32 s{S_HF}, s{S_HF}, 3")
        a(f"s_and_b32 s8, s{S_I16}, 7")
        a(f"s_add_u32 s{S_HF}, s{S_HF}, s8")
        a(f"s_and_b32 s{S_JF}, s{S_XCD}, 1")
        a(f"s_lshl_b32 s{S_JF}, s{S_JF}, 1")
        a(f"s_lshr_b32 s8, s{S_I16}, 3")
        a(f"s_add_u32 s{S_JF}, s{S_JF}, s8")
    else:
        a(f"s_and_b32 s{S_HF}, s{S_XCD}, 1")
        a(f"s_lshl_b32 s{S_HF}, s{S_HF}, 4")
        a(f"s_add_u32 s{S_HF}, s{S_HF}, s{S_I16}")
        a(f"s_lshr_b32 s{S_JF}, s{S_XCD}, 1")
    a(f"s_cmp_ge_u32 s{S_W}, 4")
    a("s_cbranch_scc1 L_Ahi")

    a("v_lshrrev_b32 v4, 2, v2")
    a("v_lshlrev_b32 v4, 10, v4")
    a("v_and_b32 v5, 3, v1")
    a("v_lshl_add_u32 v5, v3, 2, v5")
    a("v_lshl_add_u32 v5, v5, 4, v4")
    a(f"s_lshl_b32 s8, s{S_JF}, 7")
    a(f"s_lshl_b32 s10, s{S_W}, 5")
    a("s_add_u32 s8, s8, s10")
    a("s_lshl_b32 s10, s8, 1")
    a("v_lshl_add_u32 v6, v3, 4, v4")
    a("v_add_u32 v6, s10, v6")
    a("s_lshl_b32 s10, s8, 13")
    a(f"s_lshl_b32 s11, s{S_HF}, 8")
    a("s_add_u32 s10, s10, s11")
    a("v_lshlrev_b32 v7, 16, v3")
    a("v_lshl_add_u32 v7, v2, 4, v7")
    a("v_add_u32 v7, s10, v7")
    a("s_waitcnt lgkmcnt(0)")
    srd(SRD_A, S_WQ, 4 << 20)
    for i in range(4):
        a(f"global_load_dwordx4 {vr(8 + 4 * i, 4)}, v5, s[{S_X}:{S_X + 1}] offset:{256 * i}")
    a(f"global_load_dwordx4 v[24:27], v6, s[{S_X}:{S_X + 1}]")
    for jj in range(8):
        a(f"buffer_load_dwordx4 {vr(32 + 4 * jj, 4)}, v7, {RA}, {k8(jj)} offen nt")
    a(f"s_load_dword s44, s[{S_WS}:{S_WS + 1}], {WS_EPOCH}")
    srd(SRD_WS, S_WS, WS_SIZE)
    srd(SRD_B, S_WUV, 4 << 20)
    a("v_mov_b32 v28, 0")
    a("v_mov_b32 v29, 0")
    a("s_mov_b32 s10, 0x3f803f80")
    a("s_waitcnt vmcnt(9)")
    for i in range(16):
        a(f"v_dot2c_f32_bf16 v28, s10, v{8 + i}")
        a(f"v_dot2c_f32_bf16 v29, v{8 + i}, v{8 + i}")
    for x in (28, 29):
        a(f"v_add_f32_dpp v{x}, v{x}, v{x} quad_perm:[1,0,3,2] {DPPM}")
    for x in (28, 29):
        a(f"v_add_f32_dpp v{x}, v{x}, v{x} quad_perm:[2,3,0,1] {DPPM}")
    for wh in (16, 32):
        swap_reduce(28, 30, wh)
        swap_reduce(29, 31, wh)
    a(f"v_mul_f32 v28, {hex(f32(1.0 / 512))}, v28")
    a(f"v_mul_f32 v29, {hex(f32(1.0 / 512))}, v29")
    a("v_fma_f32 v29, -v28, v28, v29")
    a("v_max_f32 v29, 0, v29")
    a(f"v_add_f32 v29, {hex(f32(1e-5))}, v29")
    a("v_rsq_f32 v29, v29")
    a("s_waitcnt vmcnt(8)")
    a("v_mul_f32 v28, v28, v29")
    for p in range(4):
        a(f"v_lshlrev_b32 v{8 + 2 * p}, 16, v{24 + p}")
        a(f"v_and_b32 v{9 + 2 * p}, 0xffff0000, v{24 + p}")
    for k in range(8):
        a(f"v_fma_f32 v{8 + k}, v{8 + k}, v29, -v28")
    for p in range(4):
        a(f"v_cvt_pk_bf16_f32 v{24 + p}, v{8 + 2 * p}, v{9 + 2 * p}")
    a(f"s_lshl_b32 s10, s{S_W}, 11")
    a("v_lshlrev_b32 v8, 9, v3")
    a("v_lshl_add_u32 v8, v2, 5, v8")
    a("v_add_u32 v8, s10, v8")
    a("v_and_b32 v9, 3, v1")
    a("v_lshlrev_b32 v11, 4, v9")
    a("v_lshlrev_b32 v9, 9, v9")
    a("v_bfe_u32 v10, v1, 2, 2")
    a("v_lshl_add_u32 v9, v10, 5, v9")
    a("v_lshrrev_b32 v10, 5, v1")
    a("v_lshl_add_u32 v9, v10, 7, v9")
    a(f"s_lshl_b32 s10, s{S_W}, 8")
    a("v_add_u32 v9, s10, v9")
    a("v_and_b32 v10, 1, v3")
    a("v_lshl_add_u32 v9, v10, 4, v9")
    a("v_cmp_eq_u32 s[56:57], 1, v10")
    a(f"s_lshl_b32 s10, s{S_HF}, 13")
    a(f"s_lshl_b32 s11, s{S_W}, 12")
    a("s_add_u32 s10, s10, s11")
    a(f"s_lshl_b32 s11, s{S_JF}, 6")
    a("s_add_u32 s10, s10, s11")
    a(f"s_add_u32 s10, s10, {WS_QPG}")
    a("v_lshrrev_b32 v10, 2, v1")
    a("v_lshl_add_u32 v11, v10, 8, v11")
    a("v_add_u32 v11, s10, v11")
    a("s_waitcnt lgkmcnt(0)")
    tags()
    a("v_mov_b32 v12, s48")
    a("v_mov_b32 v13, s49")
    if cfg.pperm:
        for pp in range(4):
            a(f"s_waitcnt vmcnt({6 - 2 * pp})")
            for c in range(8):
                dw, e = c // 2, c % 2
                a(f"v_perm_b32 v{64 + 4 * c + pp}, v{32 + 4 * (2 * pp + 1) + dw}, v{32 + 4 * (2 * pp) + dw}, {'s14' if e == 0 else 's15'}")
    else:
        a("s_waitcnt vmcnt(0)")
    TS(1)

    def uv_loads():
        a(f"s_lshl_b32 s10, s{S_J}, 20")
        a(f"s_lshl_b32 s11, s{S_W}, 18")
        a("s_add_u32 s10, s10, s11")
        a(f"s_lshl_b32 s11, s{S_H}, 8")
        a("s_add_u32 s10, s10, s11")
        a("v_lshlrev_b32 v7, 16, v3")
        a("v_lshl_add_u32 v7, v2, 4, v7")
        a("v_add_u32 v7, s10, v7")
        for jj in range(8):
            a(f"buffer_load_dwordx4 {vr(128 + 4 * jj, 4)}, v7, {RB}, {k8(jj)} offen nt")

    if cfg.uv_early == 1:
        uv_loads()
    if not cfg.pperm:
        perm_set(32, 64)
    for c in range(8):
        mfma16(96 + 4 * c, 24, 64 + 4 * c, None)
    for c in range(0, 8, 2):
        a(f"ds_write2_b32 v8, v{96 + 4 * c}, v{100 + 4 * c} offset0:{c} offset1:{c + 1}")
    a("s_waitcnt lgkmcnt(0)")
    a("s_barrier")
    a(f"s_cmp_ge_u32 s{S_W}, 2")
    a("s_cbranch_scc1 L_Alo_nopub")
    for i in range(4):
        a(f"ds_read_b128 {vr(32 + 4 * i, 4)}, v9 offset:{2048 * i}")
    a("s_waitcnt lgkmcnt(2)")
    for k in range(4):
        a(f"v_add_f32 v{32 + k}, v{32 + k}, v{36 + k}")
    a("s_waitcnt lgkmcnt(0)")
    for k in range(4):
        a(f"v_add_f32 v{40 + k}, v{40 + k}, v{44 + k}")
    for k in range(4):
        a(f"v_add_f32 v{32 + k}, v{32 + k}, v{40 + k}")
    a("v_cvt_pk_bf16_f32 v36, v32, v33")
    a("v_cvt_pk_bf16_f32 v37, v34, v35")
    a("v_cndmask_b32 v16, v12, v36, s[56:57]")
    a("v_cndmask_b32 v17, v13, v37, s[56:57]")
    a("v_cndmask_b32 v18, v36, v12, s[56:57]")
    a("v_cndmask_b32 v19, v37, v13, s[56:57]")
    if cfg.e1local:
        a(f"s_mov_b32 s10, {WS_QPG2 - WS_QPG}")
        a(f"buffer_store_dwordx4 v[16:19], v11, {WS}, s10 offen")
    a(f"buffer_store_dwordx4 v[16:19], v11, {WS}, 0 offen sc1")
    a.label("L_Alo_nopub")
    TS(2)
    if cfg.e1lds:
        a("s_barrier")
    if cfg.xgate in (1, 2):
        a(f"s_cmp_eq_u32 s{S_W}, 3")
        a("s_cbranch_scc0 L_Alo_nogate")
        a(f"s_lshl_b32 s10, s{S_A}, 7")
        a(f"s_add_u32 s10, s10, {WS_GO}")
        a("v_mov_b32 v16, s10")
        canary(16, 20, True)
        a.label("L_Alo_nogate")
    a("s_barrier")
    if cfg.direct:
        a(f"s_cmp_eq_u32 s{S_W}, 2")
        a("s_cbranch_scc0 L_Alo_noclr")
        a(f"s_lshl_b32 s10, s{S_A}, 15")
        a(f"s_add_u32 s10, s10, {WS_OP}")
        a("v_lshlrev_b32 v16, 4, v1")
        for k in range(4):
            a(f"v_mov_b32 v{20 + k}, -1")
        for k in range(8):
            for q in range(4):
                a(f"buffer_store_dwordx4 v[20:23], v16, {WS}, s10 offen offset:{1024 * q} sc1")
            a("s_add_u32 s10, s10, 4096")
        a(f"s_lshl_b32 s10, s{S_A}, 7")
        a(f"s_add_u32 s10, s10, {WS_CLR}")
        a("v_mov_b32 v16, s10")
        a("v_mov_b32 v10, 0")
        a("v_mov_b32 v11, 0")
        a("s_mov_b64 exec, 1")
        a("s_waitcnt vmcnt(0)")
        a(f"buffer_store_dwordx4 v[10:13], v16, {WS}, 0 offen sc1")
        a("s_mov_b64 exec, -1")
        a.haz_flush(3)
        a.label("L_Alo_noclr")
    if cfg.ckpf:
        srd(SRD_A, S_CKV, 16 << 20)
        a(f"s_lshl_b32 s10, s{S_A}, 17")
        a(f"s_lshl_b32 s11, s{S_W}, 15")
        a("s_add_u32 s10, s10, s11")
        a("v_lshlrev_b32 v16, 10, v3")
        a("v_lshl_add_u32 v16, v2, 4, v16")
        for k in range(cfg.ckpf):
            i = 32 - cfg.ckpf + k
            a(f"s_add_u32 s11, s10, {(i % 8) * 4096 + (i // 8) * 256}")
            a(f"buffer_load_dwordx4 {vr(32 + 4 * k, 4)}, v16, {RA}, s11 offen")
    if cfg.xgate == 3:
        a(f"s_lshl_b32 s10, s{S_A}, 7")
        a(f"s_add_u32 s10, s10, {WS_GO}")
        a("v_mov_b32 v16, s10")
        canary(16, 20, True)
    if cfg.uv_early != 1:
        uv_loads()
    if cfg.ffnpf:
        ntf = " nt" if cfg.ffnpf == 1 else ""
        srd(SRD_A, S_WG, 512 * 2752)
        srd(SRD_B, S_WU, 512 * 2752)
        a("v_and_b32 v16, 7, v1")
        a("v_lshlrev_b32 v16, 6, v16")
        a("v_min_u32 v16, 348, v16")
        a("v_lshrrev_b32 v17, 3, v1")
        a("v_mul_u32_u24 v17, 2752, v17")
        a("v_add_u32 v16, v16, v17")
        a(f"s_lshl_b32 s10, s{S_I16}, 2")
        a(f"s_add_u32 s10, s10, s{S_W}")
        a(f"s_mul_i32 s10, s10, {8 * 2752}")
        a(f"s_mul_i32 s11, s{S_XCD}, 352")
        a("s_add_u32 s10, s10, s11")
        a(f"buffer_load_dword v18, v16, {RA}, s10 offen{ntf}")
        a(f"buffer_load_dword v19, v16, {RB}, s10 offen{ntf}")
        srd(SRD_A, S_WD, 1376 * 1024)
        a("v_lshlrev_b32 v16, 6, v0")
        a("v_min_u32 v16, 11200, v16")
        a(f"s_mul_i32 s10, s{S_A}, 11264")
        a(f"buffer_load_dword v20, v16, {RA}, s10 offen{ntf}")
        a("s_waitcnt vmcnt(3)")
    else:
        a("s_waitcnt vmcnt(0)")
    perm_set(128, 160)
    a("s_branch L_A_x")

    a.label("L_Ahi")
    a(f"s_sub_u32 s12, s{S_W}, 4")
    a(f"s_lshl_b32 s8, s{S_JF}, 7")
    a("s_lshl_b32 s10, s12, 5")
    a("s_add_u32 s8, s8, s10")
    a("s_lshl_b32 s10, s8, 13")
    a(f"s_lshl_b32 s11, s{S_HF}, 8")
    a("s_add_u32 s10, s10, s11")
    a("s_mov_b32 s57, s10")
    a("v_xor_b32 v7, v2, v3")
    a("v_lshlrev_b32 v7, 4, v7")
    a("v_lshl_add_u32 v30, v2, 8, v7")
    a("v_lshl_add_u32 v7, v3, 13, v7")
    a("s_lshl_b32 s11, s12, 13")
    a("s_add_u32 s11, s11, 16384")
    a("v_add_u32 v30, s11, v30")
    a("s_getpc_b64 s[62:63]")
    a.label("L_pc")
    a("s_sub_u32 s62, s62, L_pc-L_code_start")
    a("s_subb_u32 s63, s63, 0")
    a("s_lshl_b32 s10, s12, 4")
    a(f"s_add_u32 s10, s10, s{S_I16}")
    a("s_lshl_b32 s10, s10, 10")
    a("v_lshlrev_b32 v4, 4, v1")
    a("v_add_u32 v5, s10, v4")
    a("v_min_u32 v5, L_code_end-L_code_start-16, v5")
    a("global_load_dwordx4 v[8:11], v5, s[62:63]")
    a(f"s_lshl_b32 s10, s{S_HF}, 13")
    a(f"s_add_u32 s10, s10, {WS_QPG2 if cfg.e1local else WS_QPG}")
    a("v_add_u32 v6, s10, v4")
    a(f"v_subrev_u32 v27, {WS_QPG2 - WS_QPG}, v6")
    a("v_mov_b32 v26, v6")
    a("s_waitcnt lgkmcnt(0)")
    srd(SRD_A, S_WUK, 4 << 20)
    srd(SRD_WS, S_WS, WS_SIZE)
    a(f"s_load_dword s44, s[{S_WS}:{S_WS + 1}], {WS_EPOCH}")
    a("s_mov_b32 s51, 4096")

    def qpg_load(k):
        so = "0" if k < 4 else "s51"
        a(f"buffer_load_dwordx4 {vr(64 + 4 * k, 4)}, v6, {WS}, {so} offen offset:{1024 * (k % 4)} sc1")

    if cfg.pretouch:
        a("s_lshl_b32 s10, s12, 11")
        a(f"buffer_load_dwordx4 v[64:67], v6, {WS}, s10 offen sc1")
        a(f"buffer_load_dwordx4 v[68:71], v6, {WS}, s10 offen offset:1024 sc1")
    def uk_dma():
        for k in range(8):
            a(f"s_add_u32 m0, s11, {1024 * k}")
            a(f"v_xor_b32 v{28 + k % 2}, {(k % 4) * 64}, v7")
            a(f"buffer_load_dwordx4 v{28 + k % 2}, {RA}, s57 offen nt lds")
            if k < 7:
                a("s_add_u32 s57, s57, 32768")

    if not cfg.uk_late:
        uk_dma()
    a(f"s_add_u32 s50, s12, s{S_J}")
    a("s_and_b32 s50, s50, 3")
    a(f"s_lshl_b32 s10, s{S_A}, 10")
    a("s_lshl_b32 s56, s50, 8")
    a("s_add_u32 s10, s10, s56")
    a(f"s_add_u32 s10, s10, {WS_AO}")
    a("v_lshlrev_b32 v31, 17, v3")
    a("v_lshl_add_u32 v31, v2, 4, v31")
    a("v_add_u32 v31, s10, v31")
    for k in range(4):
        a(f"v_mov_b32 v{12 + k}, -1")
    a(f"buffer_store_dwordx4 v[12:15], v31, {WS}, 0 offen sc1")
    a("s_cmp_eq_u32 s12, 0")
    a("s_cbranch_scc0 L_Ahi_noh")
    a(f"s_lshl_b32 s10, s{S_A}, 7")
    a(f"s_add_u32 s10, s10, {WS_H}")
    a("v_add_u32 v5, s10, v4")
    a("s_mov_b64 exec, 0xff")
    a(f"buffer_store_dwordx4 v[12:15], v5, {WS}, 0 offen sc1")
    a("s_mov_b64 exec, -1")
    a.label("L_Ahi_noh")
    a(f"s_lshl_b32 s10, s{S_HF}, 11")
    a("s_lshl_b32 s56, s8, 2")
    a("s_add_u32 s10, s10, s56")
    a(f"s_add_u32 s10, s10, {WS_QL}")
    a("v_and_b32 v16, 3, v2")
    a("v_lshlrev_b32 v17, 16, v16")
    a("v_lshrrev_b32 v18, 2, v2")
    a("v_lshl_add_u32 v17, v18, 6, v17")
    a("v_lshl_add_u32 v17, v3, 4, v17")
    a("v_add_u32 v17, s10, v17")
    a("v_cmp_eq_u32 s[58:59], 1, v18")
    srd(SRD_B, S_WO, 4 << 20)
    a(f"s_lshl_b32 s10, s{S_H}, 17")
    a("s_lshl_b32 s56, s50, 8")
    a("s_add_u32 s10, s10, s56")
    a("v_lshlrev_b32 v19, 13, v3")
    a("v_lshl_add_u32 v19, v2, 4, v19")
    a("v_add_u32 v19, s10, v19")
    a("s_waitcnt lgkmcnt(0)")
    tags()
    a("v_mov_b32 v22, s48")
    a("v_mov_b32 v23, s49")
    if cfg.ts == 2:
        a("s_waitcnt vmcnt(11)")
        TS(3, 2)
        a("s_waitcnt vmcnt(9)")
        TS(4, 2)
        a("s_waitcnt vmcnt(1)")
        TS(5, 2)
    a("s_barrier")
    if cfg.uk_late:
        uk_dma()
    a("s_waitcnt vmcnt(0)")
    TS(1)
    for t in range(4):
        a(f"v_xor_b32 v28, {t * 64}, v30")
        for ct in range(2):
            a(f"ds_read_b128 {vr(32 + 16 * ct + 4 * t, 4)}, v28 offset:{4096 * ct}")
    if cfg.e1lds:
        a("s_lshl_b32 s10, s12, 11")
        a("s_lshl_b32 s11, s12, 10")
        a("v_add_u32 v5, 8192, v4")
        a("v_add_u32 v29, s11, v5")
        a.label("L_Ahi_poll")
        a(f"buffer_load_dwordx4 v[64:67], v6, {WS}, s10 offen sc1")
        a(f"buffer_load_dwordx4 v[68:71], v6, {WS}, s10 offen offset:1024 sc1")
        a("s_waitcnt vmcnt(1)")
        a("v_cmp_ne_u64 s[60:61], s[48:49], v[64:65]")
        a("s_waitcnt vmcnt(0)")
        a("v_cmp_ne_u64 vcc, s[48:49], v[70:71]")
        a("s_or_b64 s[60:61], s[60:61], vcc")
        a("s_cbranch_scc0 L_Ahi_got")
        if cfg.e1local:
            a("s_and_b32 s56, s13, 7")
            a("s_cmp_eq_u32 s56, 1")
            a("s_cselect_b64 vcc, -1, 0")
            a("v_cndmask_b32 v6, v26, v27, vcc")
        a("s_sub_u32 s13, s13, 1")
        a("s_cbranch_scc0 L_Ahi_poll")
        a("s_mov_b32 s13, 0")
        a.label("L_Ahi_got")
        a("ds_write_b128 v29, v[66:69]")
        a("s_waitcnt lgkmcnt(0)")
        a("s_barrier")
        for t in range(4):
            a(f"ds_read_b128 {vr(72 + 4 * t, 4)}, v5 offset:{1024 * t}")
        TS(2)
        for t in range(4):
            a(f"s_waitcnt lgkmcnt({3 - t})")
            for ct in range(2):
                mfma16(96 + 4 * ct, 32 + 16 * ct + 4 * t, 72 + 4 * t, None if t == 0 else 96 + 4 * ct)
    else:
        a.label("L_Ahi_poll")
        for k in range(8):
            qpg_load(k)
        a("s_mov_b64 s[60:61], 0")
        for k in range(8):
            a(f"s_waitcnt vmcnt({7 - k})")
            tr = 64 + 4 * k + (0 if k % 2 == 0 else 2)
            a(f"v_cmp_ne_u64 vcc, s[48:49], {vr(tr, 2)}")
            a("s_or_b64 s[60:61], s[60:61], vcc")
        a("s_cmp_eq_u64 s[60:61], 0")
        a("s_cbranch_scc1 L_Ahi_got")
        if cfg.e1local:
            a("s_and_b32 s10, s13, 7")
            a("s_cmp_eq_u32 s10, 1")
            a("s_cselect_b64 vcc, -1, 0")
            a("v_cndmask_b32 v6, v26, v27, vcc")
        a("s_sub_u32 s13, s13, 1")
        a("s_cbranch_scc0 L_Ahi_poll")
        a("s_mov_b32 s13, 0")
        a.label("L_Ahi_got")
        a("s_waitcnt lgkmcnt(0)")
        TS(2)
        for t in range(4):
            for ct in range(2):
                mfma16(96 + 4 * ct, 32 + 16 * ct + 4 * t, 66 + 8 * t, None if t == 0 else 96 + 4 * ct)
    dpp_ror_reduce(range(96, 104), (4, 8))
    for k in range(4):
        a(f"v_cndmask_b32 v{24 + k}, v{96 + k}, v{100 + k}, s[58:59]")
    sc = f32(128 ** -0.5 * math.log2(math.e))
    for k in range(4):
        a(f"v_mul_f32 v{24 + k}, {hex(sc)}, v{24 + k}")
    a("v_cvt_pk_bf16_f32 v20, v24, v25")
    a("v_cvt_pk_bf16_f32 v21, v26, v27")
    a("s_mov_b32 exec_lo, 0x00ff00ff")
    a("s_mov_b32 exec_hi, 0x00ff00ff")
    a(f"buffer_store_dwordx4 v[20:23], v17, {WS}, 0 offen sc1")
    a("s_mov_b64 exec, -1")
    a("s_barrier")
    for t in range(4):
        a(f"s_add_u32 s56, s{S_J}, {t}")
        a("s_and_b32 s56, s56, 3")
        a(f"s_lshl_b32 s{52 + t}, s56, 6")
        a("s_lshl_b32 s56, s56, 15")
        for hf in range(2):
            if hf:
                a("s_add_u32 s56, s56, 4096")
            for q in range(4):
                jj = hf * 4 + q
                if cfg.wo_depth and cfg.wo_depth <= 8 * t + jj < cfg.wo_n:
                    a(f"s_waitcnt vmcnt({cfg.wo_depth - 1})")
                a(f"buffer_load_dwordx4 {vr(128 + 32 * t + 4 * jj, 4)}, v19, {RB}, s56 offen offset:{1024 * q}{' nt' if cfg.nt_wo else ''}")
    for k in range(4):
        a(f"s_waitcnt vmcnt({8 * (3 - k)})")
        perm_set(128 + 32 * k, 96 + 32 * k)

    a.label("L_A_x")
    TS(3)
    T, AF, MK, D, STR = 32, 48, 64, 68, 72
    CL, CX = 0, 4096
    a(f"s_lshl_b32 s10, s{S_A}, 15")
    a(f"s_lshl_b32 s56, s{S_W}, 12")
    a("s_add_u32 s10, s10, s56")
    a(f"s_add_u32 s10, s10, {WS_OP}")
    a("v_lshlrev_b32 v5, 4, v1")
    a("v_add_u32 v5, s10, v5")
    a(f"s_lshr_b32 s10, s{S_W}, 1")
    a("s_lshl_b32 s10, s10, 14")
    a(f"s_lshl_b32 s56, s{S_H}, 4")
    a("s_add_u32 s10, s10, s56")
    a(f"s_add_u32 s10, s10, {WS_ST}")
    a("v_and_b32 v4, 31, v1")
    a("v_lshlrev_b32 v4, 9, v4")
    a("v_add_u32 v4, s10, v4")
    sel_masks(MK, 8)
    a(f"s_and_b32 s10, s{S_W}, 1")
    a("s_lshl_b32 s10, s10, 6")
    a("v_lshlrev_b32 v6, 2, v3")
    a("v_add_u32 v6, s10, v6")
    a(f"s_mul_i32 s10, s{S_W}, 272")
    a("v_lshlrev_b32 v8, 4, v2")
    a("v_lshl_add_u32 v8, v3, 3, v8")
    a("v_add_u32 v8, s10, v8")
    a("v_lshrrev_b32 v9, 2, v2")
    a("v_and_b32 v10, 1, v2")
    a("v_lshl_add_u32 v9, v9, 1, v10")
    a("v_mul_u32_u24 v9, 272, v9")
    a("v_lshl_add_u32 v9, v3, 4, v9")
    a(f"s_lshl_b32 s56, s{S_W}, 6")
    a("v_add_u32 v9, s56, v9")
    a("v_mul_u32_u24 v10, 1088, v3")
    a("v_lshl_add_u32 v10, v2, 4, v10")
    a(f"s_add_u32 s10, s10, {CX}")
    a("v_add_u32 v10, s10, v10")
    a("v_mul_u32_u24 v11, 272, v2")
    a("v_lshl_add_u32 v11, v3, 4, v11")
    a(f"v_add_u32 v11, {CX}, v11")
    a(f"s_lshl_b32 s10, s{S_J}, 14")
    a(f"s_lshl_b32 s56, s{S_W}, 11")
    a("s_add_u32 s10, s10, s56")
    a(f"s_add_u32 s10, s10, {WS_FL}")
    a("v_lshlrev_b32 v7, 7, v2")
    a("v_add_u32 v7, s10, v7")
    if cfg.tlb:
        a("s_mov_b64 exec, 1")
        a(f"buffer_load_dword v12, v5, {WS}, 0 offen nt")
        a("v_mov_b32 v13, 0")
        a(f"global_load_dword v14, v13, s[{S_OUT}:{S_OUT + 1}]")
        a("s_mov_b64 exec, 0xff")
        a("v_lshlrev_b32 v13, 16, v1")
        a(f"v_add_u32 v13, {WS_FP + 65536 - 128}, v13")
        a(f"buffer_load_dword v15, v13, {WS}, 0 offen nt")
        a("s_mov_b64 exec, -1")
    if cfg.ck >= 3:
        a(f"s_lshr_b32 s10, s{S_W}, 1")
        a("s_lshl_b32 s10, s10, 17")
        a(f"s_lshl_b32 s56, s{S_J}, 10")
        a("s_add_u32 s10, s10, s56")
        a(f"s_lshl_b32 s56, s{S_H}, 5")
        a("s_add_u32 s10, s10, s56")
        a(f"s_add_u32 s10, s10, {WS_CK}")
        a("v_and_b32 v4, 31, v1")
        a("v_lshlrev_b32 v4, 12, v4")
        a("v_lshrrev_b32 v7, 5, v1")
        a("v_lshl_add_u32 v4, v7, 4, v4")
        a("v_add_u32 v4, s10, v4")
        a(f"s_and_b32 s10, s{S_W}, 1")
        a("s_add_u32 s10, s10, 2")
        a("v_cmp_eq_u32 s[60:61], s10, v3")
    elif cfg.ck:
        a(f"s_lshl_b32 s10, s{S_W}, 15")
        a(f"s_lshl_b32 s56, s{S_J}, 9")
        a("s_add_u32 s10, s10, s56")
        a(f"s_lshl_b32 s56, s{S_H}, 4")
        a("s_add_u32 s10, s10, s56")
        a(f"s_add_u32 s10, s10, {WS_CK}")
        a("v_and_b32 v7, 3, v2")
        a("v_lshl_add_u32 v7, v7, 2, v3")
        a("v_lshlrev_b32 v7, 11, v7")
        a("v_add_u32 v7, s10, v7")
        a("v_mov_b32 v76, 0")
        a("v_mov_b32 v77, 0")
        a("v_mov_b32 v78, s48")
        a("v_mov_b32 v79, s49")
        a("s_mov_b32 s60, 0x000f000f")
        a("s_mov_b32 s61, 0x000f000f")
    if cfg.stpre:
        a(f"buffer_load_dwordx4 {vr(STR, 4)}, v4, {WS}, 0 offen sc1")
    canary(4, STR, True)
    mpoll_tag(4, STR)
    TS(4)

    def op_loads():
        if cfg.ck in (1, 2):
            a("s_mov_b64 exec, s[60:61]")
            a(f"buffer_load_dwordx4 v[76:79], v7, {WS}, 0 offen sc1")
            a("s_mov_b64 exec, -1")
        for i in range(4):
            a(f"buffer_load_dwordx4 {vr(T + 4 * i, 4)}, v5, {WS}, 0 offen offset:{1024 * i} sc1")

    if not cfg.fl:
        op_loads()
    if cfg.ck >= 3:
        a(f"v_cndmask_b32 v76, 0, v{STR}, s[60:61]")
        a(f"v_cndmask_b32 v77, 0, v{STR + 1}, s[60:61]")
    a(f"v_mov_b32 v12, v{STR}")
    dpp_ror_reduce([12], (1, 2, 4, 8), "v_max_f32")
    swap_reduce(12, 13, 16, "v_max_f32")
    a(f"v_sub_f32 v12, v{STR}, v12")
    a("v_exp_f32 v12, v12")
    a("v_cvt_pk_bf16_f32 v12, v12, v12")
    for i in range(4):
        a(f"ds_bpermute_b32 v{16 + i}, v6, v12 offset:{16 * i}")
    a("v_and_b32 v13, 0xffff0000, v12")
    a(f"v_mul_f32 v13, v13, v{STR + 1}")
    dpp_ror_reduce([13], (1, 2, 4, 8))
    swap_reduce(13, 14, 16)
    a("v_rcp_f32 v13, v13")
    for i in range(4):
        a(f"s_waitcnt lgkmcnt({3 - i})")
        for p in range(4):
            a(f"v_and_b32 v{AF + 4 * i + p}, v{16 + i}, v{MK + p}")
    if cfg.fl:
        mpoll_tag(7, STR, "0xffff")
        op_loads()
    if cfg.direct:
        a("s_branch L_A_opchk")
        a.label("L_A_oppoll")
        op_loads()
        a.label("L_A_opchk")
        a("s_waitcnt vmcnt(0)")
        valid_check(range(T, T + 16), 7, "L_A_oppoll")
    if cfg.ck:
        a("s_branch L_A_ckchk")
        a.label("L_A_ckpoll")
        op_loads()
        a.label("L_A_ckchk")
        if cfg.ck < 3:
            a("s_waitcnt vmcnt(4)")
            a("v_cmp_ne_u64 s[56:57], s[48:49], v[78:79]")
        for i in range(4):
            a(f"s_waitcnt vmcnt({3 - i})")
            mfma16(D, AF + 4 * i, T + 4 * i, None if i == 0 else D)
            x = T + 4 * i
            a(f"v_bitop3_b32 v80, {'v76' if i == 0 else 'v80'}, v{x}, v{x + 2} bitop3:0x96")
            a(f"v_bitop3_b32 v81, {'v77' if i == 0 else 'v81'}, v{x + 1}, v{x + 3} bitop3:0x96")
        dpp_ror_reduce([80, 81], (1, 2, 4, 8), "v_xor_b32")
        if cfg.ck >= 3:
            for wh in (16, 32):
                swap_reduce(80, 82, wh, "v_xor_b32")
                swap_reduce(81, 83, wh, "v_xor_b32")
            a("v_cmp_ne_u64 vcc, 0, v[80:81]")
            a("s_cbranch_vccz L_A_ckok")
        else:
            a("v_cmp_ne_u64 vcc, 0, v[80:81]")
            a("s_or_b64 s[56:57], s[56:57], vcc")
            a("s_cbranch_scc0 L_A_ckok")
        a("s_sub_u32 s13, s13, 1")
        a("s_cbranch_scc0 L_A_ckpoll")
        a("s_mov_b32 s13, 0")
        a.label("L_A_ckok")
        TS(5)
    else:
        if cfg.ts:
            a("s_waitcnt vmcnt(0)")
        TS(5)
        for i in range(4):
            a(f"s_waitcnt vmcnt({3 - i})")
            mfma16(D, AF + 4 * i, T + 4 * i, None if i == 0 else D)
    for k in range(4):
        a(f"v_mul_f32 v{D + k}, v{D + k}, v13")
    a(f"v_cvt_pk_bf16_f32 v14, v{D}, v{D + 1}")
    a(f"v_cvt_pk_bf16_f32 v15, v{D + 2}, v{D + 3}")
    a("s_mov_b32 exec_hi, 0")
    a("ds_write_b64 v8, v[14:15]")
    a("s_mov_b64 exec, -1")
    a("s_waitcnt lgkmcnt(0)")
    a("s_barrier")
    a(f"s_cmp_ge_u32 s{S_W}, 4")
    a("s_cbranch_scc1 L_A_x3")
    a("ds_read_b128 v[16:19], v9")
    a("s_waitcnt lgkmcnt(0)")
    for c in range(8):
        mfma16(96 + 4 * c, 16, 160 + 4 * c, None)
    for c in range(8):
        a(f"v_add_f32 v{96 + 4 * c}, v{96 + 4 * c}, v{97 + 4 * c}")
    for p in range(4):
        a(f"v_cvt_pk_bf16_f32 v{20 + p}, v{96 + 8 * p}, v{100 + 8 * p}")
    a("ds_write_b128 v10, v[20:23]")
    a("s_waitcnt lgkmcnt(0)")
    a("s_barrier")
    TS(6)
    a(f"s_cmp_eq_u32 s{S_W}, 0")
    END_IF("scc0", 7)
    a("s_branch L_A_fin")
    a.label("L_A_x3")
    for t in range(4):
        a(f"v_add_u32 v{24 + t}, s{52 + t}, v11")
    a("s_barrier")
    for t in range(4):
        a(f"ds_read_b128 {vr(32 + 4 * t, 4)}, v{24 + t}")
    def x3_tail(c):
        x = 224 + 4 * c
        a(f"v_add_f32 v{x}, v{x}, v{x + 1}")
        a(f"v_add_f32 v{x + 2}, v{x + 2}, v{x + 3}")
        a(f"v_add_f32 v{x}, v{x}, v{x + 2}")
        if c % 2:
            a(f"v_cvt_pk_bf16_f32 v{20 + c // 2}, v{x - 4}, v{x}")

    if cfg.x3i:
        for t in range(2):
            a(f"s_waitcnt lgkmcnt({3 - t})")
            for c in range(8):
                mfma16(224 + 4 * c, 32 + 4 * t, 96 + 32 * t + 4 * c, None if t == 0 else 224 + 4 * c)
        a("s_waitcnt lgkmcnt(0)")
        for c in range(8):
            for t in (2, 3):
                mfma16(224 + 4 * c, 32 + 4 * t, 96 + 32 * t + 4 * c, 224 + 4 * c)
            if c >= 2:
                x3_tail(c - 2)
        x3_tail(6)
        x3_tail(7)
    else:
        for t in range(4):
            a(f"s_waitcnt lgkmcnt({3 - t})")
            for c in range(8):
                mfma16(224 + 4 * c, 32 + 4 * t, 96 + 32 * t + 4 * c, None if t == 0 else 224 + 4 * c)
        for c in range(8):
            x3_tail(c)
    a(f"buffer_store_dwordx4 v[20:23], v31, {WS}, 0 offen sc1")
    TS(6)
    END(7)

    a.label("L_A_fin")
    a(f"s_lshl_b32 s10, s{S_J}, 10")
    a(f"s_lshl_b32 s56, s{S_H}, 5")
    a("s_add_u32 s10, s10, s56")
    a("v_lshrrev_b32 v4, 1, v2")
    a("v_lshl_add_u32 v4, v3, 3, v4")
    a("v_and_b32 v5, 1, v2")
    a("v_lshlrev_b32 v5, 4, v5")
    a("v_lshl_add_u32 v6, v3, 3, v5")
    a("v_add_u32 v6, s10, v6")
    a(f"s_add_u32 s11, s10, {WS_FP}")
    a("v_lshl_add_u32 v8, v4, 12, v5")
    a("v_add_u32 v8, s11, v8")
    a(f"v_add_u32 v9, {64 * 4096}, v8")
    a("s_lshl_b32 s10, s10, 2")
    a(f"s_add_u32 s10, s10, {WS_H}")
    a("v_add_u32 v10, s10, v5")
    a(f"v_cmp_eq_u32 vcc, {NSLICE - 64}, v4")
    a("v_cndmask_b32 v9, v9, v10, vcc")
    a(f"v_cmp_ge_u32 s[56:57], {NSLICE - 64}, v4")
    for k in range(4):
        a(f"v_mov_b32 v{40 + k}, 0")
        a(f"v_and_b32 v{16 + k}, 0x3f803f80, v{MK + k}")
    a(f"s_mov_b32 s11, {32 * 4096}")
    srd(SRD_A, S_OUT, 4096)
    canary(8, 32, False)
    mpoll_data([(32, f"buffer_load_dwordx4 v[32:35], v8, {WS}, 0 offen sc1"),
                (36, f"buffer_load_dwordx4 v[36:39], v8, {WS}, s11 offen sc1"),
                (40, f"buffer_load_dwordx4 v[40:43], v9, {WS}, 0 offen sc1")], 24, 7, ["-1", "-1", "s[56:57]"])
    for i in range(3):
        mfma16(D, 16, 32 + 4 * i, None if i == 0 else D)
    dpp_ror_reduce(range(D, D + 4), (2, 4, 8))
    a(f"v_cvt_pk_bf16_f32 v14, v{D}, v{D + 1}")
    a(f"v_cvt_pk_bf16_f32 v15, v{D + 2}, v{D + 3}")
    a("s_mov_b64 exec, 0x00030003")
    a(f"buffer_store_dwordx2 v[14:15], v6, {RA}, 0 offen{' sc1' if cfg.out_sc1 else ''}")
    a(f"s_cmp_eq_u32 s{S_A}, 0")
    a("s_cbranch_scc0 L_A_done")
    a("s_mov_b64 exec, 1")
    a("v_mov_b32 v9, s44")
    a("v_mov_b32 v10, 0")
    a(f"buffer_store_dword v9, v10, {WS}, 0 offen offset:{WS_EPOCH} sc1")
    a.label("L_A_done")
    if cfg.dbg >= 2:
        a.label("L_dbg_spin")
        a(f"s_memrealtime s[{S_TS + 2}:{S_TS + 3}]")
        a("s_waitcnt lgkmcnt(0)")
        a(f"s_sub_u32 s10, s{S_TS + 2}, s{S_TS}")
        a(f"s_cmp_lt_u32 s10, {cfg.dbg * 100}")
        a("s_cbranch_scc1 L_dbg_spin")
    if cfg.dbg:
        a(f"s_memrealtime s[{S_TS + 2}:{S_TS + 3}]")
        a("s_waitcnt lgkmcnt(0)")
        a("s_mov_b64 exec, 1")
        a(f"v_mov_b32 v12, s{S_TS}")
        a(f"v_mov_b32 v13, s{S_TS + 2}")
        a(f"s_lshl_b32 s10, s{S_A}, 3")
        a(f"s_add_u32 s10, s10, {WS_DBG}")
        a("v_mov_b32 v10, s10")
        a(f"buffer_store_dwordx2 v[12:13], v10, {WS}, 0 offen")
    TS(7)
    END(8)

    a.label("L_B")
    inA[0] = False
    S_BB, S_CH, S_R, S_SL = 6, 7, 9, 51
    QB = 131072
    a(f"s_and_b32 s{S_I16}, s{S_I16}, 15")
    a(f"s_lshl_b32 s{S_R}, s{S_XCD}, 4")
    a(f"s_add_u32 s{S_R}, s{S_R}, s{S_I16}")
    a(f"s_lshr_b32 s{S_BB}, s{S_R}, 5")
    a(f"s_and_b32 s{S_CH}, s{S_R}, 31")
    MXB, PB, SB, STG = QB, QB + 1024, QB + 9728, 0
    for k in range(4):
        a(f"v_mov_b32 v{26 + k}, -1")
    a(f"s_mul_i32 s{S_SL}, s{S_XCD}, 11")
    a(f"s_add_u32 s{S_SL}, s{S_SL}, s{S_I16}")
    a(f"s_cmp_lt_u32 s{S_I16}, 11")
    a(f"s_cselect_b32 s{S_SL}, s{S_SL}, 127")
    a(f"s_lshl_b32 s10, s{S_SL}, 12")
    a(f"s_lshl_b32 s11, s{S_W}, 7")
    a("s_add_u32 s10, s10, s11")
    a(f"s_add_u32 s10, s10, {WS_FP}")
    a("v_and_b32 v31, 3, v2")
    a("v_lshlrev_b32 v31, 10, v31")
    a("v_lshrrev_b32 v12, 2, v2")
    a("v_lshl_add_u32 v31, v12, 5, v31")
    a("v_lshl_add_u32 v31, v3, 3, v31")
    a("v_add_u32 v31, s10, v31")
    a("v_and_b32 v12, 31, v1")
    a("v_lshrrev_b32 v13, 5, v1")
    a(f"s_cmp_ge_u32 s{S_W}, 4")
    a("s_cbranch_scc1 L_B_pv")

    a(f"s_lshl_b32 s8, s{S_R}, 17")
    a(f"s_lshl_b32 s10, s{S_W}, 15")
    a("s_add_u32 s8, s8, s10")
    a("v_lshlrev_b32 v4, 2, v3")
    a("v_xor_b32 v4, v4, v2")
    a("v_lshlrev_b32 v4, 4, v4")
    a("v_lshl_add_u32 v4, v3, 10, v4")
    for k in range(1, 4):
        a(f"v_xor_b32 v{4 + k}, {G(k) * 16}, v4")
    a("v_lshrrev_b32 v8, 2, v2")
    a("v_lshlrev_b32 v8, 1, v8")
    a("v_mov_b32 v9, 0x78")
    a("v_lshrrev_b32 v8, v8, v9")
    a("v_and_b32 v8, 3, v8")
    a("v_and_b32 v9, 3, v2")
    a("v_lshl_add_u32 v8, v9, 2, v8")
    a("v_xor_b32 v8, v8, v13")
    a("v_lshlrev_b32 v8, 4, v8")
    a("v_lshl_add_u32 v8, v12, 8, v8")
    a("v_add_u32 v8, s10, v8")
    for tt in range(8):
        a(f"v_xor_b32 v{48 + tt}, {tt * 32}, v8")
    a("s_waitcnt lgkmcnt(0)")
    a(f"s_load_dword s44, s[{S_WS}:{S_WS + 1}], {WS_EPOCH}")
    srd(SRD_A, S_CKV, 16 << 20)
    srd(SRD_WS, S_WS, WS_SIZE)
    a(f"buffer_store_dwordx2 v[26:27], v31, {WS}, 0 offen sc1")
    if cfg.b_delay == 1:
        a("s_waitcnt lgkmcnt(0)")
    if cfg.b_delay == 2:
        a("s_waitcnt vmcnt(0) lgkmcnt(0)")
    if cfg.b_delay >= 3:
        a(f"s_sleep {cfg.b_delay}")
    DD = cfg.dma_depth
    assert DD <= 8

    def go_store():
        a(f"s_cmp_eq_u32 s{S_W}, 3")
        a("s_cbranch_scc0 L_B_nogo")
        a(f"s_lshl_b32 s12, s{S_R}, 7")
        a(f"s_add_u32 s12, s12, {WS_GO}")
        a("v_mov_b32 v24, s12")
        a("s_mov_b64 exec, 1")
        a(f"buffer_store_dwordx4 v[26:29], v24, {WS}, 0 offen sc1")
        a("s_mov_b64 exec, -1")
        a.label("L_B_nogo")

    def afrag_reads(q):
        for tt in range(8):
            a(f"ds_read_b128 {vr(128 + 32 * q + 4 * tt, 4)}, v{48 + tt} offset:{8192 * q}")

    for i in range(32):
        q, rr = i // 8, i % 8
        if i == cfg.bs_at:
            a("s_barrier")
        if i >= DD:
            a(f"s_waitcnt vmcnt({DD - 1})")
        a(f"s_add_u32 m0, s10, {1024 * i}")
        a(f"s_add_u32 s11, s8, {rr * 4096 + q * 256}")
        a(f"buffer_load_dwordx4 v{4 + rr % 4}, {RA}, s11 offen nt lds")
        if i == 1:
            a("v_xor_b32 v8, v2, v13")
            a("v_lshlrev_b32 v8, 4, v8")
            a("v_lshl_add_u32 v8, v12, 10, v8")
            a(f"v_add_u32 v8, {QB}, v8")
            for tt in range(8):
                a(f"v_xor_b32 v{56 + tt}, {tt * 32}, v8")
            a("v_lshlrev_b32 v65, 4, v12")
            a(f"v_add_u32 v65, {MXB}, v65")
            a(f"s_lshl_b32 s12, s{S_W}, 2")
            a("v_add_u32 v64, s12, v65")
            a("v_mul_u32_u24 v66, 272, v12")
            a("v_lshl_add_u32 v66, v13, 3, v66")
            a(f"s_lshl_b32 s12, s{S_W}, 6")
            a(f"s_add_u32 s12, s12, {PB}")
            a("v_add_u32 v66, s12, v66")
            a("v_lshlrev_b32 v68, 5, v12")
            a(f"v_add_u32 v68, {SB}, v68")
            a("v_lshl_add_u32 v67, v13, 2, v68")
            a(f"s_lshl_b32 s12, s{S_W}, 3")
            a("v_add_u32 v67, s12, v67")
            a(f"s_lshl_b32 s12, s{S_R}, 9")
            a(f"s_add_u32 s12, s12, {WS_ST}")
            a("v_lshlrev_b32 v25, 4, v12")
            a("v_add_u32 v25, s12, v25")
        if i == 3 and cfg.ffnpf2:
            a("v_lshrrev_b32 v69, 1, v1")
            a("v_mul_u32_u24 v69, 2752, v69")
            a("v_and_b32 v70, 1, v1")
            a("v_lshl_add_u32 v69, v70, 6, v69")
            a(f"s_and_b32 s56, s{S_SL}, 3")
            a("s_lshl_b32 s56, s56, 2")
            a(f"s_add_u32 s56, s56, s{S_W}")
            a(f"s_mul_i32 s56, s56, {32 * 2752}")
            a(f"s_lshr_b32 s57, s{S_SL}, 2")
            a("s_lshl_b32 s57, s57, 7")
            a("s_add_u32 s56, s56, s57")
            srd(SRD_B, S_WG, 512 * 2752)
            srd(20, S_WU, 512 * 2752)
        if i == 3 and cfg.fe:
            a("v_lshrrev_b32 v69, 1, v1")
            a("v_mul_u32_u24 v69, 2752, v69")
            a("v_and_b32 v70, 1, v1")
            a("v_lshl_add_u32 v69, v70, 4, v69")
            a(f"s_lshl_b32 s56, s{S_SL}, 1")
            a(f"s_add_u32 s56, s56, s{S_W}")
            a("s_and_b32 s56, s56, 7")
            a(f"s_mul_i32 s56, s56, {64 * 2752}")
            a(f"s_lshl_b32 s57, s{S_SL}, 5")
            a("s_add_u32 s56, s56, s57")
            a(f"s_add_u32 s57, s56, {32 * 2752}")
            srd(SRD_B, S_WG, 512 * 2752)
            srd(20, S_WU, 512 * 2752)
        if i == 9:
            a("s_waitcnt lgkmcnt(0)")
            tags()
            a("v_mov_b32 v28, s48")
            a("v_mov_b32 v29, s49")
        if cfg.xgate and i == cfg.go_at:
            go_store()
        if i in (16, 24):
            afrag_reads(i // 8 - 2)
        if i == cfg.b0_at:
            a("s_barrier")
    TS(1)
    if cfg.xgate and cfg.go_at == 32:
        go_store()
    a("s_waitcnt vmcnt(8)")
    afrag_reads(2)
    a("s_waitcnt lgkmcnt(0)")
    TS(2)
    a("s_barrier")
    if cfg.xgate and cfg.go_at == 33:
        go_store()
    TS(1, 3)
    if cfg.ts == 3:
        a(f"s_memtime s[{S_TS + 6}:{S_TS + 7}]")
        a("s_waitcnt lgkmcnt(0)")
    pend = []

    def lds(tag, text):
        a(text)
        pend.append(tag)

    def need_lds(*tags_):
        idxs = [pend.index(t_) for t_ in tags_ if t_ in pend]
        if not idxs:
            return
        idx = max(idxs)
        assert len(pend) - 1 - idx <= 15
        a(f"s_waitcnt lgkmcnt({len(pend) - 1 - idx})")
        del pend[:idx + 1]

    def qread(t):
        lds(("q", t), f"ds_read_b128 {vr(96 + 4 * (t % 8), 4)}, v{56 + t % 8} offset:{256 * (t // 8)}")

    QD = 6
    for t in range(QD):
        qread(t)
    for t in range(32):
        if t == cfg.q3_at:
            a("s_waitcnt vmcnt(0)")
            for tt in range(8):
                lds(("a", 24 + tt), f"ds_read_b128 {vr(224 + 4 * tt, 4)}, v{48 + tt} offset:{8192 * 3}")
            if cfg.fe:
                a(f"s_cmp_ge_u32 s{S_SL}, {NSLICE}")
                a("s_cbranch_scc1 L_B_nofe")
                lst = [(RB, "s56"), (RB, "s57"), ("s[20:23]", "s56"), ("s[20:23]", "s57")]
                for k in range(cfg.fe):
                    a(f"buffer_load_dwordx4 {vr(72 + 4 * k, 4)}, v69, {lst[k][0]}, {lst[k][1]} offen nt")
                a.label("L_B_nofe")
            if cfg.ffnpf2:
                a(f"s_cmp_ge_u32 s{S_SL}, {NSLICE}")
                a("s_cbranch_scc1 L_B_nopf2")
                a(f"buffer_load_dword v70, v69, {RB}, s56 offen")
                a("buffer_load_dword v71, v69, s[20:23], s56 offen")
                a.label("L_B_nopf2")
        need_lds(("a", t), ("q", t))
        cin = "0" if t == 0 else "v[32:47]"
        a(f"v_mfma_f32_32x32x16_bf16 v[32:47], {vr(128 + 4 * t, 4)}, {vr(96 + 4 * (t % 8), 4)}, {cin}")
        if t + QD < 32:
            qread(t + QD)
    a("s_barrier")
    a("v_max3_f32 v22, v32, v33, v34")
    a("v_max3_f32 v23, v35, v36, v37")
    TS(2, 3)
    if cfg.ts == 3:
        a(f"s_memtime s[{S_TS + 10}:{S_TS + 11}]")
        a("s_waitcnt lgkmcnt(0)")
    for k in range(38, 46, 4):
        a(f"v_max3_f32 v22, v22, v{k}, v{k + 1}")
        a(f"v_max3_f32 v23, v23, v{k + 2}, v{k + 3}")
    a("v_max3_f32 v22, v22, v46, v47")
    a("v_max_f32 v22, v22, v23")
    swap_reduce(22, 23, 32, "v_max_f32")
    a("ds_write_b32 v64, v22")
    a("s_waitcnt lgkmcnt(0)")
    a("s_barrier")
    TS(6, 3)
    a("ds_read_b128 v[96:99], v65")
    a("s_waitcnt lgkmcnt(0)")
    a("v_max3_f32 v26, v96, v97, v98")
    a("v_max_f32 v26, v26, v99")
    for g4 in range(4):
        x = 32 + 4 * g4
        for r in range(4):
            a(f"v_sub_f32 v{x + r}, v{x + r}, v26")
        for r in range(4):
            a(f"v_exp_f32 v{x + r}, v{x + r}")
        a(f"v_cvt_pk_bf16_f32 v{8 + 2 * (g4 % 2)}, v{x}, v{x + 1}")
        a(f"v_cvt_pk_bf16_f32 v{9 + 2 * (g4 % 2)}, v{x + 2}, v{x + 3}")
        a(f"ds_write_b64 v66, {vr(8 + 2 * (g4 % 2), 2)} offset:{16 * g4}")
    a("s_waitcnt lgkmcnt(0)")
    a("s_barrier")
    TS(4)
    for k in range(8):
        a(f"v_add_f32 v{32 + k}, v{32 + k}, v{40 + k}")
    for k in range(4):
        a(f"v_add_f32 v{32 + k}, v{32 + k}, v{36 + k}")
    a("v_add_f32 v32, v32, v34")
    a("v_add_f32 v33, v33, v35")
    a("v_add_f32 v32, v32, v33")
    a("ds_write_b32 v67, v32")
    a("s_waitcnt lgkmcnt(0)")
    a("s_barrier")
    a("ds_read_b128 v[32:35], v68")
    a("ds_read_b128 v[36:39], v68 offset:16")
    a("s_waitcnt lgkmcnt(0)")
    for k in range(4):
        a(f"v_add_f32 v{32 + k}, v{32 + k}, v{36 + k}")
    a("v_add_f32 v32, v32, v34")
    a("v_add_f32 v33, v33, v35")
    a("v_add_f32 v27, v32, v33")
    if not (cfg.fl or cfg.direct or cfg.ck):
        a("s_barrier")
    a(f"s_cmp_eq_u32 s{S_W}, {0 if cfg.ck < 3 else 99}")
    a("s_cbranch_scc0 L_B_nost")
    a("s_mov_b32 exec_hi, 0")
    a(f"buffer_store_dwordx4 v[26:29], v25, {WS}, 0 offen sc1")
    a("s_mov_b64 exec, -1")
    a.label("L_B_nost")
    if cfg.fl or cfg.direct or cfg.ck:
        a("s_barrier")
    a.haz_flush(3)
    a("s_branch L_B_post")

    a.label("L_B_pv")
    a(f"s_sub_u32 s12, s{S_W}, 4")
    a(f"s_lshl_b32 s11, s{S_BB}, 16")
    a("s_lshl_b32 s10, s12, 10")
    a("s_add_u32 s11, s11, s10")
    a(f"s_add_u32 s11, s11, {WS_QL}")
    a("v_lshlrev_b32 v7, 4, v1")
    a("v_add_u32 v7, s11, v7")
    a("v_add_u32 v6, 4096, v7")
    a("s_waitcnt lgkmcnt(0)")
    a(f"s_load_dword s44, s[{S_WS}:{S_WS + 1}], {WS_EPOCH}")
    srd(SRD_WS, S_WS, WS_SIZE)

    def q_load(i):
        a(f"buffer_load_dwordx4 {vr(128 + 4 * i, 4)}, v{7 - i % 2}, {WS}, {k8(i // 2)} offen sc1")

    if cfg.uk_delay:
        a("s_waitcnt lgkmcnt(0)")
    if cfg.ukpf:
        srd(SRD_B, S_WUK, 4 << 20)
        a(f"s_and_b32 s11, s{S_R}, 3")
        a("s_lshl_b32 s11, s11, 20")
        a("s_lshl_b32 s10, s12, 18")
        a("s_add_u32 s11, s11, s10")
        a(f"s_lshr_b32 s10, s{S_R}, 2")
        a("s_lshl_b32 s10, s10, 8")
        a("s_add_u32 s11, s11, s10")
        a(f"s_add_u32 s11, s11, {(8 - cfg.ukpf_n) * 32768}")
        a("v_lshlrev_b32 v8, 13, v3")
        a("v_lshl_add_u32 v8, v2, 4, v8")
        for k in range(cfg.ukpf_n):
            a(f"buffer_load_dwordx4 {vr(32 + 4 * k, 4)}, v8, {RB}, s11 offen nt")
            a("s_add_u32 s11, s11, 32768")
    if cfg.bs_at >= 0 and cfg.bs_mode == 1:
        a("s_barrier")
    if cfg.pretouch:
        a(f"s_lshl_b32 s11, s{S_I16}, 12")
        a(f"buffer_load_dwordx4 v[128:131], v7, {WS}, s11 offen sc1")
    a(f"buffer_store_dwordx2 v[26:27], v31, {WS}, 0 offen sc1")
    a("s_lshr_b32 s10, s12, 1")
    a("s_and_b32 s11, s12, 1")
    a("s_lshl_b32 s11, s11, 5")
    a("s_xor_b32 s11, s11, s10")
    a("v_lshrrev_b32 v8, 1, v1")
    a("v_xor_b32 v8, s11, v8")
    a("v_lshlrev_b32 v8, 4, v8")
    a("v_and_b32 v9, 1, v1")
    a("v_lshl_add_u32 v8, v9, 3, v8")
    a("s_lshl_b32 s10, s10, 10")
    a(f"s_add_u32 s10, s10, {QB}")
    a("v_add_u32 v8, s10, v8")
    for k in range(8):
        a(f"v_xor_b32 v{64 + k}, {k * 32}, v8")
    a("v_lshrrev_b32 v22, 2, v2")
    a("v_lshl_add_u32 v23, v13, 3, v22")
    a("v_lshlrev_b32 v23, 8, v23")
    a("v_lshl_add_u32 v23, v9, 3, v23")
    a("v_and_b32 v24, 1, v3")
    a("v_bfe_u32 v10, v1, 1, 1")
    a("v_lshl_add_u32 v24, v24, 1, v10")
    a("v_lshlrev_b32 v22, 2, v22")
    a("v_xor_b32 v24, v24, v22")
    a("v_mul_u32_u24 v22, 3, v13")
    a("v_xor_b32 v24, v24, v22")
    a("v_lshl_add_u32 v23, v24, 4, v23")
    a("s_lshl_b32 s10, s12, 13")
    a("v_add_u32 v23, s10, v23")
    a("v_xor_b32 v24, 32, v23")
    a("v_add_u32 v24, 1024, v24")
    for ct in range(4):
        for u in range(2):
            a(f"v_xor_b32 v{72 + 2 * ct + u}, {ct * 64}, v{23 + u}")
            a(f"v_add_u32 v{80 + 2 * ct + u}, 0x10000, v{72 + 2 * ct + u}")
    a("v_mul_u32_u24 v88, 272, v12")
    a("v_lshl_add_u32 v88, v13, 4, v88")
    a(f"v_add_u32 v88, {PB}, v88")
    a("s_lshl_b32 s10, s12, 14")
    a("v_mul_u32_u24 v89, 144, v12")
    a("v_lshl_add_u32 v89, v13, 3, v89")
    a("v_add_u32 v89, s10, v89")
    a("v_lshrrev_b32 v22, 3, v1")
    a("v_and_b32 v23, 7, v1")
    a("v_mul_u32_u24 v90, 144, v22")
    a("v_lshl_add_u32 v90, v23, 4, v90")
    a("v_add_u32 v90, s10, v90")
    a("s_lshl_b32 s10, s12, 15")
    a(f"s_lshl_b32 s11, s{S_R}, 8")
    a("s_add_u32 s10, s10, s11")
    a(f"s_add_u32 s10, s10, {WS_OP}")
    a("v_lshlrev_b32 v30, 17, v22")
    a("v_lshl_add_u32 v30, v23, 4, v30")
    a("v_add_u32 v30, s10, v30")
    if cfg.tlb:
        a("v_lshlrev_b32 v10, 17, v12")
        a("v_add_u32 v10, s10, v10")
        a(f"buffer_load_dword v11, v10, {WS}, 0 offen nt")
    for i in range(1, 4):
        a(f"s_mov_b32 s{52 + i}, {i << 20}")
    a("s_lshl_b32 s10, s12, 14")
    a(f"s_lshl_b32 s11, s{S_R}, 7")
    a("s_add_u32 s10, s10, s11")
    a(f"s_add_u32 s10, s10, {WS_FL}")
    a("v_mov_b32 v25, s10")
    if cfg.ck:
        a(f"s_lshl_b32 s10, s{S_R}, 11")
        a("s_lshl_b32 s11, s12, 9")
        a("s_add_u32 s10, s10, s11")
        a(f"s_add_u32 s10, s10, {WS_CK}")
        a("v_lshlrev_b32 v25, 4, v12")
        a("v_add_u32 v25, s10, v25")
        if cfg.ck >= 3:
            a(f"s_sub_u32 s10, s10, {WS_CK}")
            a("s_lshl_b32 s10, s10, 1")
            a(f"s_add_u32 s10, s10, {WS_CK}")
            a("v_lshlrev_b32 v25, 5, v12")
            a("v_lshl_add_u32 v25, v13, 4, v25")
            a("v_add_u32 v25, s10, v25")
            a("v_lshlrev_b32 v5, 5, v12")
            a(f"v_add_u32 v5, {SB}, v5")
            a("v_lshlrev_b32 v4, 4, v12")
            a(f"v_add_u32 v4, {MXB}, v4")
    a("s_waitcnt lgkmcnt(0)")
    tags()
    a("v_mov_b32 v28, s48")
    a("v_mov_b32 v29, s49")
    TS(1)
    if cfg.bs_at >= 0 and cfg.bs_mode == 0:
        a("s_waitcnt vmcnt(0)")
        a("s_barrier")
    if cfg.scout:
        a(f"s_lshl_b32 s11, s{S_BB}, 16")
        a("s_lshl_b32 s10, s12, 10")
        a("s_add_u32 s11, s11, s10")
        a(f"s_add_u32 s11, s11, {WS_QL + 496}")
        a("v_lshrrev_b32 v10, 1, v12")
        a("v_lshlrev_b32 v10, 12, v10")
        a("v_and_b32 v11, 1, v1")
        a("v_lshl_add_u32 v10, v11, 9, v10")
        a("v_add_u32 v10, s11, v10")
        a("s_mov_b32 s56, -1")
        a("s_mov_b32 s57, 0")
    a("s_barrier")
    if cfg.scout:
        mpoll_tag(10, 128, "s[56:57]", cfg.ssleep)
    TS(2)
    for i in range(16):
        q_load(i)
    a("s_mov_b32 s60, 0")
    for i in range(16):
        a(f"s_waitcnt vmcnt({15 - i})")
        a(f"v_cmp_ne_u64 vcc, s[48:49], {vr(130 + 4 * i, 2)}")
        a(f"ds_write_b64 v{64 + i % 8}, {vr(128 + 4 * i, 2)} offset:{2048 * i}")
        a("s_cmp_lg_u64 vcc, 0")
        a("s_addc_u32 s60, s60, s60")
    a("s_cmp_eq_u32 s60, 0")
    a("s_cbranch_scc1 L_B_gotq")
    a.label("L_B_qretry")
    if cfg.qsleep:
        a(f"s_sleep {cfg.qsleep}")
    for i in range(16):
        lab = a.newlabel("Lq")
        a(f"s_bitcmp1_b32 s60, {15 - i}")
        a(f"s_cbranch_scc0 {lab}")
        q_load(i)
        a.label(lab)
    a("s_waitcnt vmcnt(0)")
    for i in range(16):
        lab = a.newlabel("Lq")
        a(f"s_bitcmp1_b32 s60, {15 - i}")
        a(f"s_cbranch_scc0 {lab}")
        a(f"v_cmp_ne_u64 vcc, s[48:49], {vr(130 + 4 * i, 2)}")
        a(f"s_cbranch_vccnz {lab}")
        a(f"ds_write_b64 v{64 + i % 8}, {vr(128 + 4 * i, 2)} offset:{2048 * i}")
        a(f"s_bitset0_b32 s60, {15 - i}")
        a.label(lab)
    a("s_cmp_eq_u32 s60, 0")
    a("s_cbranch_scc1 L_B_gotq")
    a("s_sub_u32 s13, s13, 1")
    a("s_cbranch_scc0 L_B_qretry")
    a("s_mov_b32 s13, 0")
    a.label("L_B_gotq")
    a("s_waitcnt lgkmcnt(0)")
    TS(3)
    a("s_barrier")
    TS(1, 3)
    if cfg.direct:
        a("s_lshl_b32 s10, s12, 12")
        a(f"s_add_u32 s10, s10, {WS_CLR}")
        a("v_lshlrev_b32 v10, 7, v12")
        a("v_add_u32 v10, s10, v10")
        mpoll_tag(10, 96)
    a("s_cmp_lt_u32 s12, 3")
    a("s_cbranch_scc1 L_B_trr")
    a("s_barrier")
    a.label("L_B_trr")
    for ct in range(4):
        for s in range(8):
            for u in range(2):
                base = (72 if s < 4 else 80) + 2 * ct + u
                a(f"ds_read_b64_tr_b16 {vr(128 + (ct * 8 + s) * 4 + 2 * u, 2)}, v{base} offset:{32768 * ((s // 2) % 2) + 4096 * (s % 2)}")
    a("s_cmp_lt_u32 s12, 3")
    a("s_cbranch_scc0 L_B_trd")
    a("s_barrier")
    a.label("L_B_trd")
    a("s_barrier")
    a("s_waitcnt lgkmcnt(0)")
    a("s_barrier")
    TS(4)
    for s in range(8):
        a(f"ds_read_b128 {vr(96 + 4 * s, 4)}, v88 offset:{32 * s}")
    ACC = [32, 48, 32, 48]
    ACC = [32, 48, 64 - 0, 0]
    a("v_mov_b32 v22, v89")
    a("v_mov_b32 v23, v90")
    ACC = [32, 48, 64, 80]

    def stage_w(ct, g4):
        x = ACC[ct] + 4 * g4
        d = 14 + 2 * (g4 % 4)
        a(f"v_cvt_pk_bf16_f32 v{d}, v{x}, v{x + 1}")
        a(f"v_cvt_pk_bf16_f32 v{d + 1}, v{x + 2}, v{x + 3}")
        a(f"ds_write_b64 v22, {vr(d, 2)} offset:{8192 * (ct // 2) + 64 * (ct % 2) + 16 * g4}")
        if cfg.ck:
            if ct == 0 and g4 == 0:
                a(f"v_mov_b32 v26, v{d}")
                a(f"v_mov_b32 v27, v{d + 1}")
            else:
                a(f"v_xor_b32 v26, v26, v{d}")
                a(f"v_xor_b32 v27, v27, v{d + 1}")

    def stage_r(pair, dst):
        for i in range(4):
            a(f"ds_read_b128 {vr(dst + 4 * i, 4)}, v23 offset:{8192 * pair + 1152 * i}")

    def op_store(pair, dst, i):
        so = "0" if i == 0 else f"s{52 + i}"
        a(f"buffer_store_dwordx4 {vr(dst + 4 * i, 4)}, v30, {WS}, {so} offen offset:{128 * pair} sc1")

    for ct in range(4):
        for s in range(8):
            if ct == 0:
                a(f"s_waitcnt lgkmcnt({7 - s})")
            cin = "0" if s == 0 else vr(ACC[ct], 16)
            a(f"v_mfma_f32_32x32x16_bf16 {vr(ACC[ct], 16)}, {vr(128 + (ct * 8 + s) * 4, 4)}, {vr(96 + 4 * s, 4)}, {cin}")
            if ct >= 1 and 3 <= s <= 6:
                stage_w(ct - 1, s - 3)
            if ct == 1 and s == 0:
                a("s_barrier")
            if cfg.ck >= 3 and ct == 1 and s == 1:
                a("ds_read_b128 v[128:131], v5")
                a("ds_read_b128 v[132:135], v5 offset:16")
                a("ds_read_b128 v[136:139], v4")
            if cfg.ck >= 3 and ct == 2 and s == 0:
                a("s_waitcnt lgkmcnt(4)")
                for k in range(4):
                    a(f"v_add_f32 v{128 + k}, v{128 + k}, v{132 + k}")
            if cfg.ck >= 3 and ct == 2 and s == 1:
                a("v_add_f32 v128, v128, v130")
                a("v_add_f32 v129, v129, v131")
                a("v_add_f32 v9, v128, v129")
                a("v_max3_f32 v8, v136, v137, v138")
                a("v_max_f32 v8, v8, v139")
            if ct == 2 and s == 7:
                stage_r(0, 128)
            if ct == 3 and s < 2:
                a(f"s_waitcnt lgkmcnt({2 - 2 * s})")
                op_store(0, 128, 2 * s)
                op_store(0, 128, 2 * s + 1)
    for g4 in range(4):
        stage_w(3, g4)
    stage_r(1, 144)
    if cfg.ck:
        swap_reduce(26, 10, 32, "v_xor_b32")
        swap_reduce(27, 11, 32, "v_xor_b32")
        a("s_mov_b32 exec_hi, 0")
        if cfg.ck >= 3:
            a("v_mov_b32 v26, v8")
            a("v_mov_b32 v27, v9")
            a("s_mov_b64 exec, -1")
            if cfg.ck == 3:
                a(f"buffer_store_dwordx4 v[26:29], v25, {WS}, 0 offen sc1")
        else:
            a(f"buffer_store_dwordx4 v[26:29], v25, {WS}, 0 offen sc1")
            a("s_mov_b64 exec, -1")
    TS(7, 3)
    for i in range(4):
        a(f"s_waitcnt lgkmcnt({3 - i})")
        op_store(1, 144, i)
    if cfg.ck == 4:
        a(f"buffer_store_dwordx4 v[26:29], v25, {WS}, 0 offen sc1")
    TS(5)
    a("s_mov_b64 exec, 1")
    if cfg.direct != 2 and cfg.ck != 2 and not (cfg.ck >= 3 and cfg.noack):
        a("s_waitcnt vmcnt(0)")
    if cfg.fl:
        a(f"buffer_store_dwordx4 v[26:29], v25, {WS}, 0 offen sc1")
    a("s_mov_b64 exec, -1")
    a("s_barrier")
    a.label("L_B_post")
    if cfg.ts:
        TS(1)

    GW, UW, DW = 0, 16384, 32768
    GP, AB, ZB = 65536, 65536 + 4096, 65536 + 8192
    S1B, S2B = GP + 2048, GP + 2048 + 64
    a(f"s_cmp_ge_u32 s{S_SL}, {NSLICE}")
    a("s_cbranch_scc1 L_B_red")
    srd(SRD_A, S_WG, 512 * 2752)
    srd(SRD_B, S_WU, 512 * 2752)
    a("v_lshrrev_b32 v4, 1, v1")
    a("v_mul_u32_u24 v4, 2752, v4")
    a("v_and_b32 v5, 1, v1")
    a("v_lshl_add_u32 v4, v5, 4, v4")
    a(f"s_lshl_b32 s12, s{S_SL}, 1")
    a(f"s_add_u32 s12, s12, s{S_W}")
    a("s_and_b32 s12, s12, 7")
    a(f"s_mul_i32 s10, s12, {64 * 2752}")
    a(f"s_lshl_b32 s11, s{S_SL}, 5")
    a("s_add_u32 s10, s10, s11")
    a(f"s_add_u32 s11, s10, {32 * 2752}")
    a("s_lshl_b32 s12, s12, 11")
    pieces = [(RA, GW, 0), (RA, GW, 1), (RB, UW, 0), (RB, UW, 1)]

    def gu_dma(lst):
        for (R, base, k) in lst:
            a(f"s_add_u32 m0, s12, {base + 1024 * k}")
            a("s_nop 0")
            a(f"buffer_load_dwordx4 v4, {R}, s{10 + k} offen{' nt' if cfg.nt_ffn else ''} lds")

    if cfg.fe:
        a(f"s_cmp_ge_u32 s{S_W}, 4")
        a("s_cbranch_scc1 L_B_fulldma")
        a("v_lshlrev_b32 v5, 4, v1")
        a("v_add_u32 v5, s12, v5")
        a("s_waitcnt vmcnt(0)")
        for k in range(cfg.fe):
            a(f"ds_write_b128 v5, {vr(72 + 4 * k, 4)} offset:{pieces[k][1] + 1024 * pieces[k][2]}")
        a("s_branch L_B_restdma")
        a.label("L_B_fulldma")
        gu_dma(pieces[:cfg.fe])
        a.label("L_B_restdma")
        gu_dma(pieces[cfg.fe:])
    else:
        gu_dma(pieces)
    srd(SRD_A, S_WD, 1376 * 1024)
    a("v_lshlrev_b32 v4, 4, v1")
    a(f"s_lshl_b32 s10, s{S_SL}, 14")
    a("s_add_u32 s10, s10, s12")
    a("s_add_u32 s11, s10, 1024")
    for k in range(2):
        a(f"s_add_u32 m0, s12, {DW + 1024 * k}")
        a("s_nop 0")
        a(f"buffer_load_dwordx4 v4, {RA}, s{10 + k} offen nt lds")
    a("v_mov_b32 v4, 0")
    a("v_mov_b32 v5, 0")
    a(f"v_mov_b32 v6, {ZB}")
    a("ds_write_b64 v6, v[4:5]")
    a(f"s_and_b32 s10, s{S_W}, 3")
    a("s_lshl_b32 s11, s10, 12")
    a("v_lshlrev_b32 v8, 8, v3")
    a("v_lshl_add_u32 v8, v2, 3, v8")
    a("v_add_u32 v8, s11, v8")
    a("v_lshrrev_b32 v9, 2, v2")
    a("v_lshl_add_u32 v10, v3, 2, v9")
    a("v_lshlrev_b32 v10, 10, v10")
    a("v_and_b32 v11, 3, v2")
    a("v_lshl_add_u32 v10, v11, 3, v10")
    a(f"s_lshl_b32 s11, s{S_W}, 7")
    a(f"s_add_u32 s12, s11, {DW}")
    a("v_add_u32 v10, s12, v10")
    a("v_lshlrev_b32 v12, 12, v9")
    a("v_lshrrev_b32 v13, 1, v3")
    a("v_lshl_add_u32 v12, v13, 7, v12")
    a("v_and_b32 v13, 1, v3")
    a("v_lshl_add_u32 v12, v13, 4, v12")
    a("s_lshl_b32 s12, s10, 10")
    a(f"s_add_u32 s12, s12, {WS_H}")
    a("v_add_u32 v12, s12, v12")
    a("s_lshl_b32 s12, s10, 2")
    a("v_lshlrev_b32 v13, 4, v1")
    a(f"v_add_u32 v13, {GP}, v13")
    a("v_add_u32 v14, s12, v13")
    a("v_lshlrev_b32 v15, 4, v3")
    a(f"v_add_u32 v15, {S1B}, v15")
    a("v_add_u32 v16, s12, v15")
    a("v_cmp_eq_u32 s[56:57], v9, v3")
    a(f"s_add_u32 s11, s11, {AB}")
    a("v_lshlrev_b32 v17, 1, v1")
    a("v_add_u32 v17, s11, v17")
    a("v_lshlrev_b32 v18, 5, v11")
    a("v_lshl_add_u32 v18, v3, 3, v18")
    a("v_add_u32 v18, s11, v18")
    for tau in range(4):
        a(f"v_cmp_eq_u32 vcc, {tau}, v9")
        a(f"v_cndmask_b32 v{20 + tau}, v6, v18, vcc")
    a("s_waitcnt vmcnt(0) lgkmcnt(0)")
    a("s_barrier")
    for tau in range(4):
        a(f"ds_read_b64_tr_b16 {vr(64 + 2 * tau, 2)}, v10 offset:{32 * tau}")
    for mtx in range(2):
        for t in range(4):
            for u in range(2):
                a(f"ds_read_b64_tr_b16 {vr(32 + 16 * mtx + 4 * t + 2 * u, 2)}, v8 offset:{UW * mtx + 1024 * t + 128 * u}")
    for p in range(4):
        a(f"v_mov_b32 v{72 + p}, 0x3f803f80")
    a("s_waitcnt lgkmcnt(0)")
    for t in range(4):
        for mtx in range(2):
            mfma16(76 + 4 * mtx, 72, 32 + 16 * mtx + 4 * t, None if t == 0 else 76 + 4 * mtx)
    a("ds_write_b32 v14, v76")
    a("ds_write_b32 v14, v80 offset:1024")
    a("s_waitcnt lgkmcnt(0)")
    a("s_barrier")
    a("ds_read_b128 v[76:79], v13")
    a("ds_read_b128 v[80:83], v13 offset:1024")
    a("s_waitcnt lgkmcnt(0)")
    for x, o in ((76, 24), (80, 25)):
        a(f"v_add_f32 v{x}, v{x}, v{x + 1}")
        a(f"v_add_f32 v{x + 2}, v{x + 2}, v{x + 3}")
        a(f"v_add_f32 v{o}, v{x}, v{x + 2}")
    a("s_barrier")

    TS(6)
    a("s_branch L_B_hcan")
    a.label("L_B_red")
    TS(6)
    a(f"s_cmp_lt_u32 s{S_I16}, 12")
    END_IF("scc1", 8)
    a(f"s_cmp_ge_u32 s{S_W}, 4")
    END_IF("scc1", 8)
    a(f"s_lshl_b32 s{S_R}, s{S_XCD}, 2")
    a(f"s_add_u32 s{S_R}, s{S_R}, s{S_I16}")
    a(f"s_sub_u32 s{S_R}, s{S_R}, 12")
    a(f"s_lshl_b32 s{S_R}, s{S_R}, 2")
    a(f"s_add_u32 s{S_R}, s{S_R}, s{S_W}")
    a(f"s_lshr_b32 s{S_BB}, s{S_R}, 5")
    a(f"s_and_b32 s{S_CH}, s{S_R}, 31")
    MK2, D2 = 112, 116
    sel_masks(MK2, 4)
    for k in range(4):
        a(f"v_and_b32 v{MK2 + k}, 0x3f803f80, v{MK2 + k}")
    a("v_lshrrev_b32 v4, 1, v2")
    a("v_lshl_add_u32 v4, v3, 3, v4")
    a("v_and_b32 v5, 1, v2")
    a("v_lshlrev_b32 v5, 4, v5")
    a("v_lshl_add_u32 v26, v3, 3, v5")
    a(f"s_lshl_b32 s10, s{S_R}, 5")
    a("v_and_b32 v27, 31, v26")
    a("v_add_u32 v27, s10, v27")
    a(f"global_load_dwordx2 v[28:29], v27, s[{S_X}:{S_X + 1}]")
    a(f"s_lshl_b32 s10, s{S_BB}, 17")
    a(f"s_lshl_b32 s11, s{S_CH}, 5")
    a("s_add_u32 s10, s10, s11")
    a(f"s_add_u32 s10, s10, {WS_AO}")
    a("v_lshl_add_u32 v4, v4, 10, v5")
    a("v_add_u32 v4, s10, v4")
    a(f"s_lshl_b32 s10, s{S_R}, 7")
    a(f"s_add_u32 s10, s10, {WS_H}")
    a("v_add_u32 v26, s10, v26")
    a("s_mov_b32 s10, 65536")
    a("s_mov_b32 s11, 98304")
    a("v_cmp_gt_u32 vcc, 2, v2")
    a("s_waitcnt vmcnt(0)")
    a("v_cndmask_b32 v28, 0, v28, vcc")
    a("v_cndmask_b32 v29, 0, v29, vcc")
    a("v_lshlrev_b32 v120, 16, v28")
    a("v_and_b32 v121, 0xffff0000, v28")
    a("v_lshlrev_b32 v122, 16, v29")
    a("v_and_b32 v123, 0xffff0000, v29")
    canary(4, 96, False)
    mpoll_data([(96 + 4 * i, f"buffer_load_dwordx4 {vr(96 + 4 * i, 4)}, v4, {WS}, {['0', k8(4), 's10', 's11'][i]} offen sc1") for i in range(4)], 20, 5)
    for i in range(4):
        mfma16(D2, MK2, 96 + 4 * i, 120 if i == 0 else D2)
    dpp_ror_reduce(range(D2, D2 + 4), (2, 4, 8))
    a(f"v_cvt_pk_bf16_f32 v28, v{D2}, v{D2 + 1}")
    a(f"v_cvt_pk_bf16_f32 v29, v{D2 + 2}, v{D2 + 3}")
    a("s_mov_b64 exec, 0x00030003")
    a(f"buffer_store_dwordx2 v[28:29], v26, {WS}, 0 offen sc1")
    TS(7)
    END(8)

    a.label("L_B_hcan")
    canary(12, 96, False)
    mpoll_data([(96 + 4 * t, f"buffer_load_dwordx4 {vr(96 + 4 * t, 4)}, v12, {WS}, 0 offen offset:{256 * t} sc1") for t in range(4)], 20, 5)
    TS(7)
    a(f"s_cmp_ge_u32 s{S_W}, 4")
    a("s_cbranch_scc1 L_B_stats")
    for t in range(4):
        for mtx in range(2):
            mfma16(76 + 4 * mtx, 96 + 4 * t, 32 + 16 * mtx + 4 * t, None if t == 0 else 76 + 4 * mtx)
    a("ds_write_b32 v14, v76")
    a("ds_write_b32 v14, v80 offset:1024")
    a("s_branch L_B_f1done")
    a.label("L_B_stats")
    for t in range(4):
        mfma16(76, 96 + 4 * t, 72, None if t == 0 else 76)
        mfma16(80, 96 + 4 * t, 96 + 4 * t, None if t == 0 else 80)
    a("s_mov_b64 exec, s[56:57]")
    a("ds_write_b32 v16, v76")
    a("ds_write_b32 v16, v80 offset:64")
    a("s_mov_b64 exec, -1")
    a.label("L_B_f1done")
    a("s_waitcnt lgkmcnt(0)")
    a("s_barrier")
    a("ds_read_b128 v[84:87], v15")
    a("ds_read_b128 v[88:91], v15 offset:64")
    a("ds_read_b128 v[76:79], v13")
    a("ds_read_b128 v[80:83], v13 offset:1024")
    a("s_waitcnt lgkmcnt(2)")
    for x in (84, 88):
        a(f"v_add_f32 v{x}, v{x}, v{x + 1}")
        a(f"v_add_f32 v{x + 2}, v{x + 2}, v{x + 3}")
        a(f"v_add_f32 v{x}, v{x}, v{x + 2}")
    a(f"v_mul_f32 v84, {hex(f32(1.0 / 512))}, v84")
    a(f"v_mul_f32 v88, {hex(f32(1.0 / 512))}, v88")
    a("v_fma_f32 v88, -v84, v84, v88")
    a("v_max_f32 v88, 0, v88")
    a(f"v_add_f32 v88, {hex(f32(1e-5))}, v88")
    a("v_rsq_f32 v88, v88")
    a("s_waitcnt lgkmcnt(0)")
    for x in (76, 80):
        a(f"v_add_f32 v{x}, v{x}, v{x + 1}")
        a(f"v_add_f32 v{x + 2}, v{x + 2}, v{x + 3}")
        a(f"v_add_f32 v{x}, v{x}, v{x + 2}")
    a("v_fma_f32 v76, -v84, v24, v76")
    a("v_fma_f32 v80, -v84, v25, v80")
    a("v_mul_f32 v76, v76, v88")
    a("v_mul_f32 v80, v80, v88")
    a(f"v_mul_f32 v77, {hex(f32(-math.log2(math.e)))}, v76")
    a("v_exp_f32 v77, v77")
    a("v_mul_f32 v76, v76, v80")
    a("v_add_f32 v77, 1.0, v77")
    a("v_rcp_f32 v77, v77")
    a("v_mul_f32 v76, v76, v77")
    a("v_cvt_pk_bf16_f32 v76, v76, v76")
    a("ds_write_b16 v17, v76")
    a("s_waitcnt lgkmcnt(0)")
    for tau in range(4):
        a(f"ds_read_b64 {vr(84 + 2 * tau, 2)}, v{20 + tau}")
    for tau in range(4):
        a(f"s_waitcnt lgkmcnt({3 - tau})")
        cin = "0" if tau == 0 else "v[76:79]"
        a(f"v_mfma_f32_16x16x16_bf16 v[76:79], {vr(64 + 2 * tau, 2)}, {vr(84 + 2 * tau, 2)}, {cin}")
    a("v_cvt_pk_bf16_f32 v80, v76, v77")
    a("v_cvt_pk_bf16_f32 v81, v78, v79")
    a(f"buffer_store_dwordx2 v[80:81], v31, {WS}, 0 offen sc1")
    TS(2)
    if cfg.ts:
        END(8)
    a.label("L_end")
    a("s_endpgm")
    a.label("L_code_end")

    body = a.render()
    hdr = open("sequential_preLN__compressed_kv_cla__swiglu_ffn__decode.s.ref").read().split("\n")
    head = []
    for line in hdr:
        if line.startswith("; @launch"):
            head.append("; @launch grid=(256,1,1) block=(512,1,1) lds=163840")
            break
        head.append(line)
    text = "\n".join(head) + f"""
.amdgcn_target "amdgcn-amd-amdhsa--gfx950"
.text
.globl {KNAME}
.p2align 8
.type {KNAME},@function
{KNAME}:
{body}.section .rodata,"a"
.p2align 6
.amdhsa_kernel {KNAME}
  .amdhsa_next_free_vgpr 256
  .amdhsa_next_free_sgpr 102
  .amdhsa_accum_offset 256
  .amdhsa_group_segment_fixed_size 0
  .amdhsa_kernarg_size 104
  .amdhsa_user_sgpr_count 2
  .amdhsa_user_sgpr_kernarg_segment_ptr 1
  .amdhsa_system_sgpr_workgroup_id_x 1
.end_amdhsa_kernel
"""
    return text


if __name__ == "__main__":
    cfg = Cfg()
    out = "sequential_preLN__compressed_kv_cla__swiglu_ffn__decode.s"
    for arg in sys.argv[1:]:
        if arg.startswith("out="):
            out = arg[4:]
        else:
            k, v = arg.split("=")
            assert hasattr(cfg, k), k
            setattr(cfg, k, int(v))
    open(out, "w").write(gen(cfg))
    print("wrote", out)
```

```python
import sys, math, struct
sys.path.insert(0, "dev")
from asmgen import Asm, vr, sr

KNAME = "sequential_preLN__compressed_kv_cla__swiglu_ffn__decode_kernel"

WS_EPOCH = 0x0
WS_H = 0x004000
WS_GO = 0x008000
WS_QPG = 0x010000
WS_CLR = 0x00C000
WS_FL = 0x0E0000
WS_CK = 0x700000
WS_QPG2 = 0x600000
WS_QL = 0x080000
WS_ST = 0x0C0000
WS_AO = 0x100000
WS_FP = 0x180000
WS_OP = 0x200000
WS_DBG = 0x800000
WS_SIZE = 0x1000000

NSLICE = 86
SPIN = 1 << 19


def f32(x):
    return struct.unpack("<I", struct.pack("<f", x))[0]


def G(x):
    return [0, 2, 3, 1][x]


def FSW(k):
    return ((k % 4) << 2) | G((k // 4) % 4)


class Cfg:
    ts = 0
    dbg = 0
    prio_pv = 1
    b_delay = 0
    qsleep = 1
    uv_early = 0
    pretouch = 0
    clr_pos = 0
    csleep = 1
    nt_wo = 1
    nt_ffn = 1
    xgate = 3
    e1full = 1
    dma_depth = 8
    dma_n = 16
    ukpf = 0
    ffn_early = 0
    e1local = 1
    wo_depth = 0
    wo_n = 32
    ckpf = 0
    ukpf_n = 8
    q3_at = 0
    b0_at = 36
    ffnpf = 0
    mp = 0
    fl = 0
    scout = 0
    ssleep = 4
    go_at = 32
    bs_at = -1
    pperm = 1
    e1lds = 1
    uk_delay = 0
    bs_mode = 0
    uk_late = 0
    ffnpf2 = 0
    x3i = 1
    out_sc1 = 0
    tlb = 0
    fmap = 0
    direct = 0
    ck = 0
    stpre = 1
    noack = 1
    fe = 3
    ckm = 1
    qslot = 8


def gen(cfg):
    a = Asm()
    S_X, S_CKV, S_WQ, S_WUK, S_WUV, S_WO, S_WG, S_WU, S_WD, S_OUT, S_WS = 16, 18, 20, 22, 24, 26, 30, 32, 34, 36, 40
    S_W, S_XCD, S_I16 = 3, 4, 5
    S_K8 = 64
    SRD_WS, SRD_A, SRD_B = 72, 76, 80
    S_TS = 84
    WS = f"s[{SRD_WS}:{SRD_WS + 3}]"
    RA = f"s[{SRD_A}:{SRD_A + 3}]"
    RB = f"s[{SRD_B}:{SRD_B + 3}]"
    DPPM = "row_mask:0xf bank_mask:0xf"
    inA = [True]
    CKOP = "v_add_u32" if cfg.ckm else "v_xor_b32"

    def TS(idx, lvl=1):
        if not cfg.ts:
            return
        if cfg.ts == 2 and lvl == 1 and idx in (3, 4, 5) and inA[0]:
            return
        if lvl == 2 and cfg.ts != 2:
            return
        if lvl == 3 and cfg.ts != 3:
            return
        if cfg.ts == 3 and lvl == 1 and idx in (1, 2, 6, 7) and not inA[0]:
            return
        a(f"s_memrealtime s[{S_TS + 2 * idx}:{S_TS + 2 * idx + 1}]")
        a("s_waitcnt lgkmcnt(0)")

    def END(n=8):
        if cfg.ts:
            a("s_mov_b64 exec, 1")
            a(f"s_lshl_b32 s8, s2, 3")
            a(f"s_add_u32 s8, s8, s{S_W}")
            a(f"s_lshl_b32 s8, s8, 6")
            a(f"s_add_u32 s8, s8, {WS_DBG}")
            a("v_mov_b32 v2, s8")
            for i in range(n):
                a(f"v_mov_b32 v3, s{S_TS + 2 * i}")
                a(f"buffer_store_dword v3, v2, {WS}, 0 offen offset:{4 * i}")
            a("s_waitcnt vmcnt(0)")
        a("s_endpgm")

    def END_IF(cond_branch_true, n=8):
        if cfg.ts:
            lab = a.newlabel("Lcont")
            a(f"s_cbranch_{'scc0' if cond_branch_true == 'scc1' else 'scc1'} {lab}")
            END(n)
            a.label(lab)
        else:
            a(f"s_cbranch_{cond_branch_true} L_end")

    def srd(dst, ptr, nbytes):
        a(f"s_mov_b32 s{dst}, s{ptr}")
        a(f"s_mov_b32 s{dst + 1}, s{ptr + 1}")
        a(f"s_mov_b32 s{dst + 2}, {nbytes}")
        a(f"s_mov_b32 s{dst + 3}, 0x20000")

    def k8(i):
        return "0" if i == 0 else f"s{S_K8 + i}"

    def tags():
        a("s_add_u32 s44, s44, 1")
        a("s_mul_i32 s48, s44, 0x9E3779B1")
        a("s_xor_b32 s48, s48, 0x85EBCA6B")
        a("s_mul_i32 s49, s44, 0xC2B2AE35")
        a("s_add_u32 s49, s49, 0x27D4EB2F")

    def perm_set(src, dst):
        for c in range(8):
            dw, e = c // 2, c % 2
            sel = "s14" if e == 0 else "s15"
            for p in range(4):
                a(f"v_perm_b32 v{dst + 4 * c + p}, v{src + 4 * (2 * p + 1) + dw}, v{src + 4 * (2 * p) + dw}, {sel}")

    def swap_reduce(reg, tmp, which, op="v_add_f32"):
        a(f"v_mov_b32 v{tmp}, v{reg}")
        a(f"v_permlane{which}_swap_b32 v{reg}, v{tmp}")
        a(f"{op} v{reg}, v{reg}, v{tmp}")

    def dpp_ror_reduce(regs, rors, op="v_add_f32"):
        for r in rors:
            for x in regs:
                a(f"{op}_dpp v{x}, v{x}, v{x} row_ror:{r} {DPPM}")

    def mfma16(d, A, B, c):
        cin = "0" if c is None else vr(c, 4)
        a(f"v_mfma_f32_16x16x32_bf16 {vr(d, 4)}, {vr(A, 4)}, {vr(B, 4)}, {cin}")

    def valid_check(regs, tmp, fail_label):
        regs = list(regs)
        a(f"v_max3_u32 v{tmp}, v{regs[0]}, v{regs[1]}, v{regs[2]}")
        rest = regs[3:]
        while len(rest) >= 2:
            a(f"v_max3_u32 v{tmp}, v{tmp}, v{rest[0]}, v{rest[1]}")
            rest = rest[2:]
        if rest:
            a(f"v_max_u32 v{tmp}, v{tmp}, v{rest[0]}")
        a(f"v_cmp_eq_u32 vcc, -1, v{tmp}")
        ok = a.newlabel("Lok")
        a(f"s_cbranch_vccz {ok}")
        a("s_sub_u32 s13, s13, 1")
        a(f"s_cbranch_scc0 {fail_label}")
        a("s_mov_b32 s13, 0")
        a.label(ok)

    def canary(addr, dst, tagged, so="0", lanes=1):
        lab = a.newlabel("Lcan")
        done = a.newlabel("Lcand")
        a(f"s_mov_b64 exec, {hex(lanes)}")
        a.label(lab)
        a(f"buffer_load_dwordx4 {vr(dst, 4)}, v{addr}, {WS}, {so} offen sc1")
        a("s_waitcnt vmcnt(0)")
        if tagged:
            a(f"v_cmp_ne_u64 vcc, s[48:49], {vr(dst + 2, 2)}")
        else:
            a(f"v_cmp_eq_u32 vcc, -1, v{dst}")
        a(f"s_cbranch_vccz {done}")
        if cfg.csleep:
            a(f"s_sleep {cfg.csleep}")
        a("s_sub_u32 s13, s13, 1")
        a(f"s_cbranch_scc0 {lab}")
        a("s_mov_b32 s13, 0")
        a.label(done)
        a("s_mov_b64 exec, -1")

    def mpoll_tag(addr, dst, init="-1", sleep=0):
        lab = a.newlabel("Lmp")
        done = a.newlabel("Lmpd")
        a(f"s_mov_b64 exec, {init}")
        a.label(lab)
        a(f"buffer_load_dwordx4 {vr(dst, 4)}, v{addr}, {WS}, 0 offen sc1")
        a("s_waitcnt vmcnt(0)")
        a(f"v_cmp_ne_u64 vcc, s[48:49], {vr(dst + 2, 2)}")
        a("s_and_b64 exec, exec, vcc")
        a(f"s_cbranch_scc0 {done}")
        if sleep:
            a(f"s_sleep {sleep}")
        a("s_sub_u32 s13, s13, 1")
        a(f"s_cbranch_scc0 {lab}")
        a("s_mov_b32 s13, 0")
        a.label(done)
        a("s_mov_b64 exec, -1")

    def mpoll_data(loads, M, tmp, inits=None):
        n = len(loads)
        if not cfg.mp:
            lab = a.newlabel("Lsp")
            a.label(lab)
            regs = []
            for i, (dst, text) in enumerate(loads):
                if inits and inits[i] != "-1":
                    a(f"s_mov_b64 exec, {inits[i]}")
                a(text)
                if inits and inits[i] != "-1":
                    a("s_mov_b64 exec, -1")
                regs += list(range(dst, dst + 4))
            a("s_waitcnt vmcnt(0)")
            valid_check(regs, tmp, lab)
            return
        lab = a.newlabel("Lmd")
        done = a.newlabel("Lmdd")
        ANY = M + 2 * n
        for i in range(n):
            a(f"s_mov_b64 s[{M + 2 * i}:{M + 2 * i + 1}], {inits[i] if inits else '-1'}")
        a.label(lab)
        for i, (dst, text) in enumerate(loads):
            sk = a.newlabel("Lsk")
            a(f"s_mov_b64 exec, s[{M + 2 * i}:{M + 2 * i + 1}]")
            a(f"s_cbranch_execz {sk}")
            a(text)
            a.label(sk)
        a(f"s_mov_b64 s[{ANY}:{ANY + 1}], 0")
        a("s_waitcnt vmcnt(0)")
        for i, (dst, text) in enumerate(loads):
            a(f"s_mov_b64 exec, s[{M + 2 * i}:{M + 2 * i + 1}]")
            a(f"v_max3_u32 v{tmp}, v{dst}, v{dst + 1}, v{dst + 2}")
            a(f"v_max_u32 v{tmp}, v{tmp}, v{dst + 3}")
            a(f"v_cmp_eq_u32 vcc, -1, v{tmp}")
            a(f"s_and_b64 s[{M + 2 * i}:{M + 2 * i + 1}], s[{M + 2 * i}:{M + 2 * i + 1}], vcc")
            a(f"s_or_b64 s[{ANY}:{ANY + 1}], s[{ANY}:{ANY + 1}], s[{M + 2 * i}:{M + 2 * i + 1}]")
        a(f"s_cbranch_scc0 {done}")
        a("s_sub_u32 s13, s13, 1")
        a(f"s_cbranch_scc0 {lab}")
        a("s_mov_b32 s13, 0")
        a.label(done)
        a("s_mov_b64 exec, -1")

    def sel_masks(M, tmp):
        a(f"v_and_b32 v{tmp}, 1, v2")
        a(f"v_lshlrev_b32 v{tmp}, 4, v{tmp}")
        a(f"v_mov_b32 v{tmp + 1}, 0xffff")
        a(f"v_lshlrev_b32 v{tmp}, v{tmp}, v{tmp + 1}")
        a(f"v_lshrrev_b32 v{tmp + 1}, 1, v2")
        for p in range(4):
            a(f"v_cmp_eq_u32 vcc, {p}, v{tmp + 1}")
            a(f"v_cndmask_b32 v{M + p}, 0, v{tmp}, vcc")

    a.label("L_code_start")
    a("s_cmp_ge_u32 s2, 256")
    a("s_cbranch_scc1 L_end")
    a("s_load_dwordx16 s[16:31], s[0:1], 0")
    a("s_load_dwordx8 s[32:39], s[0:1], 64")
    a("s_load_dwordx2 s[40:41], s[0:1], 96")
    if cfg.ts or cfg.dbg:
        a(f"s_memrealtime s[{S_TS}:{S_TS + 1}]")
    a("v_lshrrev_b32 v2, 6, v0")
    a("v_and_b32 v1, 63, v0")
    a(f"v_readfirstlane_b32 s{S_W}, v2")
    a("v_and_b32 v2, 15, v1")
    a("v_lshrrev_b32 v3, 4, v1")
    a(f"s_and_b32 s{S_XCD}, s2, 7")
    a(f"s_lshr_b32 s{S_I16}, s2, 3")
    for i in range(1, 8):
        a(f"s_mov_b32 s{S_K8 + i}, {i * 8192}")
    a(f"s_mov_b32 s13, {SPIN}")
    a(f"s_cmp_ge_u32 s{S_I16}, 16")
    a("s_cbranch_scc1 L_B")

    S_H, S_J, S_A = 6, 7, 9
    a("s_mov_b32 s14, 0x05040100")
    a("s_mov_b32 s15, 0x07060302")
    a(f"s_lshl_b32 s{S_A}, s{S_XCD}, 4")
    a(f"s_add_u32 s{S_A}, s{S_A}, s{S_I16}")
    a(f"s_lshr_b32 s{S_H}, s{S_A}, 2")
    a(f"s_and_b32 s{S_J}, s{S_A}, 3")
    S_HF, S_JF = 42, 43
    if cfg.fmap == 0:
        a(f"s_mov_b32 s{S_HF}, s{S_H}")
        a(f"s_mov_b32 s{S_JF}, s{S_J}")
    elif cfg.fmap == 1:
        a(f"s_lshr_b32 s{S_HF}, s{S_XCD}, 1")
        a(f"s_lshl_b32 s{S_HF}, s{S_HF}, 3")
        a(f"s_and_b32 s8, s{S_I16}, 7")
        a(f"s_add_u32 s{S_HF}, s{S_HF}, s8")
        a(f"s_and_b32 s{S_JF}, s{S_XCD}, 1")
        a(f"s_lshl_b32 s{S_JF}, s{S_JF}, 1")
        a(f"s_lshr_b32 s8, s{S_I16}, 3")
        a(f"s_add_u32 s{S_JF}, s{S_JF}, s8")
    else:
        a(f"s_and_b32 s{S_HF}, s{S_XCD}, 1")
        a(f"s_lshl_b32 s{S_HF}, s{S_HF}, 4")
        a(f"s_add_u32 s{S_HF}, s{S_HF}, s{S_I16}")
        a(f"s_lshr_b32 s{S_JF}, s{S_XCD}, 1")
    a(f"s_cmp_ge_u32 s{S_W}, 4")
    a("s_cbranch_scc1 L_Ahi")

    a("v_lshrrev_b32 v4, 2, v2")
    a("v_lshlrev_b32 v4, 10, v4")
    a("v_and_b32 v5, 3, v1")
    a("v_lshl_add_u32 v5, v3, 2, v5")
    a("v_lshl_add_u32 v5, v5, 4, v4")
    a(f"s_lshl_b32 s8, s{S_JF}, 7")
    a(f"s_lshl_b32 s10, s{S_W}, 5")
    a("s_add_u32 s8, s8, s10")
    a("s_lshl_b32 s10, s8, 1")
    a("v_lshl_add_u32 v6, v3, 4, v4")
    a("v_add_u32 v6, s10, v6")
    a("s_lshl_b32 s10, s8, 13")
    a(f"s_lshl_b32 s11, s{S_HF}, 8")
    a("s_add_u32 s10, s10, s11")
    a("v_lshlrev_b32 v7, 16, v3")
    a("v_lshl_add_u32 v7, v2, 4, v7")
    a("v_add_u32 v7, s10, v7")
    a("s_waitcnt lgkmcnt(0)")
    srd(SRD_A, S_WQ, 4 << 20)
    for i in range(4):
        a(f"global_load_dwordx4 {vr(8 + 4 * i, 4)}, v5, s[{S_X}:{S_X + 1}] offset:{256 * i}")
    a(f"global_load_dwordx4 v[24:27], v6, s[{S_X}:{S_X + 1}]")
    for jj in range(8):
        a(f"buffer_load_dwordx4 {vr(32 + 4 * jj, 4)}, v7, {RA}, {k8(jj)} offen nt")
    a(f"s_load_dword s44, s[{S_WS}:{S_WS + 1}], {WS_EPOCH}")
    srd(SRD_WS, S_WS, WS_SIZE)
    srd(SRD_B, S_WUV, 4 << 20)
    a("v_mov_b32 v28, 0")
    a("v_mov_b32 v29, 0")
    a("s_mov_b32 s10, 0x3f803f80")
    a("s_waitcnt vmcnt(9)")
    for i in range(16):
        a(f"v_dot2c_f32_bf16 v28, s10, v{8 + i}")
        a(f"v_dot2c_f32_bf16 v29, v{8 + i}, v{8 + i}")
    for x in (28, 29):
        a(f"v_add_f32_dpp v{x}, v{x}, v{x} quad_perm:[1,0,3,2] {DPPM}")
    for x in (28, 29):
        a(f"v_add_f32_dpp v{x}, v{x}, v{x} quad_perm:[2,3,0,1] {DPPM}")
    for wh in (16, 32):
        swap_reduce(28, 30, wh)
        swap_reduce(29, 31, wh)
    a(f"v_mul_f32 v28, {hex(f32(1.0 / 512))}, v28")
    a(f"v_mul_f32 v29, {hex(f32(1.0 / 512))}, v29")
    a("v_fma_f32 v29, -v28, v28, v29")
    a("v_max_f32 v29, 0, v29")
    a(f"v_add_f32 v29, {hex(f32(1e-5))}, v29")
    a("v_rsq_f32 v29, v29")
    a("s_waitcnt vmcnt(8)")
    a("v_mul_f32 v28, v28, v29")
    for p in range(4):
        a(f"v_lshlrev_b32 v{8 + 2 * p}, 16, v{24 + p}")
        a(f"v_and_b32 v{9 + 2 * p}, 0xffff0000, v{24 + p}")
    for k in range(8):
        a(f"v_fma_f32 v{8 + k}, v{8 + k}, v29, -v28")
    for p in range(4):
        a(f"v_cvt_pk_bf16_f32 v{24 + p}, v{8 + 2 * p}, v{9 + 2 * p}")
    a(f"s_lshl_b32 s10, s{S_W}, 11")
    a("v_lshlrev_b32 v8, 9, v3")
    a("v_lshl_add_u32 v8, v2, 5, v8")
    a("v_add_u32 v8, s10, v8")
    a("v_and_b32 v9, 3, v1")
    a("v_lshlrev_b32 v11, 4, v9")
    a("v_lshlrev_b32 v9, 9, v9")
    a("v_bfe_u32 v10, v1, 2, 2")
    a("v_lshl_add_u32 v9, v10, 5, v9")
    a("v_lshrrev_b32 v10, 5, v1")
    a("v_lshl_add_u32 v9, v10, 7, v9")
    a(f"s_lshl_b32 s10, s{S_W}, 8")
    a("v_add_u32 v9, s10, v9")
    a("v_and_b32 v10, 1, v3")
    a("v_lshl_add_u32 v9, v10, 4, v9")
    a("v_cmp_eq_u32 s[56:57], 1, v10")
    a(f"s_lshl_b32 s10, s{S_HF}, 13")
    a(f"s_lshl_b32 s11, s{S_W}, 12")
    a("s_add_u32 s10, s10, s11")
    a(f"s_lshl_b32 s11, s{S_JF}, 6")
    a("s_add_u32 s10, s10, s11")
    a(f"s_add_u32 s10, s10, {WS_QPG}")
    a("v_lshrrev_b32 v10, 2, v1")
    a("v_lshl_add_u32 v11, v10, 8, v11")
    a("v_add_u32 v11, s10, v11")
    a("s_waitcnt lgkmcnt(0)")
    tags()
    a("v_mov_b32 v12, s48")
    a("v_mov_b32 v13, s49")
    if cfg.pperm:
        for pp in range(4):
            a(f"s_waitcnt vmcnt({6 - 2 * pp})")
            for c in range(8):
                dw, e = c // 2, c % 2
                a(f"v_perm_b32 v{64 + 4 * c + pp}, v{32 + 4 * (2 * pp + 1) + dw}, v{32 + 4 * (2 * pp) + dw}, {'s14' if e == 0 else 's15'}")
    else:
        a("s_waitcnt vmcnt(0)")
    TS(1)

    def uv_loads():
        a(f"s_lshl_b32 s10, s{S_J}, 20")
        a(f"s_lshl_b32 s11, s{S_W}, 18")
        a("s_add_u32 s10, s10, s11")
        a(f"s_lshl_b32 s11, s{S_H}, 8")
        a("s_add_u32 s10, s10, s11")
        a("v_lshlrev_b32 v7, 16, v3")
        a("v_lshl_add_u32 v7, v2, 4, v7")
        a("v_add_u32 v7, s10, v7")
        for jj in range(8):
            a(f"buffer_load_dwordx4 {vr(128 + 4 * jj, 4)}, v7, {RB}, {k8(jj)} offen nt")

    if cfg.uv_early == 1:
        uv_loads()
    if not cfg.pperm:
        perm_set(32, 64)
    for c in range(8):
        mfma16(96 + 4 * c, 24, 64 + 4 * c, None)
    for c in range(0, 8, 2):
        a(f"ds_write2_b32 v8, v{96 + 4 * c}, v{100 + 4 * c} offset0:{c} offset1:{c + 1}")
    a("s_waitcnt lgkmcnt(0)")
    a("s_barrier")
    a(f"s_cmp_ge_u32 s{S_W}, 2")
    a("s_cbranch_scc1 L_Alo_nopub")
    for i in range(4):
        a(f"ds_read_b128 {vr(32 + 4 * i, 4)}, v9 offset:{2048 * i}")
    a("s_waitcnt lgkmcnt(2)")
    for k in range(4):
        a(f"v_add_f32 v{32 + k}, v{32 + k}, v{36 + k}")
    a("s_waitcnt lgkmcnt(0)")
    for k in range(4):
        a(f"v_add_f32 v{40 + k}, v{40 + k}, v{44 + k}")
    for k in range(4):
        a(f"v_add_f32 v{32 + k}, v{32 + k}, v{40 + k}")
    a("v_cvt_pk_bf16_f32 v36, v32, v33")
    a("v_cvt_pk_bf16_f32 v37, v34, v35")
    a("v_cndmask_b32 v16, v12, v36, s[56:57]")
    a("v_cndmask_b32 v17, v13, v37, s[56:57]")
    a("v_cndmask_b32 v18, v36, v12, s[56:57]")
    a("v_cndmask_b32 v19, v37, v13, s[56:57]")
    if cfg.e1local:
        a(f"s_mov_b32 s10, {WS_QPG2 - WS_QPG}")
        a(f"buffer_store_dwordx4 v[16:19], v11, {WS}, s10 offen")
    a(f"buffer_store_dwordx4 v[16:19], v11, {WS}, 0 offen sc1")
    a.label("L_Alo_nopub")
    TS(2)
    if cfg.e1lds:
        a("s_barrier")
    if cfg.xgate in (1, 2):
        a(f"s_cmp_eq_u32 s{S_W}, 3")
        a("s_cbranch_scc0 L_Alo_nogate")
        a(f"s_lshl_b32 s10, s{S_A}, 7")
        a(f"s_add_u32 s10, s10, {WS_GO}")
        a("v_mov_b32 v16, s10")
        canary(16, 20, True)
        a.label("L_Alo_nogate")
    a("s_barrier")
    if cfg.direct:
        a(f"s_cmp_eq_u32 s{S_W}, 2")
        a("s_cbranch_scc0 L_Alo_noclr")
        a(f"s_lshl_b32 s10, s{S_A}, 15")
        a(f"s_add_u32 s10, s10, {WS_OP}")
        a("v_lshlrev_b32 v16, 4, v1")
        for k in range(4):
            a(f"v_mov_b32 v{20 + k}, -1")
        for k in range(8):
            for q in range(4):
                a(f"buffer_store_dwordx4 v[20:23], v16, {WS}, s10 offen offset:{1024 * q} sc1")
            a("s_add_u32 s10, s10, 4096")
        a(f"s_lshl_b32 s10, s{S_A}, 7")
        a(f"s_add_u32 s10, s10, {WS_CLR}")
        a("v_mov_b32 v16, s10")
        a("v_mov_b32 v10, 0")
        a("v_mov_b32 v11, 0")
        a("s_mov_b64 exec, 1")
        a("s_waitcnt vmcnt(0)")
        a(f"buffer_store_dwordx4 v[10:13], v16, {WS}, 0 offen sc1")
        a("s_mov_b64 exec, -1")
        a.haz_flush(3)
        a.label("L_Alo_noclr")
    if cfg.ckpf:
        srd(SRD_A, S_CKV, 16 << 20)
        a(f"s_lshl_b32 s10, s{S_A}, 17")
        a(f"s_lshl_b32 s11, s{S_W}, 15")
        a("s_add_u32 s10, s10, s11")
        a("v_lshlrev_b32 v16, 10, v3")
        a("v_lshl_add_u32 v16, v2, 4, v16")
        for k in range(cfg.ckpf):
            i = 32 - cfg.ckpf + k
            a(f"s_add_u32 s11, s10, {(i % 8) * 4096 + (i // 8) * 256}")
            a(f"buffer_load_dwordx4 {vr(32 + 4 * k, 4)}, v16, {RA}, s11 offen")
    if cfg.xgate == 3:
        a(f"s_lshl_b32 s10, s{S_A}, 7")
        a(f"s_add_u32 s10, s10, {WS_GO}")
        a("v_mov_b32 v16, s10")
        canary(16, 20, True)
    if cfg.uv_early != 1:
        uv_loads()
    if cfg.ffnpf:
        ntf = " nt" if cfg.ffnpf == 1 else ""
        srd(SRD_A, S_WG, 512 * 2752)
        srd(SRD_B, S_WU, 512 * 2752)
        a("v_and_b32 v16, 7, v1")
        a("v_lshlrev_b32 v16, 6, v16")
        a("v_min_u32 v16, 348, v16")
        a("v_lshrrev_b32 v17, 3, v1")
        a("v_mul_u32_u24 v17, 2752, v17")
        a("v_add_u32 v16, v16, v17")
        a(f"s_lshl_b32 s10, s{S_I16}, 2")
        a(f"s_add_u32 s10, s10, s{S_W}")
        a(f"s_mul_i32 s10, s10, {8 * 2752}")
        a(f"s_mul_i32 s11, s{S_XCD}, 352")
        a("s_add_u32 s10, s10, s11")
        a(f"buffer_load_dword v18, v16, {RA}, s10 offen{ntf}")
        a(f"buffer_load_dword v19, v16, {RB}, s10 offen{ntf}")
        srd(SRD_A, S_WD, 1376 * 1024)
        a("v_lshlrev_b32 v16, 6, v0")
        a("v_min_u32 v16, 11200, v16")
        a(f"s_mul_i32 s10, s{S_A}, 11264")
        a(f"buffer_load_dword v20, v16, {RA}, s10 offen{ntf}")
        a("s_waitcnt vmcnt(3)")
    else:
        a("s_waitcnt vmcnt(0)")
    perm_set(128, 160)
    a("s_branch L_A_x")

    a.label("L_Ahi")
    a(f"s_sub_u32 s12, s{S_W}, 4")
    a(f"s_lshl_b32 s8, s{S_JF}, 7")
    a("s_lshl_b32 s10, s12, 5")
    a("s_add_u32 s8, s8, s10")
    a("s_lshl_b32 s10, s8, 13")
    a(f"s_lshl_b32 s11, s{S_HF}, 8")
    a("s_add_u32 s10, s10, s11")
    a("s_mov_b32 s57, s10")
    a("v_xor_b32 v7, v2, v3")
    a("v_lshlrev_b32 v7, 4, v7")
    a("v_lshl_add_u32 v30, v2, 8, v7")
    a("v_lshl_add_u32 v7, v3, 13, v7")
    a("s_lshl_b32 s11, s12, 13")
    a("s_add_u32 s11, s11, 16384")
    a("v_add_u32 v30, s11, v30")
    a("s_getpc_b64 s[62:63]")
    a.label("L_pc")
    a("s_sub_u32 s62, s62, L_pc-L_code_start")
    a("s_subb_u32 s63, s63, 0")
    a("s_lshl_b32 s10, s12, 4")
    a(f"s_add_u32 s10, s10, s{S_I16}")
    a("s_lshl_b32 s10, s10, 10")
    a("v_lshlrev_b32 v4, 4, v1")
    a("v_add_u32 v5, s10, v4")
    a("v_min_u32 v5, L_code_end-L_code_start-16, v5")
    a("global_load_dwordx4 v[8:11], v5, s[62:63]")
    a(f"s_lshl_b32 s10, s{S_HF}, 13")
    a(f"s_add_u32 s10, s10, {WS_QPG2 if cfg.e1local else WS_QPG}")
    a("v_add_u32 v6, s10, v4")
    a(f"v_subrev_u32 v27, {WS_QPG2 - WS_QPG}, v6")
    a("v_mov_b32 v26, v6")
    a("s_waitcnt lgkmcnt(0)")
    srd(SRD_A, S_WUK, 4 << 20)
    srd(SRD_WS, S_WS, WS_SIZE)
    a(f"s_load_dword s44, s[{S_WS}:{S_WS + 1}], {WS_EPOCH}")
    a("s_mov_b32 s51, 4096")

    def qpg_load(k):
        so = "0" if k < 4 else "s51"
        a(f"buffer_load_dwordx4 {vr(64 + 4 * k, 4)}, v6, {WS}, {so} offen offset:{1024 * (k % 4)} sc1")

    if cfg.pretouch:
        a("s_lshl_b32 s10, s12, 11")
        a(f"buffer_load_dwordx4 v[64:67], v6, {WS}, s10 offen sc1")
        a(f"buffer_load_dwordx4 v[68:71], v6, {WS}, s10 offen offset:1024 sc1")
    def uk_dma():
        for k in range(8):
            a(f"s_add_u32 m0, s11, {1024 * k}")
            a(f"v_xor_b32 v{28 + k % 2}, {(k % 4) * 64}, v7")
            a(f"buffer_load_dwordx4 v{28 + k % 2}, {RA}, s57 offen nt lds")
            if k < 7:
                a("s_add_u32 s57, s57, 32768")

    if not cfg.uk_late:
        uk_dma()
    a(f"s_add_u32 s50, s12, s{S_J}")
    a("s_and_b32 s50, s50, 3")
    a(f"s_lshl_b32 s10, s{S_A}, 10")
    a("s_lshl_b32 s56, s50, 8")
    a("s_add_u32 s10, s10, s56")
    a(f"s_add_u32 s10, s10, {WS_AO}")
    a("v_lshlrev_b32 v31, 17, v3")
    a("v_lshl_add_u32 v31, v2, 4, v31")
    a("v_add_u32 v31, s10, v31")
    for k in range(4):
        a(f"v_mov_b32 v{12 + k}, -1")
    a(f"buffer_store_dwordx4 v[12:15], v31, {WS}, 0 offen sc1")
    a("s_cmp_eq_u32 s12, 0")
    a("s_cbranch_scc0 L_Ahi_noh")
    a(f"s_lshl_b32 s10, s{S_A}, 7")
    a(f"s_add_u32 s10, s10, {WS_H}")
    a("v_add_u32 v5, s10, v4")
    a("s_mov_b64 exec, 0xff")
    a(f"buffer_store_dwordx4 v[12:15], v5, {WS}, 0 offen sc1")
    a("s_mov_b64 exec, -1")
    a.label("L_Ahi_noh")
    a(f"s_lshl_b32 s10, s{S_HF}, 11")
    a("s_lshl_b32 s56, s8, 2")
    a("s_add_u32 s10, s10, s56")
    a(f"s_add_u32 s10, s10, {WS_QL}")
    a("v_and_b32 v16, 3, v2")
    a("v_lshlrev_b32 v17, 16, v16")
    a("v_lshrrev_b32 v18, 2, v2")
    a("v_lshl_add_u32 v17, v18, 6, v17")
    a("v_lshl_add_u32 v17, v3, 4, v17")
    a("v_add_u32 v17, s10, v17")
    a("v_cmp_eq_u32 s[58:59], 1, v18")
    srd(SRD_B, S_WO, 4 << 20)
    a(f"s_lshl_b32 s10, s{S_H}, 17")
    a("s_lshl_b32 s56, s50, 8")
    a("s_add_u32 s10, s10, s56")
    a("v_lshlrev_b32 v19, 13, v3")
    a("v_lshl_add_u32 v19, v2, 4, v19")
    a("v_add_u32 v19, s10, v19")
    a("s_waitcnt lgkmcnt(0)")
    tags()
    a("v_mov_b32 v22, s48")
    a("v_mov_b32 v23, s49")
    if cfg.ts == 2:
        a("s_waitcnt vmcnt(11)")
        TS(3, 2)
        a("s_waitcnt vmcnt(9)")
        TS(4, 2)
        a("s_waitcnt vmcnt(1)")
        TS(5, 2)
    a("s_barrier")
    if cfg.uk_late:
        uk_dma()
    a("s_waitcnt vmcnt(0)")
    TS(1)
    for t in range(4):
        a(f"v_xor_b32 v28, {t * 64}, v30")
        for ct in range(2):
            a(f"ds_read_b128 {vr(32 + 16 * ct + 4 * t, 4)}, v28 offset:{4096 * ct}")
    if cfg.e1lds:
        a("s_lshl_b32 s10, s12, 11")
        a("s_lshl_b32 s11, s12, 10")
        a("v_add_u32 v5, 8192, v4")
        a("v_add_u32 v29, s11, v5")
        a.label("L_Ahi_poll")
        a(f"buffer_load_dwordx4 v[64:67], v6, {WS}, s10 offen sc1")
        a(f"buffer_load_dwordx4 v[68:71], v6, {WS}, s10 offen offset:1024 sc1")
        a("s_waitcnt vmcnt(1)")
        a("v_cmp_ne_u64 s[60:61], s[48:49], v[64:65]")
        a("s_waitcnt vmcnt(0)")
        a("v_cmp_ne_u64 vcc, s[48:49], v[70:71]")
        a("s_or_b64 s[60:61], s[60:61], vcc")
        a("s_cbranch_scc0 L_Ahi_got")
        if cfg.e1local:
            a("s_and_b32 s56, s13, 7")
            a("s_cmp_eq_u32 s56, 1")
            a("s_cselect_b64 vcc, -1, 0")
            a("v_cndmask_b32 v6, v26, v27, vcc")
        a("s_sub_u32 s13, s13, 1")
        a("s_cbranch_scc0 L_Ahi_poll")
        a("s_mov_b32 s13, 0")
        a.label("L_Ahi_got")
        a("ds_write_b128 v29, v[66:69]")
        a("s_waitcnt lgkmcnt(0)")
        a("s_barrier")
        for t in range(4):
            a(f"ds_read_b128 {vr(72 + 4 * t, 4)}, v5 offset:{1024 * t}")
        TS(2)
        for t in range(4):
            a(f"s_waitcnt lgkmcnt({3 - t})")
            for ct in range(2):
                mfma16(96 + 4 * ct, 32 + 16 * ct + 4 * t, 72 + 4 * t, None if t == 0 else 96 + 4 * ct)
    else:
        a.label("L_Ahi_poll")
        for k in range(8):
            qpg_load(k)
        a("s_mov_b64 s[60:61], 0")
        for k in range(8):
            a(f"s_waitcnt vmcnt({7 - k})")
            tr = 64 + 4 * k + (0 if k % 2 == 0 else 2)
            a(f"v_cmp_ne_u64 vcc, s[48:49], {vr(tr, 2)}")
            a("s_or_b64 s[60:61], s[60:61], vcc")
        a("s_cmp_eq_u64 s[60:61], 0")
        a("s_cbranch_scc1 L_Ahi_got")
        if cfg.e1local:
            a("s_and_b32 s10, s13, 7")
            a("s_cmp_eq_u32 s10, 1")
            a("s_cselect_b64 vcc, -1, 0")
            a("v_cndmask_b32 v6, v26, v27, vcc")
        a("s_sub_u32 s13, s13, 1")
        a("s_cbranch_scc0 L_Ahi_poll")
        a("s_mov_b32 s13, 0")
        a.label("L_Ahi_got")
        a("s_waitcnt lgkmcnt(0)")
        TS(2)
        for t in range(4):
            for ct in range(2):
                mfma16(96 + 4 * ct, 32 + 16 * ct + 4 * t, 66 + 8 * t, None if t == 0 else 96 + 4 * ct)
    dpp_ror_reduce(range(96, 104), (4, 8))
    for k in range(4):
        a(f"v_cndmask_b32 v{24 + k}, v{96 + k}, v{100 + k}, s[58:59]")
    sc = f32(128 ** -0.5 * math.log2(math.e))
    for k in range(4):
        a(f"v_mul_f32 v{24 + k}, {hex(sc)}, v{24 + k}")
    a("v_cvt_pk_bf16_f32 v20, v24, v25")
    a("v_cvt_pk_bf16_f32 v21, v26, v27")
    a("s_mov_b32 exec_lo, 0x00ff00ff")
    a("s_mov_b32 exec_hi, 0x00ff00ff")
    a(f"buffer_store_dwordx4 v[20:23], v17, {WS}, 0 offen sc1")
    a("s_mov_b64 exec, -1")
    a("s_barrier")
    for t in range(4):
        a(f"s_add_u32 s56, s{S_J}, {t}")
        a("s_and_b32 s56, s56, 3")
        a(f"s_lshl_b32 s{52 + t}, s56, 6")
        a("s_lshl_b32 s56, s56, 15")
        for hf in range(2):
            if hf:
                a("s_add_u32 s56, s56, 4096")
            for q in range(4):
                jj = hf * 4 + q
                if cfg.wo_depth and cfg.wo_depth <= 8 * t + jj < cfg.wo_n:
                    a(f"s_waitcnt vmcnt({cfg.wo_depth - 1})")
                a(f"buffer_load_dwordx4 {vr(128 + 32 * t + 4 * jj, 4)}, v19, {RB}, s56 offen offset:{1024 * q}{' nt' if cfg.nt_wo else ''}")
    for k in range(4):
        a(f"s_waitcnt vmcnt({8 * (3 - k)})")
        perm_set(128 + 32 * k, 96 + 32 * k)

    a.label("L_A_x")
    TS(3)
    T, AF, MK, D, STR = 32, 48, 64, 68, 72
    CL, CX = 0, 4096
    a(f"s_lshl_b32 s10, s{S_A}, 15")
    a(f"s_lshl_b32 s56, s{S_W}, 12")
    a("s_add_u32 s10, s10, s56")
    a(f"s_add_u32 s10, s10, {WS_OP}")
    a("v_lshlrev_b32 v5, 4, v1")
    a("v_add_u32 v5, s10, v5")
    a(f"s_lshr_b32 s10, s{S_W}, 1")
    a("s_lshl_b32 s10, s10, 14")
    a(f"s_lshl_b32 s56, s{S_H}, 4")
    a("s_add_u32 s10, s10, s56")
    a(f"s_add_u32 s10, s10, {WS_ST}")
    a("v_and_b32 v4, 31, v1")
    a("v_lshlrev_b32 v4, 9, v4")
    a("v_add_u32 v4, s10, v4")
    sel_masks(MK, 8)
    a(f"s_and_b32 s10, s{S_W}, 1")
    a("s_lshl_b32 s10, s10, 6")
    a("v_lshlrev_b32 v6, 2, v3")
    a("v_add_u32 v6, s10, v6")
    a(f"s_mul_i32 s10, s{S_W}, 272")
    a("v_lshlrev_b32 v8, 4, v2")
    a("v_lshl_add_u32 v8, v3, 3, v8")
    a("v_add_u32 v8, s10, v8")
    a("v_lshrrev_b32 v9, 2, v2")
    a("v_and_b32 v10, 1, v2")
    a("v_lshl_add_u32 v9, v9, 1, v10")
    a("v_mul_u32_u24 v9, 272, v9")
    a("v_lshl_add_u32 v9, v3, 4, v9")
    a(f"s_lshl_b32 s56, s{S_W}, 6")
    a("v_add_u32 v9, s56, v9")
    a("v_mul_u32_u24 v10, 1088, v3")
    a("v_lshl_add_u32 v10, v2, 4, v10")
    a(f"s_add_u32 s10, s10, {CX}")
    a("v_add_u32 v10, s10, v10")
    a("v_mul_u32_u24 v11, 272, v2")
    a("v_lshl_add_u32 v11, v3, 4, v11")
    a(f"v_add_u32 v11, {CX}, v11")
    a(f"s_lshl_b32 s10, s{S_J}, 14")
    a(f"s_lshl_b32 s56, s{S_W}, 11")
    a("s_add_u32 s10, s10, s56")
    a(f"s_add_u32 s10, s10, {WS_FL}")
    a("v_lshlrev_b32 v7, 7, v2")
    a("v_add_u32 v7, s10, v7")
    if cfg.tlb:
        a("s_mov_b64 exec, 1")
        a(f"buffer_load_dword v12, v5, {WS}, 0 offen nt")
        a("v_mov_b32 v13, 0")
        a(f"global_load_dword v14, v13, s[{S_OUT}:{S_OUT + 1}]")
        a("s_mov_b64 exec, 0xff")
        a("v_lshlrev_b32 v13, 16, v1")
        a(f"v_add_u32 v13, {WS_FP + 65536 - 128}, v13")
        a(f"buffer_load_dword v15, v13, {WS}, 0 offen nt")
        a("s_mov_b64 exec, -1")
    if cfg.ck >= 3:
        a(f"s_lshr_b32 s10, s{S_W}, 1")
        a("s_lshl_b32 s10, s10, 17")
        a(f"s_lshl_b32 s56, s{S_J}, 10")
        a("s_add_u32 s10, s10, s56")
        a(f"s_lshl_b32 s56, s{S_H}, 5")
        a("s_add_u32 s10, s10, s56")
        a(f"s_add_u32 s10, s10, {WS_CK}")
        a("v_and_b32 v4, 31, v1")
        a("v_lshlrev_b32 v4, 12, v4")
        a("v_lshrrev_b32 v7, 5, v1")
        a("v_lshl_add_u32 v4, v7, 4, v4")
        a("v_add_u32 v4, s10, v4")
        a(f"s_and_b32 s10, s{S_W}, 1")
        a("s_add_u32 s10, s10, 2")
        a("v_cmp_eq_u32 s[60:61], s10, v3")
    elif cfg.ck:
        a(f"s_lshl_b32 s10, s{S_W}, 15")
        a(f"s_lshl_b32 s56, s{S_J}, 9")
        a("s_add_u32 s10, s10, s56")
        a(f"s_lshl_b32 s56, s{S_H}, 4")
        a("s_add_u32 s10, s10, s56")
        a(f"s_add_u32 s10, s10, {WS_CK}")
        a("v_and_b32 v7, 3, v2")
        a("v_lshl_add_u32 v7, v7, 2, v3")
        a("v_lshlrev_b32 v7, 11, v7")
        a("v_add_u32 v7, s10, v7")
        a("v_mov_b32 v76, 0")
        a("v_mov_b32 v77, 0")
        a("v_mov_b32 v78, s48")
        a("v_mov_b32 v79, s49")
        a("s_mov_b32 s60, 0x000f000f")
        a("s_mov_b32 s61, 0x000f000f")
    if cfg.stpre:
        a(f"buffer_load_dwordx4 {vr(STR, 4)}, v4, {WS}, 0 offen sc1")
    canary(4, STR, True)
    mpoll_tag(4, STR)
    TS(4)

    def op_loads():
        if cfg.ck in (1, 2):
            a("s_mov_b64 exec, s[60:61]")
            a(f"buffer_load_dwordx4 v[76:79], v7, {WS}, 0 offen sc1")
            a("s_mov_b64 exec, -1")
        for i in range(4):
            a(f"buffer_load_dwordx4 {vr(T + 4 * i, 4)}, v5, {WS}, 0 offen offset:{1024 * i} sc1")

    if not cfg.fl:
        op_loads()
    if cfg.ck >= 3:
        a(f"v_cndmask_b32 v76, 0, v{STR}, s[60:61]")
        a(f"v_cndmask_b32 v77, 0, v{STR + 1}, s[60:61]")
        if cfg.ckm:
            a("v_sub_u32 v76, 0, v76")
            a("v_sub_u32 v77, 0, v77")
    a(f"v_mov_b32 v12, v{STR}")
    dpp_ror_reduce([12], (1, 2, 4, 8), "v_max_f32")
    swap_reduce(12, 13, 16, "v_max_f32")
    a(f"v_sub_f32 v12, v{STR}, v12")
    a("v_exp_f32 v12, v12")
    a("v_cvt_pk_bf16_f32 v12, v12, v12")
    for i in range(4):
        a(f"ds_bpermute_b32 v{16 + i}, v6, v12 offset:{16 * i}")
    a("v_and_b32 v13, 0xffff0000, v12")
    a(f"v_mul_f32 v13, v13, v{STR + 1}")
    dpp_ror_reduce([13], (1, 2, 4, 8))
    swap_reduce(13, 14, 16)
    a("v_rcp_f32 v13, v13")
    for i in range(4):
        a(f"s_waitcnt lgkmcnt({3 - i})")
        for p in range(4):
            a(f"v_and_b32 v{AF + 4 * i + p}, v{16 + i}, v{MK + p}")
    if cfg.fl:
        mpoll_tag(7, STR, "0xffff")
        op_loads()
    if cfg.direct:
        a("s_branch L_A_opchk")
        a.label("L_A_oppoll")
        op_loads()
        a.label("L_A_opchk")
        a("s_waitcnt vmcnt(0)")
        valid_check(range(T, T + 16), 7, "L_A_oppoll")
    if cfg.ck:
        a("s_branch L_A_ckchk")
        a.label("L_A_ckpoll")
        op_loads()
        a.label("L_A_ckchk")
        if cfg.ck < 3:
            a("s_waitcnt vmcnt(4)")
            a("v_cmp_ne_u64 s[56:57], s[48:49], v[78:79]")
        for i in range(4):
            a(f"s_waitcnt vmcnt({3 - i})")
            x = T + 4 * i
            if cfg.ckm:
                u = 84 + 4 * (i % 2)
                for k in range(4):
                    a(f"v_xor_b32 v{u + k}, s{48 + k % 2}, v{x + k}")
                a(f"v_add3_u32 v80, {'v76' if i == 0 else 'v80'}, v{x}, v{x + 2}")
                a(f"v_add3_u32 v81, {'v77' if i == 0 else 'v81'}, v{x + 1}, v{x + 3}")
                mfma16(D, AF + 4 * i, u, None if i == 0 else D)
            else:
                mfma16(D, AF + 4 * i, T + 4 * i, None if i == 0 else D)
                a(f"v_bitop3_b32 v80, {'v76' if i == 0 else 'v80'}, v{x}, v{x + 2} bitop3:0x96")
                a(f"v_bitop3_b32 v81, {'v77' if i == 0 else 'v81'}, v{x + 1}, v{x + 3} bitop3:0x96")
        dpp_ror_reduce([80, 81], (1, 2, 4, 8), CKOP)
        if cfg.ck >= 3:
            for wh in (16, 32):
                swap_reduce(80, 82, wh, CKOP)
                swap_reduce(81, 83, wh, CKOP)
            a("v_cmp_ne_u64 vcc, 0, v[80:81]")
            a("s_cbranch_vccz L_A_ckok")
        else:
            a("v_cmp_ne_u64 vcc, 0, v[80:81]")
            a("s_or_b64 s[56:57], s[56:57], vcc")
            a("s_cbranch_scc0 L_A_ckok")
        a("s_sub_u32 s13, s13, 1")
        a("s_cbranch_scc0 L_A_ckpoll")
        a("s_mov_b32 s13, 0")
        a.label("L_A_ckok")
        TS(5)
    else:
        if cfg.ts:
            a("s_waitcnt vmcnt(0)")
        TS(5)
        for i in range(4):
            a(f"s_waitcnt vmcnt({3 - i})")
            mfma16(D, AF + 4 * i, T + 4 * i, None if i == 0 else D)
    for k in range(4):
        a(f"v_mul_f32 v{D + k}, v{D + k}, v13")
    a(f"v_cvt_pk_bf16_f32 v14, v{D}, v{D + 1}")
    a(f"v_cvt_pk_bf16_f32 v15, v{D + 2}, v{D + 3}")
    a("s_mov_b32 exec_hi, 0")
    a("ds_write_b64 v8, v[14:15]")
    a("s_mov_b64 exec, -1")
    a("s_waitcnt lgkmcnt(0)")
    a("s_barrier")
    a(f"s_cmp_ge_u32 s{S_W}, 4")
    a("s_cbranch_scc1 L_A_x3")
    a("ds_read_b128 v[16:19], v9")
    a("s_waitcnt lgkmcnt(0)")
    for c in range(8):
        mfma16(96 + 4 * c, 16, 160 + 4 * c, None)
    for c in range(8):
        a(f"v_add_f32 v{96 + 4 * c}, v{96 + 4 * c}, v{97 + 4 * c}")
    for p in range(4):
        a(f"v_cvt_pk_bf16_f32 v{20 + p}, v{96 + 8 * p}, v{100 + 8 * p}")
    a("ds_write_b128 v10, v[20:23]")
    a("s_waitcnt lgkmcnt(0)")
    a("s_barrier")
    TS(6)
    a(f"s_cmp_eq_u32 s{S_W}, 0")
    END_IF("scc0", 7)
    a("s_branch L_A_fin")
    a.label("L_A_x3")
    for t in range(4):
        a(f"v_add_u32 v{24 + t}, s{52 + t}, v11")
    a("s_barrier")
    for t in range(4):
        a(f"ds_read_b128 {vr(32 + 4 * t, 4)}, v{24 + t}")
    def x3_tail(c):
        x = 224 + 4 * c
        a(f"v_add_f32 v{x}, v{x}, v{x + 1}")
        a(f"v_add_f32 v{x + 2}, v{x + 2}, v{x + 3}")
        a(f"v_add_f32 v{x}, v{x}, v{x + 2}")
        if c % 2:
            a(f"v_cvt_pk_bf16_f32 v{20 + c // 2}, v{x - 4}, v{x}")

    if cfg.x3i:
        for t in range(2):
            a(f"s_waitcnt lgkmcnt({3 - t})")
            for c in range(8):
                mfma16(224 + 4 * c, 32 + 4 * t, 96 + 32 * t + 4 * c, None if t == 0 else 224 + 4 * c)
        a("s_waitcnt lgkmcnt(0)")
        for c in range(8):
            for t in (2, 3):
                mfma16(224 + 4 * c, 32 + 4 * t, 96 + 32 * t + 4 * c, 224 + 4 * c)
            if c >= 2:
                x3_tail(c - 2)
        x3_tail(6)
        x3_tail(7)
    else:
        for t in range(4):
            a(f"s_waitcnt lgkmcnt({3 - t})")
            for c in range(8):
                mfma16(224 + 4 * c, 32 + 4 * t, 96 + 32 * t + 4 * c, None if t == 0 else 224 + 4 * c)
        for c in range(8):
            x3_tail(c)
    a(f"buffer_store_dwordx4 v[20:23], v31, {WS}, 0 offen sc1")
    TS(6)
    END(7)

    a.label("L_A_fin")
    a(f"s_lshl_b32 s10, s{S_J}, 10")
    a(f"s_lshl_b32 s56, s{S_H}, 5")
    a("s_add_u32 s10, s10, s56")
    a("v_lshrrev_b32 v4, 1, v2")
    a("v_lshl_add_u32 v4, v3, 3, v4")
    a("v_and_b32 v5, 1, v2")
    a("v_lshlrev_b32 v5, 4, v5")
    a("v_lshl_add_u32 v6, v3, 3, v5")
    a("v_add_u32 v6, s10, v6")
    a(f"s_add_u32 s11, s10, {WS_FP}")
    a("v_lshl_add_u32 v8, v4, 12, v5")
    a("v_add_u32 v8, s11, v8")
    a(f"v_add_u32 v9, {64 * 4096}, v8")
    a("s_lshl_b32 s10, s10, 2")
    a(f"s_add_u32 s10, s10, {WS_H}")
    a("v_add_u32 v10, s10, v5")
    a(f"v_cmp_eq_u32 vcc, {NSLICE - 64}, v4")
    a("v_cndmask_b32 v9, v9, v10, vcc")
    a(f"v_cmp_ge_u32 s[56:57], {NSLICE - 64}, v4")
    for k in range(4):
        a(f"v_mov_b32 v{40 + k}, 0")
        a(f"v_and_b32 v{16 + k}, 0x3f803f80, v{MK + k}")
    a(f"s_mov_b32 s11, {32 * 4096}")
    srd(SRD_A, S_OUT, 4096)
    canary(8, 32, False)
    mpoll_data([(32, f"buffer_load_dwordx4 v[32:35], v8, {WS}, 0 offen sc1"),
                (36, f"buffer_load_dwordx4 v[36:39], v8, {WS}, s11 offen sc1"),
                (40, f"buffer_load_dwordx4 v[40:43], v9, {WS}, 0 offen sc1")], 24, 7, ["-1", "-1", "s[56:57]"])
    for i in range(3):
        mfma16(D, 16, 32 + 4 * i, None if i == 0 else D)
    dpp_ror_reduce(range(D, D + 4), (2, 4, 8))
    a(f"v_cvt_pk_bf16_f32 v14, v{D}, v{D + 1}")
    a(f"v_cvt_pk_bf16_f32 v15, v{D + 2}, v{D + 3}")
    a("s_mov_b64 exec, 0x00030003")
    a(f"buffer_store_dwordx2 v[14:15], v6, {RA}, 0 offen{' sc1' if cfg.out_sc1 else ''}")
    a(f"s_cmp_eq_u32 s{S_A}, 0")
    a("s_cbranch_scc0 L_A_done")
    a("s_mov_b64 exec, 1")
    a("v_mov_b32 v9, s44")
    a("v_mov_b32 v10, 0")
    a(f"buffer_store_dword v9, v10, {WS}, 0 offen offset:{WS_EPOCH} sc1")
    a.label("L_A_done")
    if cfg.dbg >= 2:
        a.label("L_dbg_spin")
        a(f"s_memrealtime s[{S_TS + 2}:{S_TS + 3}]")
        a("s_waitcnt lgkmcnt(0)")
        a(f"s_sub_u32 s10, s{S_TS + 2}, s{S_TS}")
        a(f"s_cmp_lt_u32 s10, {cfg.dbg * 100}")
        a("s_cbranch_scc1 L_dbg_spin")
    if cfg.dbg:
        a(f"s_memrealtime s[{S_TS + 2}:{S_TS + 3}]")
        a("s_waitcnt lgkmcnt(0)")
        a("s_mov_b64 exec, 1")
        a(f"v_mov_b32 v12, s{S_TS}")
        a(f"v_mov_b32 v13, s{S_TS + 2}")
        a(f"s_lshl_b32 s10, s{S_A}, 3")
        a(f"s_add_u32 s10, s10, {WS_DBG}")
        a("v_mov_b32 v10, s10")
        a(f"buffer_store_dwordx2 v[12:13], v10, {WS}, 0 offen")
    TS(7)
    END(8)

    a.label("L_B")
    inA[0] = False
    S_BB, S_CH, S_R, S_SL = 6, 7, 9, 51
    QB = 131072
    a(f"s_and_b32 s{S_I16}, s{S_I16}, 15")
    a(f"s_lshl_b32 s{S_R}, s{S_XCD}, 4")
    a(f"s_add_u32 s{S_R}, s{S_R}, s{S_I16}")
    a(f"s_lshr_b32 s{S_BB}, s{S_R}, 5")
    a(f"s_and_b32 s{S_CH}, s{S_R}, 31")
    MXB, PB, SB, STG = QB, QB + 1024, QB + 9728, 0
    for k in range(4):
        a(f"v_mov_b32 v{26 + k}, -1")
    a(f"s_mul_i32 s{S_SL}, s{S_XCD}, 11")
    a(f"s_add_u32 s{S_SL}, s{S_SL}, s{S_I16}")
    a(f"s_cmp_lt_u32 s{S_I16}, 11")
    a(f"s_cselect_b32 s{S_SL}, s{S_SL}, 127")
    a(f"s_lshl_b32 s10, s{S_SL}, 12")
    a(f"s_lshl_b32 s11, s{S_W}, 7")
    a("s_add_u32 s10, s10, s11")
    a(f"s_add_u32 s10, s10, {WS_FP}")
    a("v_and_b32 v31, 3, v2")
    a("v_lshlrev_b32 v31, 10, v31")
    a("v_lshrrev_b32 v12, 2, v2")
    a("v_lshl_add_u32 v31, v12, 5, v31")
    a("v_lshl_add_u32 v31, v3, 3, v31")
    a("v_add_u32 v31, s10, v31")
    a("v_and_b32 v12, 31, v1")
    a("v_lshrrev_b32 v13, 5, v1")
    a(f"s_cmp_ge_u32 s{S_W}, 4")
    a("s_cbranch_scc1 L_B_pv")

    a(f"s_lshl_b32 s8, s{S_R}, 17")
    a(f"s_lshl_b32 s10, s{S_W}, 15")
    a("s_add_u32 s8, s8, s10")
    a("v_lshlrev_b32 v4, 2, v3")
    a("v_xor_b32 v4, v4, v2")
    a("v_lshlrev_b32 v4, 4, v4")
    a("v_lshl_add_u32 v4, v3, 10, v4")
    for k in range(1, 4):
        a(f"v_xor_b32 v{4 + k}, {G(k) * 16}, v4")
    a("v_lshrrev_b32 v8, 2, v2")
    a("v_lshlrev_b32 v8, 1, v8")
    a("v_mov_b32 v9, 0x78")
    a("v_lshrrev_b32 v8, v8, v9")
    a("v_and_b32 v8, 3, v8")
    a("v_and_b32 v9, 3, v2")
    a("v_lshl_add_u32 v8, v9, 2, v8")
    a("v_xor_b32 v8, v8, v13")
    a("v_lshlrev_b32 v8, 4, v8")
    a("v_lshl_add_u32 v8, v12, 8, v8")
    a("v_add_u32 v8, s10, v8")
    for tt in range(8):
        a(f"v_xor_b32 v{48 + tt}, {tt * 32}, v8")
    a("s_waitcnt lgkmcnt(0)")
    a(f"s_load_dword s44, s[{S_WS}:{S_WS + 1}], {WS_EPOCH}")
    srd(SRD_A, S_CKV, 16 << 20)
    srd(SRD_WS, S_WS, WS_SIZE)
    a(f"buffer_store_dwordx2 v[26:27], v31, {WS}, 0 offen sc1")
    if cfg.b_delay == 1:
        a("s_waitcnt lgkmcnt(0)")
    if cfg.b_delay == 2:
        a("s_waitcnt vmcnt(0) lgkmcnt(0)")
    if cfg.b_delay >= 3:
        a(f"s_sleep {cfg.b_delay}")
    DD = cfg.dma_depth
    assert DD <= 8

    def go_store():
        a(f"s_cmp_eq_u32 s{S_W}, 3")
        a("s_cbranch_scc0 L_B_nogo")
        a(f"s_lshl_b32 s12, s{S_R}, 7")
        a(f"s_add_u32 s12, s12, {WS_GO}")
        a("v_mov_b32 v24, s12")
        a("s_mov_b64 exec, 1")
        a(f"buffer_store_dwordx4 v[26:29], v24, {WS}, 0 offen sc1")
        a("s_mov_b64 exec, -1")
        a.label("L_B_nogo")

    def afrag_reads(q):
        for tt in range(8):
            a(f"ds_read_b128 {vr(128 + 32 * q + 4 * tt, 4)}, v{48 + tt} offset:{8192 * q}")

    for i in range(32):
        q, rr = i // 8, i % 8
        if i == cfg.bs_at:
            a("s_barrier")
        if i >= DD:
            a(f"s_waitcnt vmcnt({DD - 1})")
        a(f"s_add_u32 m0, s10, {1024 * i}")
        a(f"s_add_u32 s11, s8, {rr * 4096 + q * 256}")
        a(f"buffer_load_dwordx4 v{4 + rr % 4}, {RA}, s11 offen nt lds")
        if i == 1:
            a("v_xor_b32 v8, v2, v13")
            a("v_lshlrev_b32 v8, 4, v8")
            a("v_lshl_add_u32 v8, v12, 10, v8")
            a(f"v_add_u32 v8, {QB}, v8")
            for tt in range(8):
                a(f"v_xor_b32 v{56 + tt}, {tt * 32}, v8")
            a("v_lshlrev_b32 v65, 4, v12")
            a(f"v_add_u32 v65, {MXB}, v65")
            a(f"s_lshl_b32 s12, s{S_W}, 2")
            a("v_add_u32 v64, s12, v65")
            a("v_mul_u32_u24 v66, 272, v12")
            a("v_lshl_add_u32 v66, v13, 3, v66")
            a(f"s_lshl_b32 s12, s{S_W}, 6")
            a(f"s_add_u32 s12, s12, {PB}")
            a("v_add_u32 v66, s12, v66")
            a("v_lshlrev_b32 v68, 5, v12")
            a(f"v_add_u32 v68, {SB}, v68")
            a("v_lshl_add_u32 v67, v13, 2, v68")
            a(f"s_lshl_b32 s12, s{S_W}, 3")
            a("v_add_u32 v67, s12, v67")
            a(f"s_lshl_b32 s12, s{S_R}, 9")
            a(f"s_add_u32 s12, s12, {WS_ST}")
            a("v_lshlrev_b32 v25, 4, v12")
            a("v_add_u32 v25, s12, v25")
        if i == 3 and cfg.ffnpf2:
            a("v_lshrrev_b32 v69, 1, v1")
            a("v_mul_u32_u24 v69, 2752, v69")
            a("v_and_b32 v70, 1, v1")
            a("v_lshl_add_u32 v69, v70, 6, v69")
            a(f"s_and_b32 s56, s{S_SL}, 3")
            a("s_lshl_b32 s56, s56, 2")
            a(f"s_add_u32 s56, s56, s{S_W}")
            a(f"s_mul_i32 s56, s56, {32 * 2752}")
            a(f"s_lshr_b32 s57, s{S_SL}, 2")
            a("s_lshl_b32 s57, s57, 7")
            a("s_add_u32 s56, s56, s57")
            srd(SRD_B, S_WG, 512 * 2752)
            srd(20, S_WU, 512 * 2752)
        if i == 3 and cfg.fe:
            a("v_lshrrev_b32 v69, 1, v1")
            a("v_mul_u32_u24 v69, 2752, v69")
            a("v_and_b32 v70, 1, v1")
            a("v_lshl_add_u32 v69, v70, 4, v69")
            a(f"s_lshl_b32 s56, s{S_SL}, 1")
            a(f"s_add_u32 s56, s56, s{S_W}")
            a("s_and_b32 s56, s56, 7")
            a(f"s_mul_i32 s56, s56, {64 * 2752}")
            a(f"s_lshl_b32 s57, s{S_SL}, 5")
            a("s_add_u32 s56, s56, s57")
            a(f"s_add_u32 s57, s56, {32 * 2752}")
            srd(SRD_B, S_WG, 512 * 2752)
            srd(20, S_WU, 512 * 2752)
        if i == 9:
            a("s_waitcnt lgkmcnt(0)")
            tags()
            a("v_mov_b32 v28, s48")
            a("v_mov_b32 v29, s49")
        if cfg.xgate and i == cfg.go_at:
            go_store()
        if i in (16, 24):
            afrag_reads(i // 8 - 2)
        if i == cfg.b0_at:
            a("s_barrier")
    TS(1)
    if cfg.xgate and cfg.go_at == 32:
        go_store()
    if cfg.b0_at > 32:
        a(f"s_waitcnt vmcnt({40 - cfg.b0_at})")
        a("s_barrier")
    a("s_waitcnt vmcnt(8)")
    afrag_reads(2)
    a("s_waitcnt lgkmcnt(0)")
    TS(2)
    a("s_barrier")
    if cfg.xgate and cfg.go_at == 33:
        go_store()
    TS(1, 3)
    if cfg.ts == 3:
        a(f"s_memtime s[{S_TS + 6}:{S_TS + 7}]")
        a("s_waitcnt lgkmcnt(0)")
    pend = []

    def lds(tag, text):
        a(text)
        pend.append(tag)

    def need_lds(*tags_):
        idxs = [pend.index(t_) for t_ in tags_ if t_ in pend]
        if not idxs:
            return
        idx = max(idxs)
        assert len(pend) - 1 - idx <= 15
        a(f"s_waitcnt lgkmcnt({len(pend) - 1 - idx})")
        del pend[:idx + 1]

    def qread(t):
        lds(("q", t), f"ds_read_b128 {vr(96 + 4 * (t % 8), 4)}, v{56 + t % 8} offset:{256 * (t // 8)}")

    QD = 6
    for t in range(QD):
        qread(t)
    for t in range(32):
        if t == cfg.q3_at:
            a("s_waitcnt vmcnt(0)")
            for tt in range(8):
                lds(("a", 24 + tt), f"ds_read_b128 {vr(224 + 4 * tt, 4)}, v{48 + tt} offset:{8192 * 3}")
            if cfg.fe:
                a(f"s_cmp_ge_u32 s{S_SL}, {NSLICE}")
                a("s_cbranch_scc1 L_B_nofe")
                lst = [(RB, "s56"), (RB, "s57"), ("s[20:23]", "s56"), ("s[20:23]", "s57")]
                for k in range(cfg.fe):
                    a(f"buffer_load_dwordx4 {vr(72 + 4 * k, 4)}, v69, {lst[k][0]}, {lst[k][1]} offen nt")
                a.label("L_B_nofe")
            if cfg.ffnpf2:
                a(f"s_cmp_ge_u32 s{S_SL}, {NSLICE}")
                a("s_cbranch_scc1 L_B_nopf2")
                a(f"buffer_load_dword v70, v69, {RB}, s56 offen")
                a("buffer_load_dword v71, v69, s[20:23], s56 offen")
                a.label("L_B_nopf2")
        need_lds(("a", t), ("q", t))
        cin = "0" if t == 0 else "v[32:47]"
        a(f"v_mfma_f32_32x32x16_bf16 v[32:47], {vr(128 + 4 * t, 4)}, {vr(96 + 4 * (t % 8), 4)}, {cin}")
        if t + QD < 32:
            qread(t + QD)
    a("s_barrier")
    a("v_max3_f32 v22, v32, v33, v34")
    a("v_max3_f32 v23, v35, v36, v37")
    TS(2, 3)
    if cfg.ts == 3:
        a(f"s_memtime s[{S_TS + 10}:{S_TS + 11}]")
        a("s_waitcnt lgkmcnt(0)")
    for k in range(38, 46, 4):
        a(f"v_max3_f32 v22, v22, v{k}, v{k + 1}")
        a(f"v_max3_f32 v23, v23, v{k + 2}, v{k + 3}")
    a("v_max3_f32 v22, v22, v46, v47")
    a("v_max_f32 v22, v22, v23")
    swap_reduce(22, 23, 32, "v_max_f32")
    a("ds_write_b32 v64, v22")
    a("s_waitcnt lgkmcnt(0)")
    a("s_barrier")
    TS(6, 3)
    a("ds_read_b128 v[96:99], v65")
    a("s_waitcnt lgkmcnt(0)")
    a("v_max3_f32 v26, v96, v97, v98")
    a("v_max_f32 v26, v26, v99")
    for g4 in range(4):
        x = 32 + 4 * g4
        for r in range(4):
            a(f"v_sub_f32 v{x + r}, v{x + r}, v26")
        for r in range(4):
            a(f"v_exp_f32 v{x + r}, v{x + r}")
        a(f"v_cvt_pk_bf16_f32 v{8 + 2 * (g4 % 2)}, v{x}, v{x + 1}")
        a(f"v_cvt_pk_bf16_f32 v{9 + 2 * (g4 % 2)}, v{x + 2}, v{x + 3}")
        a(f"ds_write_b64 v66, {vr(8 + 2 * (g4 % 2), 2)} offset:{16 * g4}")
    a("s_waitcnt lgkmcnt(0)")
    a("s_barrier")
    TS(4)
    for k in range(8):
        a(f"v_add_f32 v{32 + k}, v{32 + k}, v{40 + k}")
    for k in range(4):
        a(f"v_add_f32 v{32 + k}, v{32 + k}, v{36 + k}")
    a("v_add_f32 v32, v32, v34")
    a("v_add_f32 v33, v33, v35")
    a("v_add_f32 v32, v32, v33")
    a("ds_write_b32 v67, v32")
    a("s_waitcnt lgkmcnt(0)")
    a("s_barrier")
    a("ds_read_b128 v[32:35], v68")
    a("ds_read_b128 v[36:39], v68 offset:16")
    a("s_waitcnt lgkmcnt(0)")
    for k in range(4):
        a(f"v_add_f32 v{32 + k}, v{32 + k}, v{36 + k}")
    a("v_add_f32 v32, v32, v34")
    a("v_add_f32 v33, v33, v35")
    a("v_add_f32 v27, v32, v33")
    if not (cfg.fl or cfg.direct or cfg.ck):
        a("s_barrier")
    a(f"s_cmp_eq_u32 s{S_W}, {0 if cfg.ck < 3 else 99}")
    a("s_cbranch_scc0 L_B_nost")
    a("s_mov_b32 exec_hi, 0")
    a(f"buffer_store_dwordx4 v[26:29], v25, {WS}, 0 offen sc1")
    a("s_mov_b64 exec, -1")
    a.label("L_B_nost")
    if cfg.fl or cfg.direct or cfg.ck:
        a("s_barrier")
    a.haz_flush(3)
    a("s_branch L_B_post")

    a.label("L_B_pv")
    a(f"s_sub_u32 s12, s{S_W}, 4")
    a(f"s_lshl_b32 s11, s{S_BB}, 16")
    a("s_lshl_b32 s10, s12, 10")
    a("s_add_u32 s11, s11, s10")
    a(f"s_add_u32 s11, s11, {WS_QL}")
    a("v_lshlrev_b32 v7, 4, v1")
    a("v_add_u32 v7, s11, v7")
    a("v_add_u32 v6, 4096, v7")
    a("s_waitcnt lgkmcnt(0)")
    a(f"s_load_dword s44, s[{S_WS}:{S_WS + 1}], {WS_EPOCH}")
    srd(SRD_WS, S_WS, WS_SIZE)

    def q_load(i):
        a(f"buffer_load_dwordx4 {vr(128 + 4 * i, 4)}, v{7 - i % 2}, {WS}, {k8(i // 2)} offen sc1")

    if cfg.uk_delay:
        a("s_waitcnt lgkmcnt(0)")
    if cfg.ukpf:
        srd(SRD_B, S_WUK, 4 << 20)
        a(f"s_and_b32 s11, s{S_R}, 3")
        a("s_lshl_b32 s11, s11, 20")
        a("s_lshl_b32 s10, s12, 18")
        a("s_add_u32 s11, s11, s10")
        a(f"s_lshr_b32 s10, s{S_R}, 2")
        a("s_lshl_b32 s10, s10, 8")
        a("s_add_u32 s11, s11, s10")
        a(f"s_add_u32 s11, s11, {(8 - cfg.ukpf_n) * 32768}")
        a("v_lshlrev_b32 v8, 13, v3")
        a("v_lshl_add_u32 v8, v2, 4, v8")
        for k in range(cfg.ukpf_n):
            a(f"buffer_load_dwordx4 {vr(32 + 4 * k, 4)}, v8, {RB}, s11 offen nt")
            a("s_add_u32 s11, s11, 32768")
    if cfg.bs_at >= 0 and cfg.bs_mode == 1:
        a("s_barrier")
    if cfg.pretouch:
        a(f"s_lshl_b32 s11, s{S_I16}, 12")
        a(f"buffer_load_dwordx4 v[128:131], v7, {WS}, s11 offen sc1")
    a(f"buffer_store_dwordx2 v[26:27], v31, {WS}, 0 offen sc1")
    a("s_lshr_b32 s10, s12, 1")
    a("s_and_b32 s11, s12, 1")
    a("s_lshl_b32 s11, s11, 5")
    a("s_xor_b32 s11, s11, s10")
    a("v_lshrrev_b32 v8, 1, v1")
    a("v_xor_b32 v8, s11, v8")
    a("v_lshlrev_b32 v8, 4, v8")
    a("v_and_b32 v9, 1, v1")
    a("v_lshl_add_u32 v8, v9, 3, v8")
    a("s_lshl_b32 s10, s10, 10")
    a(f"s_add_u32 s10, s10, {QB}")
    a("v_add_u32 v8, s10, v8")
    for k in range(8):
        a(f"v_xor_b32 v{64 + k}, {k * 32}, v8")
    a("v_lshrrev_b32 v22, 2, v2")
    a("v_lshl_add_u32 v23, v13, 3, v22")
    a("v_lshlrev_b32 v23, 8, v23")
    a("v_lshl_add_u32 v23, v9, 3, v23")
    a("v_and_b32 v24, 1, v3")
    a("v_bfe_u32 v10, v1, 1, 1")
    a("v_lshl_add_u32 v24, v24, 1, v10")
    a("v_lshlrev_b32 v22, 2, v22")
    a("v_xor_b32 v24, v24, v22")
    a("v_mul_u32_u24 v22, 3, v13")
    a("v_xor_b32 v24, v24, v22")
    a("v_lshl_add_u32 v23, v24, 4, v23")
    a("s_lshl_b32 s10, s12, 13")
    a("v_add_u32 v23, s10, v23")
    a("v_xor_b32 v24, 32, v23")
    a("v_add_u32 v24, 1024, v24")
    for ct in range(4):
        for u in range(2):
            a(f"v_xor_b32 v{72 + 2 * ct + u}, {ct * 64}, v{23 + u}")
            a(f"v_add_u32 v{80 + 2 * ct + u}, 0x10000, v{72 + 2 * ct + u}")
    a("v_mul_u32_u24 v88, 272, v12")
    a("v_lshl_add_u32 v88, v13, 4, v88")
    a(f"v_add_u32 v88, {PB}, v88")
    a("s_lshl_b32 s10, s12, 14")
    a("v_mul_u32_u24 v89, 144, v12")
    a("v_lshl_add_u32 v89, v13, 3, v89")
    a("v_add_u32 v89, s10, v89")
    a("v_lshrrev_b32 v22, 3, v1")
    a("v_and_b32 v23, 7, v1")
    a("v_mul_u32_u24 v90, 144, v22")
    a("v_lshl_add_u32 v90, v23, 4, v90")
    a("v_add_u32 v90, s10, v90")
    a("s_lshl_b32 s10, s12, 15")
    a(f"s_lshl_b32 s11, s{S_R}, 8")
    a("s_add_u32 s10, s10, s11")
    a(f"s_add_u32 s10, s10, {WS_OP}")
    a("v_lshlrev_b32 v30, 17, v22")
    a("v_lshl_add_u32 v30, v23, 4, v30")
    a("v_add_u32 v30, s10, v30")
    if cfg.tlb:
        a("v_lshlrev_b32 v10, 17, v12")
        a("v_add_u32 v10, s10, v10")
        a(f"buffer_load_dword v11, v10, {WS}, 0 offen nt")
    for i in range(1, 4):
        a(f"s_mov_b32 s{52 + i}, {i << 20}")
    a("s_lshl_b32 s10, s12, 14")
    a(f"s_lshl_b32 s11, s{S_R}, 7")
    a("s_add_u32 s10, s10, s11")
    a(f"s_add_u32 s10, s10, {WS_FL}")
    a("v_mov_b32 v25, s10")
    if cfg.ck:
        a(f"s_lshl_b32 s10, s{S_R}, 11")
        a("s_lshl_b32 s11, s12, 9")
        a("s_add_u32 s10, s10, s11")
        a(f"s_add_u32 s10, s10, {WS_CK}")
        a("v_lshlrev_b32 v25, 4, v12")
        a("v_add_u32 v25, s10, v25")
        if cfg.ck >= 3:
            a(f"s_sub_u32 s10, s10, {WS_CK}")
            a("s_lshl_b32 s10, s10, 1")
            a(f"s_add_u32 s10, s10, {WS_CK}")
            a("v_lshlrev_b32 v25, 5, v12")
            a("v_lshl_add_u32 v25, v13, 4, v25")
            a("v_add_u32 v25, s10, v25")
            a("v_lshlrev_b32 v5, 5, v12")
            a(f"v_add_u32 v5, {SB}, v5")
            a("v_lshlrev_b32 v4, 4, v12")
            a(f"v_add_u32 v4, {MXB}, v4")
    a("s_waitcnt lgkmcnt(0)")
    tags()
    a("v_mov_b32 v28, s48")
    a("v_mov_b32 v29, s49")
    TS(1)
    if cfg.bs_at >= 0 and cfg.bs_mode == 0:
        a("s_waitcnt vmcnt(0)")
        a("s_barrier")
    if cfg.scout:
        a(f"s_lshl_b32 s11, s{S_BB}, 16")
        a("s_lshl_b32 s10, s12, 10")
        a("s_add_u32 s11, s11, s10")
        a(f"s_add_u32 s11, s11, {WS_QL + 496}")
        a("v_lshrrev_b32 v10, 1, v12")
        a("v_lshlrev_b32 v10, 12, v10")
        a("v_and_b32 v11, 1, v1")
        a("v_lshl_add_u32 v10, v11, 9, v10")
        a("v_add_u32 v10, s11, v10")
        a("s_mov_b32 s56, -1")
        a("s_mov_b32 s57, 0")
    a("s_barrier")
    if cfg.scout:
        mpoll_tag(10, 128, "s[56:57]", cfg.ssleep)
    TS(2)
    for i in range(16):
        q_load(i)
    a("s_mov_b32 s60, 0")
    for i in range(16):
        a(f"s_waitcnt vmcnt({15 - i})")
        a(f"v_cmp_ne_u64 vcc, s[48:49], {vr(130 + 4 * i, 2)}")
        a(f"ds_write_b64 v{64 + i % 8}, {vr(128 + 4 * i, 2)} offset:{2048 * i}")
        a("s_cmp_lg_u64 vcc, 0")
        a("s_addc_u32 s60, s60, s60")
    a("s_cmp_eq_u32 s60, 0")
    a("s_cbranch_scc1 L_B_gotq")
    if cfg.qslot:
        NS = cfg.qslot
        a.label("L_B_qretry")
        a("s_mov_b32 s61, s60")
        for k in range(NS):
            if k:
                a("s_cmp_eq_u32 s61, 0")
                a(f"s_cbranch_scc1 L_B_qs_issued{k}")
            a(f"s_ff1_i32_b32 s{20 + k}, s61")
            a(f"s_bitset0_b32 s61, s{20 + k}")
            a(f"s_sub_u32 s10, 15, s{20 + k}")
            a("s_lshl_b32 s11, s10, 12")
            a(f"buffer_load_dwordx4 {vr(128 + 4 * k, 4)}, v7, {WS}, s11 offen sc1")
            a("s_and_b32 s11, s10, 7")
            a("s_lshl_b32 s11, s11, 5")
            a("s_lshl_b32 s10, s10, 11")
            a(f"v_xor_b32 v{192 + k}, s11, v64")
            a(f"v_add_u32 v{192 + k}, s10, v{192 + k}")
        for n in range(NS, 0, -1):
            a.label(f"L_B_qs_issued{n}")
            k = n - 1
            lab = a.newlabel("Lqs")
            a("s_waitcnt vmcnt(0)")
            a(f"v_cmp_ne_u64 vcc, s[48:49], {vr(130 + 4 * k, 2)}")
            a(f"s_cbranch_vccnz {lab}")
            a(f"ds_write_b64 v{192 + k}, {vr(128 + 4 * k, 2)}")
            a(f"s_bitset0_b32 s60, s{20 + k}")
            a.label(lab)
    else:
        a.label("L_B_qretry")
        if cfg.qsleep:
            a(f"s_sleep {cfg.qsleep}")
        for i in range(16):
            lab = a.newlabel("Lq")
            a(f"s_bitcmp1_b32 s60, {15 - i}")
            a(f"s_cbranch_scc0 {lab}")
            q_load(i)
            a.label(lab)
        a("s_waitcnt vmcnt(0)")
        for i in range(16):
            lab = a.newlabel("Lq")
            a(f"s_bitcmp1_b32 s60, {15 - i}")
            a(f"s_cbranch_scc0 {lab}")
            a(f"v_cmp_ne_u64 vcc, s[48:49], {vr(130 + 4 * i, 2)}")
            a(f"s_cbranch_vccnz {lab}")
            a(f"ds_write_b64 v{64 + i % 8}, {vr(128 + 4 * i, 2)} offset:{2048 * i}")
            a(f"s_bitset0_b32 s60, {15 - i}")
            a.label(lab)
    a("s_cmp_eq_u32 s60, 0")
    a("s_cbranch_scc1 L_B_gotq")
    a("s_sub_u32 s13, s13, 1")
    a("s_cbranch_scc0 L_B_qretry")
    a("s_mov_b32 s13, 0")
    a.label("L_B_gotq")
    a("s_waitcnt lgkmcnt(0)")
    TS(3)
    a("s_barrier")
    TS(1, 3)
    if cfg.direct:
        a("s_lshl_b32 s10, s12, 12")
        a(f"s_add_u32 s10, s10, {WS_CLR}")
        a("v_lshlrev_b32 v10, 7, v12")
        a("v_add_u32 v10, s10, v10")
        mpoll_tag(10, 96)
    a("s_cmp_lt_u32 s12, 3")
    a("s_cbranch_scc1 L_B_trr")
    a("s_barrier")
    a.label("L_B_trr")
    for ct in range(4):
        for s in range(8):
            for u in range(2):
                base = (72 if s < 4 else 80) + 2 * ct + u
                a(f"ds_read_b64_tr_b16 {vr(128 + (ct * 8 + s) * 4 + 2 * u, 2)}, v{base} offset:{32768 * ((s // 2) % 2) + 4096 * (s % 2)}")
    a("s_cmp_lt_u32 s12, 3")
    a("s_cbranch_scc0 L_B_trd")
    a("s_barrier")
    a.label("L_B_trd")
    a("s_barrier")
    a("s_waitcnt lgkmcnt(0)")
    a("s_barrier")
    TS(4)
    for s in range(8):
        a(f"ds_read_b128 {vr(96 + 4 * s, 4)}, v88 offset:{32 * s}")
    ACC = [32, 48, 32, 48]
    ACC = [32, 48, 64 - 0, 0]
    a("v_mov_b32 v22, v89")
    a("v_mov_b32 v23, v90")
    ACC = [32, 48, 64, 80]

    def stage_w(ct, g4):
        x = ACC[ct] + 4 * g4
        d = 14 + 2 * (g4 % 4)
        a(f"v_cvt_pk_bf16_f32 v{d}, v{x}, v{x + 1}")
        a(f"v_cvt_pk_bf16_f32 v{d + 1}, v{x + 2}, v{x + 3}")
        if cfg.ck and cfg.ckm:
            a(f"v_xor_b32 v{d}, s48, v{d}")
            a(f"v_xor_b32 v{d + 1}, s49, v{d + 1}")
        a(f"ds_write_b64 v22, {vr(d, 2)} offset:{8192 * (ct // 2) + 64 * (ct % 2) + 16 * g4}")
        if cfg.ck:
            if ct == 0 and g4 == 0:
                a(f"v_mov_b32 v26, v{d}")
                a(f"v_mov_b32 v27, v{d + 1}")
            else:
                a(f"{CKOP} v26, v26, v{d}")
                a(f"{CKOP} v27, v27, v{d + 1}")

    def stage_r(pair, dst):
        for i in range(4):
            a(f"ds_read_b128 {vr(dst + 4 * i, 4)}, v23 offset:{8192 * pair + 1152 * i}")

    def op_store(pair, dst, i):
        so = "0" if i == 0 else f"s{52 + i}"
        a(f"buffer_store_dwordx4 {vr(dst + 4 * i, 4)}, v30, {WS}, {so} offen offset:{128 * pair} sc1")

    for ct in range(4):
        for s in range(8):
            if ct == 0:
                a(f"s_waitcnt lgkmcnt({7 - s})")
            cin = "0" if s == 0 else vr(ACC[ct], 16)
            a(f"v_mfma_f32_32x32x16_bf16 {vr(ACC[ct], 16)}, {vr(128 + (ct * 8 + s) * 4, 4)}, {vr(96 + 4 * s, 4)}, {cin}")
            if ct >= 1 and 3 <= s <= 6:
                stage_w(ct - 1, s - 3)
            if ct == 1 and s == 0:
                a("s_barrier")
            if cfg.ck >= 3 and ct == 1 and s == 1:
                a("ds_read_b128 v[128:131], v5")
                a("ds_read_b128 v[132:135], v5 offset:16")
                a("ds_read_b128 v[136:139], v4")
            if cfg.ck >= 3 and ct == 2 and s == 0:
                a("s_waitcnt lgkmcnt(4)")
                for k in range(4):
                    a(f"v_add_f32 v{128 + k}, v{128 + k}, v{132 + k}")
            if cfg.ck >= 3 and ct == 2 and s == 1:
                a("v_add_f32 v128, v128, v130")
                a("v_add_f32 v129, v129, v131")
                a("v_add_f32 v9, v128, v129")
                a("v_max3_f32 v8, v136, v137, v138")
                a("v_max_f32 v8, v8, v139")
            if ct == 2 and s == 7:
                stage_r(0, 128)
            if ct == 3 and s < 2:
                a(f"s_waitcnt lgkmcnt({2 - 2 * s})")
                op_store(0, 128, 2 * s)
                op_store(0, 128, 2 * s + 1)
    for g4 in range(4):
        stage_w(3, g4)
    stage_r(1, 144)
    if cfg.ck:
        swap_reduce(26, 10, 32, CKOP)
        swap_reduce(27, 11, 32, CKOP)
        a("s_mov_b32 exec_hi, 0")
        if cfg.ck >= 3:
            a("v_mov_b32 v26, v8")
            a("v_mov_b32 v27, v9")
            a("s_mov_b64 exec, -1")
            if cfg.ck == 3:
                a(f"buffer_store_dwordx4 v[26:29], v25, {WS}, 0 offen sc1")
        else:
            a(f"buffer_store_dwordx4 v[26:29], v25, {WS}, 0 offen sc1")
            a("s_mov_b64 exec, -1")
    TS(7, 3)
    for i in range(4):
        a(f"s_waitcnt lgkmcnt({3 - i})")
        op_store(1, 144, i)
    if cfg.ck == 4:
        a(f"buffer_store_dwordx4 v[26:29], v25, {WS}, 0 offen sc1")
    TS(5)
    a("s_mov_b64 exec, 1")
    if cfg.direct != 2 and cfg.ck != 2 and not (cfg.ck >= 3 and cfg.noack):
        a("s_waitcnt vmcnt(0)")
    if cfg.fl:
        a(f"buffer_store_dwordx4 v[26:29], v25, {WS}, 0 offen sc1")
    a("s_mov_b64 exec, -1")
    a("s_barrier")
    a.label("L_B_post")
    if cfg.ts:
        TS(1)

    GW, UW, DW = 0, 16384, 32768
    GP, AB, ZB = 65536, 65536 + 4096, 65536 + 8192
    S1B, S2B = GP + 2048, GP + 2048 + 64
    a(f"s_cmp_ge_u32 s{S_SL}, {NSLICE}")
    a("s_cbranch_scc1 L_B_red")
    srd(SRD_A, S_WG, 512 * 2752)
    srd(SRD_B, S_WU, 512 * 2752)
    a("v_lshrrev_b32 v4, 1, v1")
    a("v_mul_u32_u24 v4, 2752, v4")
    a("v_and_b32 v5, 1, v1")
    a("v_lshl_add_u32 v4, v5, 4, v4")
    a(f"s_lshl_b32 s12, s{S_SL}, 1")
    a(f"s_add_u32 s12, s12, s{S_W}")
    a("s_and_b32 s12, s12, 7")
    a(f"s_mul_i32 s10, s12, {64 * 2752}")
    a(f"s_lshl_b32 s11, s{S_SL}, 5")
    a("s_add_u32 s10, s10, s11")
    a(f"s_add_u32 s11, s10, {32 * 2752}")
    a("s_lshl_b32 s12, s12, 11")
    pieces = [(RA, GW, 0), (RA, GW, 1), (RB, UW, 0), (RB, UW, 1)]

    def gu_dma(lst):
        for (R, base, k) in lst:
            a(f"s_add_u32 m0, s12, {base + 1024 * k}")
            a("s_nop 0")
            a(f"buffer_load_dwordx4 v4, {R}, s{10 + k} offen{' nt' if cfg.nt_ffn else ''} lds")

    if cfg.fe:
        a(f"s_cmp_ge_u32 s{S_W}, 4")
        a("s_cbranch_scc1 L_B_fulldma")
        a("v_lshlrev_b32 v5, 4, v1")
        a("v_add_u32 v5, s12, v5")
        a("s_waitcnt vmcnt(0)")
        for k in range(cfg.fe):
            a(f"ds_write_b128 v5, {vr(72 + 4 * k, 4)} offset:{pieces[k][1] + 1024 * pieces[k][2]}")
        a("s_branch L_B_restdma")
        a.label("L_B_fulldma")
        gu_dma(pieces[:cfg.fe])
        a.label("L_B_restdma")
        gu_dma(pieces[cfg.fe:])
    else:
        gu_dma(pieces)
    srd(SRD_A, S_WD, 1376 * 1024)
    a("v_lshlrev_b32 v4, 4, v1")
    a(f"s_lshl_b32 s10, s{S_SL}, 14")
    a("s_add_u32 s10, s10, s12")
    a("s_add_u32 s11, s10, 1024")
    for k in range(2):
        a(f"s_add_u32 m0, s12, {DW + 1024 * k}")
        a("s_nop 0")
        a(f"buffer_load_dwordx4 v4, {RA}, s{10 + k} offen nt lds")
    a("v_mov_b32 v4, 0")
    a("v_mov_b32 v5, 0")
    a(f"v_mov_b32 v6, {ZB}")
    a("ds_write_b64 v6, v[4:5]")
    a(f"s_and_b32 s10, s{S_W}, 3")
    a("s_lshl_b32 s11, s10, 12")
    a("v_lshlrev_b32 v8, 8, v3")
    a("v_lshl_add_u32 v8, v2, 3, v8")
    a("v_add_u32 v8, s11, v8")
    a("v_lshrrev_b32 v9, 2, v2")
    a("v_lshl_add_u32 v10, v3, 2, v9")
    a("v_lshlrev_b32 v10, 10, v10")
    a("v_and_b32 v11, 3, v2")
    a("v_lshl_add_u32 v10, v11, 3, v10")
    a(f"s_lshl_b32 s11, s{S_W}, 7")
    a(f"s_add_u32 s12, s11, {DW}")
    a("v_add_u32 v10, s12, v10")
    a("v_lshlrev_b32 v12, 12, v9")
    a("v_lshrrev_b32 v13, 1, v3")
    a("v_lshl_add_u32 v12, v13, 7, v12")
    a("v_and_b32 v13, 1, v3")
    a("v_lshl_add_u32 v12, v13, 4, v12")
    a("s_lshl_b32 s12, s10, 10")
    a(f"s_add_u32 s12, s12, {WS_H}")
    a("v_add_u32 v12, s12, v12")
    a("s_lshl_b32 s12, s10, 2")
    a("v_lshlrev_b32 v13, 4, v1")
    a(f"v_add_u32 v13, {GP}, v13")
    a("v_add_u32 v14, s12, v13")
    a("v_lshlrev_b32 v15, 4, v3")
    a(f"v_add_u32 v15, {S1B}, v15")
    a("v_add_u32 v16, s12, v15")
    a("v_cmp_eq_u32 s[56:57], v9, v3")
    a(f"s_add_u32 s11, s11, {AB}")
    a("v_lshlrev_b32 v17, 1, v1")
    a("v_add_u32 v17, s11, v17")
    a("v_lshlrev_b32 v18, 5, v11")
    a("v_lshl_add_u32 v18, v3, 3, v18")
    a("v_add_u32 v18, s11, v18")
    for tau in range(4):
        a(f"v_cmp_eq_u32 vcc, {tau}, v9")
        a(f"v_cndmask_b32 v{20 + tau}, v6, v18, vcc")
    a("s_waitcnt vmcnt(0) lgkmcnt(0)")
    a("s_barrier")
    for tau in range(4):
        a(f"ds_read_b64_tr_b16 {vr(64 + 2 * tau, 2)}, v10 offset:{32 * tau}")
    for mtx in range(2):
        for t in range(4):
            for u in range(2):
                a(f"ds_read_b64_tr_b16 {vr(32 + 16 * mtx + 4 * t + 2 * u, 2)}, v8 offset:{UW * mtx + 1024 * t + 128 * u}")
    for p in range(4):
        a(f"v_mov_b32 v{72 + p}, 0x3f803f80")
    a("s_waitcnt lgkmcnt(0)")
    for t in range(4):
        for mtx in range(2):
            mfma16(76 + 4 * mtx, 72, 32 + 16 * mtx + 4 * t, None if t == 0 else 76 + 4 * mtx)
    a("ds_write_b32 v14, v76")
    a("ds_write_b32 v14, v80 offset:1024")
    a("s_waitcnt lgkmcnt(0)")
    a("s_barrier")
    a("ds_read_b128 v[76:79], v13")
    a("ds_read_b128 v[80:83], v13 offset:1024")
    a("s_waitcnt lgkmcnt(0)")
    for x, o in ((76, 24), (80, 25)):
        a(f"v_add_f32 v{x}, v{x}, v{x + 1}")
        a(f"v_add_f32 v{x + 2}, v{x + 2}, v{x + 3}")
        a(f"v_add_f32 v{o}, v{x}, v{x + 2}")
    a("s_barrier")

    TS(6)
    a("s_branch L_B_hcan")
    a.label("L_B_red")
    TS(6)
    a(f"s_cmp_lt_u32 s{S_I16}, 12")
    END_IF("scc1", 8)
    a(f"s_cmp_ge_u32 s{S_W}, 4")
    END_IF("scc1", 8)
    a(f"s_lshl_b32 s{S_R}, s{S_XCD}, 2")
    a(f"s_add_u32 s{S_R}, s{S_R}, s{S_I16}")
    a(f"s_sub_u32 s{S_R}, s{S_R}, 12")
    a(f"s_lshl_b32 s{S_R}, s{S_R}, 2")
    a(f"s_add_u32 s{S_R}, s{S_R}, s{S_W}")
    a(f"s_lshr_b32 s{S_BB}, s{S_R}, 5")
    a(f"s_and_b32 s{S_CH}, s{S_R}, 31")
    MK2, D2 = 112, 116
    sel_masks(MK2, 4)
    for k in range(4):
        a(f"v_and_b32 v{MK2 + k}, 0x3f803f80, v{MK2 + k}")
    a("v_lshrrev_b32 v4, 1, v2")
    a("v_lshl_add_u32 v4, v3, 3, v4")
    a("v_and_b32 v5, 1, v2")
    a("v_lshlrev_b32 v5, 4, v5")
    a("v_lshl_add_u32 v26, v3, 3, v5")
    a(f"s_lshl_b32 s10, s{S_R}, 5")
    a("v_and_b32 v27, 31, v26")
    a("v_add_u32 v27, s10, v27")
    a(f"global_load_dwordx2 v[28:29], v27, s[{S_X}:{S_X + 1}]")
    a(f"s_lshl_b32 s10, s{S_BB}, 17")
    a(f"s_lshl_b32 s11, s{S_CH}, 5")
    a("s_add_u32 s10, s10, s11")
    a(f"s_add_u32 s10, s10, {WS_AO}")
    a("v_lshl_add_u32 v4, v4, 10, v5")
    a("v_add_u32 v4, s10, v4")
    a(f"s_lshl_b32 s10, s{S_R}, 7")
    a(f"s_add_u32 s10, s10, {WS_H}")
    a("v_add_u32 v26, s10, v26")
    a("s_mov_b32 s10, 65536")
    a("s_mov_b32 s11, 98304")
    a("v_cmp_gt_u32 vcc, 2, v2")
    a("s_waitcnt vmcnt(0)")
    a("v_cndmask_b32 v28, 0, v28, vcc")
    a("v_cndmask_b32 v29, 0, v29, vcc")
    a("v_lshlrev_b32 v120, 16, v28")
    a("v_and_b32 v121, 0xffff0000, v28")
    a("v_lshlrev_b32 v122, 16, v29")
    a("v_and_b32 v123, 0xffff0000, v29")
    canary(4, 96, False)
    mpoll_data([(96 + 4 * i, f"buffer_load_dwordx4 {vr(96 + 4 * i, 4)}, v4, {WS}, {['0', k8(4), 's10', 's11'][i]} offen sc1") for i in range(4)], 20, 5)
    for i in range(4):
        mfma16(D2, MK2, 96 + 4 * i, 120 if i == 0 else D2)
    dpp_ror_reduce(range(D2, D2 + 4), (2, 4, 8))
    a(f"v_cvt_pk_bf16_f32 v28, v{D2}, v{D2 + 1}")
    a(f"v_cvt_pk_bf16_f32 v29, v{D2 + 2}, v{D2 + 3}")
    a("s_mov_b64 exec, 0x00030003")
    a(f"buffer_store_dwordx2 v[28:29], v26, {WS}, 0 offen sc1")
    TS(7)
    END(8)

    a.label("L_B_hcan")
    canary(12, 96, False)
    mpoll_data([(96 + 4 * t, f"buffer_load_dwordx4 {vr(96 + 4 * t, 4)}, v12, {WS}, 0 offen offset:{256 * t} sc1") for t in range(4)], 20, 5)
    TS(7)
    a(f"s_cmp_ge_u32 s{S_W}, 4")
    a("s_cbranch_scc1 L_B_stats")
    for t in range(4):
        for mtx in range(2):
            mfma16(76 + 4 * mtx, 96 + 4 * t, 32 + 16 * mtx + 4 * t, None if t == 0 else 76 + 4 * mtx)
    a("ds_write_b32 v14, v76")
    a("ds_write_b32 v14, v80 offset:1024")
    a("s_branch L_B_f1done")
    a.label("L_B_stats")
    for t in range(4):
        mfma16(76, 96 + 4 * t, 72, None if t == 0 else 76)
        mfma16(80, 96 + 4 * t, 96 + 4 * t, None if t == 0 else 80)
    a("s_mov_b64 exec, s[56:57]")
    a("ds_write_b32 v16, v76")
    a("ds_write_b32 v16, v80 offset:64")
    a("s_mov_b64 exec, -1")
    a.label("L_B_f1done")
    a("s_waitcnt lgkmcnt(0)")
    a("s_barrier")
    a("ds_read_b128 v[84:87], v15")
    a("ds_read_b128 v[88:91], v15 offset:64")
    a("ds_read_b128 v[76:79], v13")
    a("ds_read_b128 v[80:83], v13 offset:1024")
    a("s_waitcnt lgkmcnt(2)")
    for x in (84, 88):
        a(f"v_add_f32 v{x}, v{x}, v{x + 1}")
        a(f"v_add_f32 v{x + 2}, v{x + 2}, v{x + 3}")
        a(f"v_add_f32 v{x}, v{x}, v{x + 2}")
    a(f"v_mul_f32 v84, {hex(f32(1.0 / 512))}, v84")
    a(f"v_mul_f32 v88, {hex(f32(1.0 / 512))}, v88")
    a("v_fma_f32 v88, -v84, v84, v88")
    a("v_max_f32 v88, 0, v88")
    a(f"v_add_f32 v88, {hex(f32(1e-5))}, v88")
    a("v_rsq_f32 v88, v88")
    a("s_waitcnt lgkmcnt(0)")
    for x in (76, 80):
        a(f"v_add_f32 v{x}, v{x}, v{x + 1}")
        a(f"v_add_f32 v{x + 2}, v{x + 2}, v{x + 3}")
        a(f"v_add_f32 v{x}, v{x}, v{x + 2}")
    a("v_fma_f32 v76, -v84, v24, v76")
    a("v_fma_f32 v80, -v84, v25, v80")
    a("v_mul_f32 v76, v76, v88")
    a("v_mul_f32 v80, v80, v88")
    a(f"v_mul_f32 v77, {hex(f32(-math.log2(math.e)))}, v76")
    a("v_exp_f32 v77, v77")
    a("v_mul_f32 v76, v76, v80")
    a("v_add_f32 v77, 1.0, v77")
    a("v_rcp_f32 v77, v77")
    a("v_mul_f32 v76, v76, v77")
    a("v_cvt_pk_bf16_f32 v76, v76, v76")
    a("ds_write_b16 v17, v76")
    a("s_waitcnt lgkmcnt(0)")
    for tau in range(4):
        a(f"ds_read_b64 {vr(84 + 2 * tau, 2)}, v{20 + tau}")
    for tau in range(4):
        a(f"s_waitcnt lgkmcnt({3 - tau})")
        cin = "0" if tau == 0 else "v[76:79]"
        a(f"v_mfma_f32_16x16x16_bf16 v[76:79], {vr(64 + 2 * tau, 2)}, {vr(84 + 2 * tau, 2)}, {cin}")
    a("v_cvt_pk_bf16_f32 v80, v76, v77")
    a("v_cvt_pk_bf16_f32 v81, v78, v79")
    a(f"buffer_store_dwordx2 v[80:81], v31, {WS}, 0 offen sc1")
    TS(2)
    if cfg.ts:
        END(8)
    a.label("L_end")
    a("s_endpgm")
    a.label("L_code_end")

    body = a.render()
    hdr = open("sequential_preLN__compressed_kv_cla__swiglu_ffn__decode.s.ref").read().split("\n")
    head = []
    for line in hdr:
        if line.startswith("; @launch"):
            head.append("; @launch grid=(256,1,1) block=(512,1,1) lds=163840")
            break
        head.append(line)
    doc = """
; Generated by a hand-written Python emitter (instruction selection, layouts and scheduling are all manual)."""
    text = "\n".join(head) + doc + f"""
.amdgcn_target "amdgcn-amd-amdhsa--gfx950"
.text
.globl {KNAME}
.p2align 8
.type {KNAME},@function
{KNAME}:
{body}.section .rodata,"a"
.p2align 6
.amdhsa_kernel {KNAME}
  .amdhsa_next_free_vgpr 256
  .amdhsa_next_free_sgpr 102
  .amdhsa_accum_offset 256
  .amdhsa_group_segment_fixed_size 0
  .amdhsa_kernarg_size 104
  .amdhsa_user_sgpr_count 2
  .amdhsa_user_sgpr_kernarg_segment_ptr 1
  .amdhsa_system_sgpr_workgroup_id_x 1
.end_amdhsa_kernel
"""
    return text


if __name__ == "__main__":
    cfg = Cfg()
    out = "sequential_preLN__compressed_kv_cla__swiglu_ffn__decode.s"
    for arg in sys.argv[1:]:
        if arg.startswith("out="):
            out = arg[4:]
        else:
            k, v = arg.split("=")
            assert hasattr(cfg, k), k
            setattr(cfg, k, int(v))
    open(out, "w").write(gen(cfg))
    print("wrote", out)
```

```python
import sys, math, struct
sys.path.insert(0, "dev")
from asmgen import Asm, vr, sr

KNAME = "sequential_preLN__compressed_kv_cla__swiglu_ffn__decode_kernel"

WS_EPOCH = 0x0
WS_H = 0x004000
WS_GO = 0x008000
WS_QPG = 0x010000
WS_CLR = 0x00C000
WS_FL = 0x0E0000
WS_CK = 0x700000
WS_QPG2 = 0x600000
WS_QL = 0x080000
WS_ST = 0x0C0000
WS_AO = 0x100000
WS_FP = 0x180000
WS_OP = 0x200000
WS_DBG = 0x800000
WS_SIZE = 0x1000000

NSLICE = 86
SPIN = 1 << 19


def f32(x):
    return struct.unpack("<I", struct.pack("<f", x))[0]


def G(x):
    return [0, 2, 3, 1][x]


def FSW(k):
    return ((k % 4) << 2) | G((k // 4) % 4)


class Cfg:
    ts = 0
    dbg = 0
    prio_pv = 1
    b_delay = 0
    qsleep = 1
    uv_early = 0
    pretouch = 0
    clr_pos = 0
    csleep = 1
    nt_wo = 0
    nt_ffn = 0
    nt_front = 0
    nt_uv = 0
    nt_ckv = 0
    xgate = 3
    e1full = 1
    dma_depth = 8
    dma_n = 16
    ukpf = 0
    ffn_early = 0
    e1local = 1
    wo_depth = 0
    wo_n = 32
    ckpf = 0
    ukpf_n = 8
    q3_at = 0
    b0_at = 36
    ffnpf = 0
    mp = 0
    fl = 0
    scout = 0
    ssleep = 4
    go_at = 32
    bs_at = -1
    pperm = 1
    e1lds = 1
    uk_delay = 0
    bs_mode = 0
    uk_late = 0
    ffnpf2 = 0
    x3i = 1
    out_sc1 = 0
    tlb = 0
    fmap = 0
    direct = 0
    ck = 0
    stpre = 1
    noack = 1
    fe = 3
    ckm = 1
    qslot = 8
    wsoff = 0
    hold = 0


def gen(cfg):
    a = Asm()
    S_X, S_CKV, S_WQ, S_WUK, S_WUV, S_WO, S_WG, S_WU, S_WD, S_OUT, S_WS = 16, 18, 20, 22, 24, 26, 30, 32, 34, 36, 40
    S_W, S_XCD, S_I16 = 3, 4, 5
    S_K8 = 64
    SRD_WS, SRD_A, SRD_B = 72, 76, 80
    S_TS = 84
    WS = f"s[{SRD_WS}:{SRD_WS + 3}]"
    RA = f"s[{SRD_A}:{SRD_A + 3}]"
    RB = f"s[{SRD_B}:{SRD_B + 3}]"
    DPPM = "row_mask:0xf bank_mask:0xf"
    inA = [True]
    holdseen = {}
    CKOP = "v_add_u32" if cfg.ckm else "v_xor_b32"

    def TS(idx, lvl=1):
        if cfg.hold and lvl == 1 and cfg.hold == (10 if inA[0] else 20) + idx and not (idx in (1, 2) and holdseen.get((inA[0], idx), 0) >= 2):
            holdseen[(inA[0], idx)] = holdseen.get((inA[0], idx), 0) + 1
            a("s_memrealtime s[98:99]")
            a("s_waitcnt lgkmcnt(0)")
            a("s_mov_b32 s100, 1")
        if not cfg.ts:
            return
        if cfg.ts == 2 and lvl == 1 and idx in (3, 4, 5) and inA[0]:
            return
        if lvl == 2 and cfg.ts != 2:
            return
        if lvl == 3 and cfg.ts != 3:
            return
        if cfg.ts == 3 and lvl == 1 and idx in (1, 2, 6, 7) and not inA[0]:
            return
        a(f"s_memrealtime s[{S_TS + 2 * idx}:{S_TS + 2 * idx + 1}]")
        a("s_waitcnt lgkmcnt(0)")

    def END(n=8):
        if cfg.ts:
            a("s_mov_b64 exec, 1")
            a(f"s_lshl_b32 s8, s2, 3")
            a(f"s_add_u32 s8, s8, s{S_W}")
            a(f"s_lshl_b32 s8, s8, 6")
            a(f"s_add_u32 s8, s8, {WS_DBG}")
            a("v_mov_b32 v2, s8")
            for i in range(n):
                a(f"v_mov_b32 v3, s{S_TS + 2 * i}")
                a(f"buffer_store_dword v3, v2, {WS}, 0 offen offset:{4 * i}")
            a("s_waitcnt vmcnt(0)")
        if cfg.hold:
            a("s_branch L_end")
        else:
            a("s_endpgm")

    def END_IF(cond_branch_true, n=8):
        if cfg.ts:
            lab = a.newlabel("Lcont")
            a(f"s_cbranch_{'scc0' if cond_branch_true == 'scc1' else 'scc1'} {lab}")
            END(n)
            a.label(lab)
        else:
            a(f"s_cbranch_{cond_branch_true} L_end")

    def srd(dst, ptr, nbytes):
        if ptr == S_WS and cfg.wsoff:
            a(f"s_add_u32 s{dst}, s{ptr}, {cfg.wsoff << 20}")
            a(f"s_addc_u32 s{dst + 1}, s{ptr + 1}, 0")
        else:
            a(f"s_mov_b32 s{dst}, s{ptr}")
            a(f"s_mov_b32 s{dst + 1}, s{ptr + 1}")
        a(f"s_mov_b32 s{dst + 2}, {nbytes}")
        a(f"s_mov_b32 s{dst + 3}, 0x20000")

    def epoch_load():
        if cfg.wsoff:
            a(f"s_mov_b32 s45, {cfg.wsoff << 20}")
            a(f"s_load_dword s44, s[{S_WS}:{S_WS + 1}], s45")
        else:
            a(f"s_load_dword s44, s[{S_WS}:{S_WS + 1}], {WS_EPOCH}")

    def k8(i):
        return "0" if i == 0 else f"s{S_K8 + i}"

    def tags():
        a("s_add_u32 s44, s44, 1")
        a("s_mul_i32 s48, s44, 0x9E3779B1")
        a("s_xor_b32 s48, s48, 0x85EBCA6B")
        a("s_mul_i32 s49, s44, 0xC2B2AE35")
        a("s_add_u32 s49, s49, 0x27D4EB2F")

    def perm_set(src, dst):
        for c in range(8):
            dw, e = c // 2, c % 2
            sel = "s14" if e == 0 else "s15"
            for p in range(4):
                a(f"v_perm_b32 v{dst + 4 * c + p}, v{src + 4 * (2 * p + 1) + dw}, v{src + 4 * (2 * p) + dw}, {sel}")

    def swap_reduce(reg, tmp, which, op="v_add_f32"):
        a(f"v_mov_b32 v{tmp}, v{reg}")
        a(f"v_permlane{which}_swap_b32 v{reg}, v{tmp}")
        a(f"{op} v{reg}, v{reg}, v{tmp}")

    def dpp_ror_reduce(regs, rors, op="v_add_f32"):
        for r in rors:
            for x in regs:
                a(f"{op}_dpp v{x}, v{x}, v{x} row_ror:{r} {DPPM}")

    def mfma16(d, A, B, c):
        cin = "0" if c is None else vr(c, 4)
        a(f"v_mfma_f32_16x16x32_bf16 {vr(d, 4)}, {vr(A, 4)}, {vr(B, 4)}, {cin}")

    def valid_check(regs, tmp, fail_label):
        regs = list(regs)
        a(f"v_max3_u32 v{tmp}, v{regs[0]}, v{regs[1]}, v{regs[2]}")
        rest = regs[3:]
        while len(rest) >= 2:
            a(f"v_max3_u32 v{tmp}, v{tmp}, v{rest[0]}, v{rest[1]}")
            rest = rest[2:]
        if rest:
            a(f"v_max_u32 v{tmp}, v{tmp}, v{rest[0]}")
        a(f"v_cmp_eq_u32 vcc, -1, v{tmp}")
        ok = a.newlabel("Lok")
        a(f"s_cbranch_vccz {ok}")
        a("s_sub_u32 s13, s13, 1")
        a(f"s_cbranch_scc0 {fail_label}")
        a("s_mov_b32 s13, 0")
        a.label(ok)

    def canary(addr, dst, tagged, so="0", lanes=1):
        lab = a.newlabel("Lcan")
        done = a.newlabel("Lcand")
        a(f"s_mov_b64 exec, {hex(lanes)}")
        a.label(lab)
        a(f"buffer_load_dwordx4 {vr(dst, 4)}, v{addr}, {WS}, {so} offen sc1")
        a("s_waitcnt vmcnt(0)")
        if tagged:
            a(f"v_cmp_ne_u64 vcc, s[48:49], {vr(dst + 2, 2)}")
        else:
            a(f"v_cmp_eq_u32 vcc, -1, v{dst}")
        a(f"s_cbranch_vccz {done}")
        if cfg.csleep:
            a(f"s_sleep {cfg.csleep}")
        a("s_sub_u32 s13, s13, 1")
        a(f"s_cbranch_scc0 {lab}")
        a("s_mov_b32 s13, 0")
        a.label(done)
        a("s_mov_b64 exec, -1")

    def mpoll_tag(addr, dst, init="-1", sleep=0):
        lab = a.newlabel("Lmp")
        done = a.newlabel("Lmpd")
        a(f"s_mov_b64 exec, {init}")
        a.label(lab)
        a(f"buffer_load_dwordx4 {vr(dst, 4)}, v{addr}, {WS}, 0 offen sc1")
        a("s_waitcnt vmcnt(0)")
        a(f"v_cmp_ne_u64 vcc, s[48:49], {vr(dst + 2, 2)}")
        a("s_and_b64 exec, exec, vcc")
        a(f"s_cbranch_scc0 {done}")
        if sleep:
            a(f"s_sleep {sleep}")
        a("s_sub_u32 s13, s13, 1")
        a(f"s_cbranch_scc0 {lab}")
        a("s_mov_b32 s13, 0")
        a.label(done)
        a("s_mov_b64 exec, -1")

    def mpoll_data(loads, M, tmp, inits=None):
        n = len(loads)
        if not cfg.mp:
            lab = a.newlabel("Lsp")
            a.label(lab)
            regs = []
            for i, (dst, text) in enumerate(loads):
                if inits and inits[i] != "-1":
                    a(f"s_mov_b64 exec, {inits[i]}")
                a(text)
                if inits and inits[i] != "-1":
                    a("s_mov_b64 exec, -1")
                regs += list(range(dst, dst + 4))
            a("s_waitcnt vmcnt(0)")
            valid_check(regs, tmp, lab)
            return
        lab = a.newlabel("Lmd")
        done = a.newlabel("Lmdd")
        ANY = M + 2 * n
        for i in range(n):
            a(f"s_mov_b64 s[{M + 2 * i}:{M + 2 * i + 1}], {inits[i] if inits else '-1'}")
        a.label(lab)
        for i, (dst, text) in enumerate(loads):
            sk = a.newlabel("Lsk")
            a(f"s_mov_b64 exec, s[{M + 2 * i}:{M + 2 * i + 1}]")
            a(f"s_cbranch_execz {sk}")
            a(text)
            a.label(sk)
        a(f"s_mov_b64 s[{ANY}:{ANY + 1}], 0")
        a("s_waitcnt vmcnt(0)")
        for i, (dst, text) in enumerate(loads):
            a(f"s_mov_b64 exec, s[{M + 2 * i}:{M + 2 * i + 1}]")
            a(f"v_max3_u32 v{tmp}, v{dst}, v{dst + 1}, v{dst + 2}")
            a(f"v_max_u32 v{tmp}, v{tmp}, v{dst + 3}")
            a(f"v_cmp_eq_u32 vcc, -1, v{tmp}")
            a(f"s_and_b64 s[{M + 2 * i}:{M + 2 * i + 1}], s[{M + 2 * i}:{M + 2 * i + 1}], vcc")
            a(f"s_or_b64 s[{ANY}:{ANY + 1}], s[{ANY}:{ANY + 1}], s[{M + 2 * i}:{M + 2 * i + 1}]")
        a(f"s_cbranch_scc0 {done}")
        a("s_sub_u32 s13, s13, 1")
        a(f"s_cbranch_scc0 {lab}")
        a("s_mov_b32 s13, 0")
        a.label(done)
        a("s_mov_b64 exec, -1")

    def sel_masks(M, tmp):
        a(f"v_and_b32 v{tmp}, 1, v2")
        a(f"v_lshlrev_b32 v{tmp}, 4, v{tmp}")
        a(f"v_mov_b32 v{tmp + 1}, 0xffff")
        a(f"v_lshlrev_b32 v{tmp}, v{tmp}, v{tmp + 1}")
        a(f"v_lshrrev_b32 v{tmp + 1}, 1, v2")
        for p in range(4):
            a(f"v_cmp_eq_u32 vcc, {p}, v{tmp + 1}")
            a(f"v_cndmask_b32 v{M + p}, 0, v{tmp}, vcc")

    a.label("L_code_start")
    if cfg.hold:
        a("s_mov_b32 s100, 0")
    a("s_cmp_ge_u32 s2, 256")
    a("s_cbranch_scc1 L_end")
    a("s_load_dwordx16 s[16:31], s[0:1], 0")
    a("s_load_dwordx8 s[32:39], s[0:1], 64")
    a("s_load_dwordx2 s[40:41], s[0:1], 96")
    if cfg.ts or cfg.dbg:
        a(f"s_memrealtime s[{S_TS}:{S_TS + 1}]")
    a("v_lshrrev_b32 v2, 6, v0")
    a("v_and_b32 v1, 63, v0")
    a(f"v_readfirstlane_b32 s{S_W}, v2")
    a("v_and_b32 v2, 15, v1")
    a("v_lshrrev_b32 v3, 4, v1")
    a(f"s_and_b32 s{S_XCD}, s2, 7")
    a(f"s_lshr_b32 s{S_I16}, s2, 3")
    for i in range(1, 8):
        a(f"s_mov_b32 s{S_K8 + i}, {i * 8192}")
    a(f"s_mov_b32 s13, {SPIN}")
    a(f"s_cmp_ge_u32 s{S_I16}, 16")
    a("s_cbranch_scc1 L_B")

    S_H, S_J, S_A = 6, 7, 9
    a("s_mov_b32 s14, 0x05040100")
    a("s_mov_b32 s15, 0x07060302")
    a(f"s_lshl_b32 s{S_A}, s{S_XCD}, 4")
    a(f"s_add_u32 s{S_A}, s{S_A}, s{S_I16}")
    a(f"s_lshr_b32 s{S_H}, s{S_A}, 2")
    a(f"s_and_b32 s{S_J}, s{S_A}, 3")
    S_HF, S_JF = 42, 43
    if cfg.fmap == 0:
        a(f"s_mov_b32 s{S_HF}, s{S_H}")
        a(f"s_mov_b32 s{S_JF}, s{S_J}")
    elif cfg.fmap == 1:
        a(f"s_lshr_b32 s{S_HF}, s{S_XCD}, 1")
        a(f"s_lshl_b32 s{S_HF}, s{S_HF}, 3")
        a(f"s_and_b32 s8, s{S_I16}, 7")
        a(f"s_add_u32 s{S_HF}, s{S_HF}, s8")
        a(f"s_and_b32 s{S_JF}, s{S_XCD}, 1")
        a(f"s_lshl_b32 s{S_JF}, s{S_JF}, 1")
        a(f"s_lshr_b32 s8, s{S_I16}, 3")
        a(f"s_add_u32 s{S_JF}, s{S_JF}, s8")
    else:
        a(f"s_and_b32 s{S_HF}, s{S_XCD}, 1")
        a(f"s_lshl_b32 s{S_HF}, s{S_HF}, 4")
        a(f"s_add_u32 s{S_HF}, s{S_HF}, s{S_I16}")
        a(f"s_lshr_b32 s{S_JF}, s{S_XCD}, 1")
    a(f"s_cmp_ge_u32 s{S_W}, 4")
    a("s_cbranch_scc1 L_Ahi")

    a("v_lshrrev_b32 v4, 2, v2")
    a("v_lshlrev_b32 v4, 10, v4")
    a("v_and_b32 v5, 3, v1")
    a("v_lshl_add_u32 v5, v3, 2, v5")
    a("v_lshl_add_u32 v5, v5, 4, v4")
    a(f"s_lshl_b32 s8, s{S_JF}, 7")
    a(f"s_lshl_b32 s10, s{S_W}, 5")
    a("s_add_u32 s8, s8, s10")
    a("s_lshl_b32 s10, s8, 1")
    a("v_lshl_add_u32 v6, v3, 4, v4")
    a("v_add_u32 v6, s10, v6")
    a("s_lshl_b32 s10, s8, 13")
    a(f"s_lshl_b32 s11, s{S_HF}, 8")
    a("s_add_u32 s10, s10, s11")
    a("v_lshlrev_b32 v7, 16, v3")
    a("v_lshl_add_u32 v7, v2, 4, v7")
    a("v_add_u32 v7, s10, v7")
    a("s_waitcnt lgkmcnt(0)")
    srd(SRD_A, S_WQ, 4 << 20)
    for i in range(4):
        a(f"global_load_dwordx4 {vr(8 + 4 * i, 4)}, v5, s[{S_X}:{S_X + 1}] offset:{256 * i}")
    a(f"global_load_dwordx4 v[24:27], v6, s[{S_X}:{S_X + 1}]")
    for jj in range(8):
        a(f"buffer_load_dwordx4 {vr(32 + 4 * jj, 4)}, v7, {RA}, {k8(jj)} offen{' nt' if cfg.nt_front else ''}")
    epoch_load()
    srd(SRD_WS, S_WS, WS_SIZE)
    srd(SRD_B, S_WUV, 4 << 20)
    a("v_mov_b32 v28, 0")
    a("v_mov_b32 v29, 0")
    a("s_mov_b32 s10, 0x3f803f80")
    a("s_waitcnt vmcnt(9)")
    for i in range(16):
        a(f"v_dot2c_f32_bf16 v28, s10, v{8 + i}")
        a(f"v_dot2c_f32_bf16 v29, v{8 + i}, v{8 + i}")
    for x in (28, 29):
        a(f"v_add_f32_dpp v{x}, v{x}, v{x} quad_perm:[1,0,3,2] {DPPM}")
    for x in (28, 29):
        a(f"v_add_f32_dpp v{x}, v{x}, v{x} quad_perm:[2,3,0,1] {DPPM}")
    for wh in (16, 32):
        swap_reduce(28, 30, wh)
        swap_reduce(29, 31, wh)
    a(f"v_mul_f32 v28, {hex(f32(1.0 / 512))}, v28")
    a(f"v_mul_f32 v29, {hex(f32(1.0 / 512))}, v29")
    a("v_fma_f32 v29, -v28, v28, v29")
    a("v_max_f32 v29, 0, v29")
    a(f"v_add_f32 v29, {hex(f32(1e-5))}, v29")
    a("v_rsq_f32 v29, v29")
    a("s_waitcnt vmcnt(8)")
    a("v_mul_f32 v28, v28, v29")
    for p in range(4):
        a(f"v_lshlrev_b32 v{8 + 2 * p}, 16, v{24 + p}")
        a(f"v_and_b32 v{9 + 2 * p}, 0xffff0000, v{24 + p}")
    for k in range(8):
        a(f"v_fma_f32 v{8 + k}, v{8 + k}, v29, -v28")
    for p in range(4):
        a(f"v_cvt_pk_bf16_f32 v{24 + p}, v{8 + 2 * p}, v{9 + 2 * p}")
    a(f"s_lshl_b32 s10, s{S_W}, 11")
    a("v_lshlrev_b32 v8, 9, v3")
    a("v_lshl_add_u32 v8, v2, 5, v8")
    a("v_add_u32 v8, s10, v8")
    a("v_and_b32 v9, 3, v1")
    a("v_lshlrev_b32 v11, 4, v9")
    a("v_lshlrev_b32 v9, 9, v9")
    a("v_bfe_u32 v10, v1, 2, 2")
    a("v_lshl_add_u32 v9, v10, 5, v9")
    a("v_lshrrev_b32 v10, 5, v1")
    a("v_lshl_add_u32 v9, v10, 7, v9")
    a(f"s_lshl_b32 s10, s{S_W}, 8")
    a("v_add_u32 v9, s10, v9")
    a("v_and_b32 v10, 1, v3")
    a("v_lshl_add_u32 v9, v10, 4, v9")
    a("v_cmp_eq_u32 s[56:57], 1, v10")
    a(f"s_lshl_b32 s10, s{S_HF}, 13")
    a(f"s_lshl_b32 s11, s{S_W}, 12")
    a("s_add_u32 s10, s10, s11")
    a(f"s_lshl_b32 s11, s{S_JF}, 6")
    a("s_add_u32 s10, s10, s11")
    a(f"s_add_u32 s10, s10, {WS_QPG}")
    a("v_lshrrev_b32 v10, 2, v1")
    a("v_lshl_add_u32 v11, v10, 8, v11")
    a("v_add_u32 v11, s10, v11")
    a("s_waitcnt lgkmcnt(0)")
    tags()
    a("v_mov_b32 v12, s48")
    a("v_mov_b32 v13, s49")
    if cfg.pperm:
        for pp in range(4):
            a(f"s_waitcnt vmcnt({6 - 2 * pp})")
            for c in range(8):
                dw, e = c // 2, c % 2
                a(f"v_perm_b32 v{64 + 4 * c + pp}, v{32 + 4 * (2 * pp + 1) + dw}, v{32 + 4 * (2 * pp) + dw}, {'s14' if e == 0 else 's15'}")
    else:
        a("s_waitcnt vmcnt(0)")
    TS(1)

    def uv_loads():
        a(f"s_lshl_b32 s10, s{S_J}, 20")
        a(f"s_lshl_b32 s11, s{S_W}, 18")
        a("s_add_u32 s10, s10, s11")
        a(f"s_lshl_b32 s11, s{S_H}, 8")
        a("s_add_u32 s10, s10, s11")
        a("v_lshlrev_b32 v7, 16, v3")
        a("v_lshl_add_u32 v7, v2, 4, v7")
        a("v_add_u32 v7, s10, v7")
        for jj in range(8):
            a(f"buffer_load_dwordx4 {vr(128 + 4 * jj, 4)}, v7, {RB}, {k8(jj)} offen{' nt' if cfg.nt_uv else ''}")

    if cfg.uv_early == 1:
        uv_loads()
    if not cfg.pperm:
        perm_set(32, 64)
    for c in range(8):
        mfma16(96 + 4 * c, 24, 64 + 4 * c, None)
    for c in range(0, 8, 2):
        a(f"ds_write2_b32 v8, v{96 + 4 * c}, v{100 + 4 * c} offset0:{c} offset1:{c + 1}")
    a("s_waitcnt lgkmcnt(0)")
    a("s_barrier")
    a(f"s_cmp_ge_u32 s{S_W}, 2")
    a("s_cbranch_scc1 L_Alo_nopub")
    for i in range(4):
        a(f"ds_read_b128 {vr(32 + 4 * i, 4)}, v9 offset:{2048 * i}")
    a("s_waitcnt lgkmcnt(2)")
    for k in range(4):
        a(f"v_add_f32 v{32 + k}, v{32 + k}, v{36 + k}")
    a("s_waitcnt lgkmcnt(0)")
    for k in range(4):
        a(f"v_add_f32 v{40 + k}, v{40 + k}, v{44 + k}")
    for k in range(4):
        a(f"v_add_f32 v{32 + k}, v{32 + k}, v{40 + k}")
    a("v_cvt_pk_bf16_f32 v36, v32, v33")
    a("v_cvt_pk_bf16_f32 v37, v34, v35")
    a("v_cndmask_b32 v16, v12, v36, s[56:57]")
    a("v_cndmask_b32 v17, v13, v37, s[56:57]")
    a("v_cndmask_b32 v18, v36, v12, s[56:57]")
    a("v_cndmask_b32 v19, v37, v13, s[56:57]")
    if cfg.e1local:
        a(f"s_mov_b32 s10, {WS_QPG2 - WS_QPG}")
        a(f"buffer_store_dwordx4 v[16:19], v11, {WS}, s10 offen")
    a(f"buffer_store_dwordx4 v[16:19], v11, {WS}, 0 offen sc1")
    a.label("L_Alo_nopub")
    TS(2)
    if cfg.e1lds:
        a("s_barrier")
    if cfg.xgate in (1, 2):
        a(f"s_cmp_eq_u32 s{S_W}, 3")
        a("s_cbranch_scc0 L_Alo_nogate")
        a(f"s_lshl_b32 s10, s{S_A}, 7")
        a(f"s_add_u32 s10, s10, {WS_GO}")
        a("v_mov_b32 v16, s10")
        canary(16, 20, True)
        a.label("L_Alo_nogate")
    a("s_barrier")
    if cfg.direct:
        a(f"s_cmp_eq_u32 s{S_W}, 2")
        a("s_cbranch_scc0 L_Alo_noclr")
        a(f"s_lshl_b32 s10, s{S_A}, 15")
        a(f"s_add_u32 s10, s10, {WS_OP}")
        a("v_lshlrev_b32 v16, 4, v1")
        for k in range(4):
            a(f"v_mov_b32 v{20 + k}, -1")
        for k in range(8):
            for q in range(4):
                a(f"buffer_store_dwordx4 v[20:23], v16, {WS}, s10 offen offset:{1024 * q} sc1")
            a("s_add_u32 s10, s10, 4096")
        a(f"s_lshl_b32 s10, s{S_A}, 7")
        a(f"s_add_u32 s10, s10, {WS_CLR}")
        a("v_mov_b32 v16, s10")
        a("v_mov_b32 v10, 0")
        a("v_mov_b32 v11, 0")
        a("s_mov_b64 exec, 1")
        a("s_waitcnt vmcnt(0)")
        a(f"buffer_store_dwordx4 v[10:13], v16, {WS}, 0 offen sc1")
        a("s_mov_b64 exec, -1")
        a.haz_flush(3)
        a.label("L_Alo_noclr")
    if cfg.ckpf:
        srd(SRD_A, S_CKV, 16 << 20)
        a(f"s_lshl_b32 s10, s{S_A}, 17")
        a(f"s_lshl_b32 s11, s{S_W}, 15")
        a("s_add_u32 s10, s10, s11")
        a("v_lshlrev_b32 v16, 10, v3")
        a("v_lshl_add_u32 v16, v2, 4, v16")
        for k in range(cfg.ckpf):
            i = 32 - cfg.ckpf + k
            a(f"s_add_u32 s11, s10, {(i % 8) * 4096 + (i // 8) * 256}")
            a(f"buffer_load_dwordx4 {vr(32 + 4 * k, 4)}, v16, {RA}, s11 offen")
    if cfg.xgate == 3:
        a(f"s_lshl_b32 s10, s{S_A}, 7")
        a(f"s_add_u32 s10, s10, {WS_GO}")
        a("v_mov_b32 v16, s10")
        canary(16, 20, True)
    if cfg.uv_early != 1:
        uv_loads()
    if cfg.ffnpf:
        ntf = " nt" if cfg.ffnpf == 1 else ""
        srd(SRD_A, S_WG, 512 * 2752)
        srd(SRD_B, S_WU, 512 * 2752)
        a("v_and_b32 v16, 7, v1")
        a("v_lshlrev_b32 v16, 6, v16")
        a("v_min_u32 v16, 348, v16")
        a("v_lshrrev_b32 v17, 3, v1")
        a("v_mul_u32_u24 v17, 2752, v17")
        a("v_add_u32 v16, v16, v17")
        a(f"s_lshl_b32 s10, s{S_I16}, 2")
        a(f"s_add_u32 s10, s10, s{S_W}")
        a(f"s_mul_i32 s10, s10, {8 * 2752}")
        a(f"s_mul_i32 s11, s{S_XCD}, 352")
        a("s_add_u32 s10, s10, s11")
        a(f"buffer_load_dword v18, v16, {RA}, s10 offen{ntf}")
        a(f"buffer_load_dword v19, v16, {RB}, s10 offen{ntf}")
        srd(SRD_A, S_WD, 1376 * 1024)
        a("v_lshlrev_b32 v16, 6, v0")
        a("v_min_u32 v16, 11200, v16")
        a(f"s_mul_i32 s10, s{S_A}, 11264")
        a(f"buffer_load_dword v20, v16, {RA}, s10 offen{ntf}")
        a("s_waitcnt vmcnt(3)")
    else:
        a("s_waitcnt vmcnt(0)")
    perm_set(128, 160)
    a("s_branch L_A_x")

    a.label("L_Ahi")
    a(f"s_sub_u32 s12, s{S_W}, 4")
    a(f"s_lshl_b32 s8, s{S_JF}, 7")
    a("s_lshl_b32 s10, s12, 5")
    a("s_add_u32 s8, s8, s10")
    a("s_lshl_b32 s10, s8, 13")
    a(f"s_lshl_b32 s11, s{S_HF}, 8")
    a("s_add_u32 s10, s10, s11")
    a("s_mov_b32 s57, s10")
    a("v_xor_b32 v7, v2, v3")
    a("v_lshlrev_b32 v7, 4, v7")
    a("v_lshl_add_u32 v30, v2, 8, v7")
    a("v_lshl_add_u32 v7, v3, 13, v7")
    a("s_lshl_b32 s11, s12, 13")
    a("s_add_u32 s11, s11, 16384")
    a("v_add_u32 v30, s11, v30")
    a("s_getpc_b64 s[62:63]")
    a.label("L_pc")
    a("s_sub_u32 s62, s62, L_pc-L_code_start")
    a("s_subb_u32 s63, s63, 0")
    a("s_lshl_b32 s10, s12, 4")
    a(f"s_add_u32 s10, s10, s{S_I16}")
    a("s_lshl_b32 s10, s10, 10")
    a("v_lshlrev_b32 v4, 4, v1")
    a("v_add_u32 v5, s10, v4")
    a("v_min_u32 v5, L_code_end-L_code_start-16, v5")
    a("global_load_dwordx4 v[8:11], v5, s[62:63]")
    a(f"s_lshl_b32 s10, s{S_HF}, 13")
    a(f"s_add_u32 s10, s10, {WS_QPG2 if cfg.e1local else WS_QPG}")
    a("v_add_u32 v6, s10, v4")
    a(f"v_subrev_u32 v27, {WS_QPG2 - WS_QPG}, v6")
    a("v_mov_b32 v26, v6")
    a("s_waitcnt lgkmcnt(0)")
    srd(SRD_A, S_WUK, 4 << 20)
    srd(SRD_WS, S_WS, WS_SIZE)
    epoch_load()
    a("s_mov_b32 s51, 4096")

    def qpg_load(k):
        so = "0" if k < 4 else "s51"
        a(f"buffer_load_dwordx4 {vr(64 + 4 * k, 4)}, v6, {WS}, {so} offen offset:{1024 * (k % 4)} sc1")

    if cfg.pretouch:
        a("s_lshl_b32 s10, s12, 11")
        a(f"buffer_load_dwordx4 v[64:67], v6, {WS}, s10 offen sc1")
        a(f"buffer_load_dwordx4 v[68:71], v6, {WS}, s10 offen offset:1024 sc1")
    def uk_dma():
        for k in range(8):
            a(f"s_add_u32 m0, s11, {1024 * k}")
            a(f"v_xor_b32 v{28 + k % 2}, {(k % 4) * 64}, v7")
            a(f"buffer_load_dwordx4 v{28 + k % 2}, {RA}, s57 offen{' nt' if cfg.nt_front else ''} lds")
            if k < 7:
                a("s_add_u32 s57, s57, 32768")

    if not cfg.uk_late:
        uk_dma()
    a(f"s_add_u32 s50, s12, s{S_J}")
    a("s_and_b32 s50, s50, 3")
    a(f"s_lshl_b32 s10, s{S_A}, 10")
    a("s_lshl_b32 s56, s50, 8")
    a("s_add_u32 s10, s10, s56")
    a(f"s_add_u32 s10, s10, {WS_AO}")
    a("v_lshlrev_b32 v31, 17, v3")
    a("v_lshl_add_u32 v31, v2, 4, v31")
    a("v_add_u32 v31, s10, v31")
    for k in range(4):
        a(f"v_mov_b32 v{12 + k}, -1")
    a(f"buffer_store_dwordx4 v[12:15], v31, {WS}, 0 offen sc1")
    a("s_cmp_eq_u32 s12, 0")
    a("s_cbranch_scc0 L_Ahi_noh")
    a(f"s_lshl_b32 s10, s{S_A}, 7")
    a(f"s_add_u32 s10, s10, {WS_H}")
    a("v_add_u32 v5, s10, v4")
    a("s_mov_b64 exec, 0xff")
    a(f"buffer_store_dwordx4 v[12:15], v5, {WS}, 0 offen sc1")
    a("s_mov_b64 exec, -1")
    a.label("L_Ahi_noh")
    a(f"s_lshl_b32 s10, s{S_HF}, 11")
    a("s_lshl_b32 s56, s8, 2")
    a("s_add_u32 s10, s10, s56")
    a(f"s_add_u32 s10, s10, {WS_QL}")
    a("v_and_b32 v16, 3, v2")
    a("v_lshlrev_b32 v17, 16, v16")
    a("v_lshrrev_b32 v18, 2, v2")
    a("v_lshl_add_u32 v17, v18, 6, v17")
    a("v_lshl_add_u32 v17, v3, 4, v17")
    a("v_add_u32 v17, s10, v17")
    a("v_cmp_eq_u32 s[58:59], 1, v18")
    srd(SRD_B, S_WO, 4 << 20)
    a(f"s_lshl_b32 s10, s{S_H}, 17")
    a("s_lshl_b32 s56, s50, 8")
    a("s_add_u32 s10, s10, s56")
    a("v_lshlrev_b32 v19, 13, v3")
    a("v_lshl_add_u32 v19, v2, 4, v19")
    a("v_add_u32 v19, s10, v19")
    a("s_waitcnt lgkmcnt(0)")
    tags()
    a("v_mov_b32 v22, s48")
    a("v_mov_b32 v23, s49")
    if cfg.ts == 2:
        a("s_waitcnt vmcnt(11)")
        TS(3, 2)
        a("s_waitcnt vmcnt(9)")
        TS(4, 2)
        a("s_waitcnt vmcnt(1)")
        TS(5, 2)
    a("s_barrier")
    if cfg.uk_late:
        uk_dma()
    a("s_waitcnt vmcnt(0)")
    TS(1)
    for t in range(4):
        a(f"v_xor_b32 v28, {t * 64}, v30")
        for ct in range(2):
            a(f"ds_read_b128 {vr(32 + 16 * ct + 4 * t, 4)}, v28 offset:{4096 * ct}")
    if cfg.e1lds:
        a("s_lshl_b32 s10, s12, 11")
        a("s_lshl_b32 s11, s12, 10")
        a("v_add_u32 v5, 8192, v4")
        a("v_add_u32 v29, s11, v5")
        a.label("L_Ahi_poll")
        a(f"buffer_load_dwordx4 v[64:67], v6, {WS}, s10 offen sc1")
        a(f"buffer_load_dwordx4 v[68:71], v6, {WS}, s10 offen offset:1024 sc1")
        a("s_waitcnt vmcnt(1)")
        a("v_cmp_ne_u64 s[60:61], s[48:49], v[64:65]")
        a("s_waitcnt vmcnt(0)")
        a("v_cmp_ne_u64 vcc, s[48:49], v[70:71]")
        a("s_or_b64 s[60:61], s[60:61], vcc")
        a("s_cbranch_scc0 L_Ahi_got")
        if cfg.e1local:
            a("s_and_b32 s56, s13, 7")
            a("s_cmp_eq_u32 s56, 1")
            a("s_cselect_b64 vcc, -1, 0")
            a("v_cndmask_b32 v6, v26, v27, vcc")
        a("s_sub_u32 s13, s13, 1")
        a("s_cbranch_scc0 L_Ahi_poll")
        a("s_mov_b32 s13, 0")
        a.label("L_Ahi_got")
        a("ds_write_b128 v29, v[66:69]")
        a("s_waitcnt lgkmcnt(0)")
        a("s_barrier")
        for t in range(4):
            a(f"ds_read_b128 {vr(72 + 4 * t, 4)}, v5 offset:{1024 * t}")
        TS(2)
        for t in range(4):
            a(f"s_waitcnt lgkmcnt({3 - t})")
            for ct in range(2):
                mfma16(96 + 4 * ct, 32 + 16 * ct + 4 * t, 72 + 4 * t, None if t == 0 else 96 + 4 * ct)
    else:
        a.label("L_Ahi_poll")
        for k in range(8):
            qpg_load(k)
        a("s_mov_b64 s[60:61], 0")
        for k in range(8):
            a(f"s_waitcnt vmcnt({7 - k})")
            tr = 64 + 4 * k + (0 if k % 2 == 0 else 2)
            a(f"v_cmp_ne_u64 vcc, s[48:49], {vr(tr, 2)}")
            a("s_or_b64 s[60:61], s[60:61], vcc")
        a("s_cmp_eq_u64 s[60:61], 0")
        a("s_cbranch_scc1 L_Ahi_got")
        if cfg.e1local:
            a("s_and_b32 s10, s13, 7")
            a("s_cmp_eq_u32 s10, 1")
            a("s_cselect_b64 vcc, -1, 0")
            a("v_cndmask_b32 v6, v26, v27, vcc")
        a("s_sub_u32 s13, s13, 1")
        a("s_cbranch_scc0 L_Ahi_poll")
        a("s_mov_b32 s13, 0")
        a.label("L_Ahi_got")
        a("s_waitcnt lgkmcnt(0)")
        TS(2)
        for t in range(4):
            for ct in range(2):
                mfma16(96 + 4 * ct, 32 + 16 * ct + 4 * t, 66 + 8 * t, None if t == 0 else 96 + 4 * ct)
    dpp_ror_reduce(range(96, 104), (4, 8))
    for k in range(4):
        a(f"v_cndmask_b32 v{24 + k}, v{96 + k}, v{100 + k}, s[58:59]")
    sc = f32(128 ** -0.5 * math.log2(math.e))
    for k in range(4):
        a(f"v_mul_f32 v{24 + k}, {hex(sc)}, v{24 + k}")
    a("v_cvt_pk_bf16_f32 v20, v24, v25")
    a("v_cvt_pk_bf16_f32 v21, v26, v27")
    a("s_mov_b32 exec_lo, 0x00ff00ff")
    a("s_mov_b32 exec_hi, 0x00ff00ff")
    a(f"buffer_store_dwordx4 v[20:23], v17, {WS}, 0 offen sc1")
    a("s_mov_b64 exec, -1")
    a("s_barrier")
    for t in range(4):
        a(f"s_add_u32 s56, s{S_J}, {t}")
        a("s_and_b32 s56, s56, 3")
        a(f"s_lshl_b32 s{52 + t}, s56, 6")
        a("s_lshl_b32 s56, s56, 15")
        for hf in range(2):
            if hf:
                a("s_add_u32 s56, s56, 4096")
            for q in range(4):
                jj = hf * 4 + q
                if cfg.wo_depth and cfg.wo_depth <= 8 * t + jj < cfg.wo_n:
                    a(f"s_waitcnt vmcnt({cfg.wo_depth - 1})")
                a(f"buffer_load_dwordx4 {vr(128 + 32 * t + 4 * jj, 4)}, v19, {RB}, s56 offen offset:{1024 * q}{' nt' if cfg.nt_wo else ''}")
    for k in range(4):
        a(f"s_waitcnt vmcnt({8 * (3 - k)})")
        perm_set(128 + 32 * k, 96 + 32 * k)

    a.label("L_A_x")
    TS(3)
    T, AF, MK, D, STR = 32, 48, 64, 68, 72
    CL, CX = 0, 4096
    a(f"s_lshl_b32 s10, s{S_A}, 15")
    a(f"s_lshl_b32 s56, s{S_W}, 12")
    a("s_add_u32 s10, s10, s56")
    a(f"s_add_u32 s10, s10, {WS_OP}")
    a("v_lshlrev_b32 v5, 4, v1")
    a("v_add_u32 v5, s10, v5")
    a(f"s_lshr_b32 s10, s{S_W}, 1")
    a("s_lshl_b32 s10, s10, 14")
    a(f"s_lshl_b32 s56, s{S_H}, 4")
    a("s_add_u32 s10, s10, s56")
    a(f"s_add_u32 s10, s10, {WS_ST}")
    a("v_and_b32 v4, 31, v1")
    a("v_lshlrev_b32 v4, 9, v4")
    a("v_add_u32 v4, s10, v4")
    sel_masks(MK, 8)
    a(f"s_and_b32 s10, s{S_W}, 1")
    a("s_lshl_b32 s10, s10, 6")
    a("v_lshlrev_b32 v6, 2, v3")
    a("v_add_u32 v6, s10, v6")
    a(f"s_mul_i32 s10, s{S_W}, 272")
    a("v_lshlrev_b32 v8, 4, v2")
    a("v_lshl_add_u32 v8, v3, 3, v8")
    a("v_add_u32 v8, s10, v8")
    a("v_lshrrev_b32 v9, 2, v2")
    a("v_and_b32 v10, 1, v2")
    a("v_lshl_add_u32 v9, v9, 1, v10")
    a("v_mul_u32_u24 v9, 272, v9")
    a("v_lshl_add_u32 v9, v3, 4, v9")
    a(f"s_lshl_b32 s56, s{S_W}, 6")
    a("v_add_u32 v9, s56, v9")
    a("v_mul_u32_u24 v10, 1088, v3")
    a("v_lshl_add_u32 v10, v2, 4, v10")
    a(f"s_add_u32 s10, s10, {CX}")
    a("v_add_u32 v10, s10, v10")
    a("v_mul_u32_u24 v11, 272, v2")
    a("v_lshl_add_u32 v11, v3, 4, v11")
    a(f"v_add_u32 v11, {CX}, v11")
    a(f"s_lshl_b32 s10, s{S_J}, 14")
    a(f"s_lshl_b32 s56, s{S_W}, 11")
    a("s_add_u32 s10, s10, s56")
    a(f"s_add_u32 s10, s10, {WS_FL}")
    a("v_lshlrev_b32 v7, 7, v2")
    a("v_add_u32 v7, s10, v7")
    if cfg.tlb:
        a("s_mov_b64 exec, 1")
        a(f"buffer_load_dword v12, v5, {WS}, 0 offen nt")
        a("v_mov_b32 v13, 0")
        a(f"global_load_dword v14, v13, s[{S_OUT}:{S_OUT + 1}]")
        a("s_mov_b64 exec, 0xff")
        a("v_lshlrev_b32 v13, 16, v1")
        a(f"v_add_u32 v13, {WS_FP + 65536 - 128}, v13")
        a(f"buffer_load_dword v15, v13, {WS}, 0 offen nt")
        a("s_mov_b64 exec, -1")
    if cfg.ck >= 3:
        a(f"s_lshr_b32 s10, s{S_W}, 1")
        a("s_lshl_b32 s10, s10, 17")
        a(f"s_lshl_b32 s56, s{S_J}, 10")
        a("s_add_u32 s10, s10, s56")
        a(f"s_lshl_b32 s56, s{S_H}, 5")
        a("s_add_u32 s10, s10, s56")
        a(f"s_add_u32 s10, s10, {WS_CK}")
        a("v_and_b32 v4, 31, v1")
        a("v_lshlrev_b32 v4, 12, v4")
        a("v_lshrrev_b32 v7, 5, v1")
        a("v_lshl_add_u32 v4, v7, 4, v4")
        a("v_add_u32 v4, s10, v4")
        a(f"s_and_b32 s10, s{S_W}, 1")
        a("s_add_u32 s10, s10, 2")
        a("v_cmp_eq_u32 s[60:61], s10, v3")
    elif cfg.ck:
        a(f"s_lshl_b32 s10, s{S_W}, 15")
        a(f"s_lshl_b32 s56, s{S_J}, 9")
        a("s_add_u32 s10, s10, s56")
        a(f"s_lshl_b32 s56, s{S_H}, 4")
        a("s_add_u32 s10, s10, s56")
        a(f"s_add_u32 s10, s10, {WS_CK}")
        a("v_and_b32 v7, 3, v2")
        a("v_lshl_add_u32 v7, v7, 2, v3")
        a("v_lshlrev_b32 v7, 11, v7")
        a("v_add_u32 v7, s10, v7")
        a("v_mov_b32 v76, 0")
        a("v_mov_b32 v77, 0")
        a("v_mov_b32 v78, s48")
        a("v_mov_b32 v79, s49")
        a("s_mov_b32 s60, 0x000f000f")
        a("s_mov_b32 s61, 0x000f000f")
    if cfg.stpre:
        a(f"buffer_load_dwordx4 {vr(STR, 4)}, v4, {WS}, 0 offen sc1")
    canary(4, STR, True)
    mpoll_tag(4, STR)
    TS(4)

    def op_loads():
        if cfg.ck in (1, 2):
            a("s_mov_b64 exec, s[60:61]")
            a(f"buffer_load_dwordx4 v[76:79], v7, {WS}, 0 offen sc1")
            a("s_mov_b64 exec, -1")
        for i in range(4):
            a(f"buffer_load_dwordx4 {vr(T + 4 * i, 4)}, v5, {WS}, 0 offen offset:{1024 * i} sc1")

    if not cfg.fl:
        op_loads()
    if cfg.ck >= 3:
        a(f"v_cndmask_b32 v76, 0, v{STR}, s[60:61]")
        a(f"v_cndmask_b32 v77, 0, v{STR + 1}, s[60:61]")
        if cfg.ckm:
            a("v_sub_u32 v76, 0, v76")
            a("v_sub_u32 v77, 0, v77")
    a(f"v_mov_b32 v12, v{STR}")
    dpp_ror_reduce([12], (1, 2, 4, 8), "v_max_f32")
    swap_reduce(12, 13, 16, "v_max_f32")
    a(f"v_sub_f32 v12, v{STR}, v12")
    a("v_exp_f32 v12, v12")
    a("v_cvt_pk_bf16_f32 v12, v12, v12")
    for i in range(4):
        a(f"ds_bpermute_b32 v{16 + i}, v6, v12 offset:{16 * i}")
    a("v_and_b32 v13, 0xffff0000, v12")
    a(f"v_mul_f32 v13, v13, v{STR + 1}")
    dpp_ror_reduce([13], (1, 2, 4, 8))
    swap_reduce(13, 14, 16)
    a("v_rcp_f32 v13, v13")
    for i in range(4):
        a(f"s_waitcnt lgkmcnt({3 - i})")
        for p in range(4):
            a(f"v_and_b32 v{AF + 4 * i + p}, v{16 + i}, v{MK + p}")
    if cfg.fl:
        mpoll_tag(7, STR, "0xffff")
        op_loads()
    if cfg.direct:
        a("s_branch L_A_opchk")
        a.label("L_A_oppoll")
        op_loads()
        a.label("L_A_opchk")
        a("s_waitcnt vmcnt(0)")
        valid_check(range(T, T + 16), 7, "L_A_oppoll")
    if cfg.ck:
        a("s_branch L_A_ckchk")
        a.label("L_A_ckpoll")
        op_loads()
        a.label("L_A_ckchk")
        if cfg.ck < 3:
            a("s_waitcnt vmcnt(4)")
            a("v_cmp_ne_u64 s[56:57], s[48:49], v[78:79]")
        for i in range(4):
            a(f"s_waitcnt vmcnt({3 - i})")
            x = T + 4 * i
            if cfg.ckm:
                u = 84 + 4 * (i % 2)
                for k in range(4):
                    a(f"v_xor_b32 v{u + k}, s{48 + k % 2}, v{x + k}")
                a(f"v_add3_u32 v80, {'v76' if i == 0 else 'v80'}, v{x}, v{x + 2}")
                a(f"v_add3_u32 v81, {'v77' if i == 0 else 'v81'}, v{x + 1}, v{x + 3}")
                mfma16(D, AF + 4 * i, u, None if i == 0 else D)
            else:
                mfma16(D, AF + 4 * i, T + 4 * i, None if i == 0 else D)
                a(f"v_bitop3_b32 v80, {'v76' if i == 0 else 'v80'}, v{x}, v{x + 2} bitop3:0x96")
                a(f"v_bitop3_b32 v81, {'v77' if i == 0 else 'v81'}, v{x + 1}, v{x + 3} bitop3:0x96")
        dpp_ror_reduce([80, 81], (1, 2, 4, 8), CKOP)
        if cfg.ck >= 3:
            for wh in (16, 32):
                swap_reduce(80, 82, wh, CKOP)
                swap_reduce(81, 83, wh, CKOP)
            a("v_cmp_ne_u64 vcc, 0, v[80:81]")
            a("s_cbranch_vccz L_A_ckok")
        else:
            a("v_cmp_ne_u64 vcc, 0, v[80:81]")
            a("s_or_b64 s[56:57], s[56:57], vcc")
            a("s_cbranch_scc0 L_A_ckok")
        a("s_sub_u32 s13, s13, 1")
        a("s_cbranch_scc0 L_A_ckpoll")
        a("s_mov_b32 s13, 0")
        a.label("L_A_ckok")
        TS(5)
    else:
        if cfg.ts:
            a("s_waitcnt vmcnt(0)")
        TS(5)
        for i in range(4):
            a(f"s_waitcnt vmcnt({3 - i})")
            mfma16(D, AF + 4 * i, T + 4 * i, None if i == 0 else D)
    for k in range(4):
        a(f"v_mul_f32 v{D + k}, v{D + k}, v13")
    a(f"v_cvt_pk_bf16_f32 v14, v{D}, v{D + 1}")
    a(f"v_cvt_pk_bf16_f32 v15, v{D + 2}, v{D + 3}")
    a("s_mov_b32 exec_hi, 0")
    a("ds_write_b64 v8, v[14:15]")
    a("s_mov_b64 exec, -1")
    a("s_waitcnt lgkmcnt(0)")
    a("s_barrier")
    a(f"s_cmp_ge_u32 s{S_W}, 4")
    a("s_cbranch_scc1 L_A_x3")
    a("ds_read_b128 v[16:19], v9")
    a("s_waitcnt lgkmcnt(0)")
    for c in range(8):
        mfma16(96 + 4 * c, 16, 160 + 4 * c, None)
    for c in range(8):
        a(f"v_add_f32 v{96 + 4 * c}, v{96 + 4 * c}, v{97 + 4 * c}")
    for p in range(4):
        a(f"v_cvt_pk_bf16_f32 v{20 + p}, v{96 + 8 * p}, v{100 + 8 * p}")
    a("ds_write_b128 v10, v[20:23]")
    a("s_waitcnt lgkmcnt(0)")
    a("s_barrier")
    TS(6)
    a(f"s_cmp_eq_u32 s{S_W}, 0")
    END_IF("scc0", 7)
    a("s_branch L_A_fin")
    a.label("L_A_x3")
    for t in range(4):
        a(f"v_add_u32 v{24 + t}, s{52 + t}, v11")
    a("s_barrier")
    for t in range(4):
        a(f"ds_read_b128 {vr(32 + 4 * t, 4)}, v{24 + t}")
    def x3_tail(c):
        x = 224 + 4 * c
        a(f"v_add_f32 v{x}, v{x}, v{x + 1}")
        a(f"v_add_f32 v{x + 2}, v{x + 2}, v{x + 3}")
        a(f"v_add_f32 v{x}, v{x}, v{x + 2}")
        if c % 2:
            a(f"v_cvt_pk_bf16_f32 v{20 + c // 2}, v{x - 4}, v{x}")

    if cfg.x3i:
        for t in range(2):
            a(f"s_waitcnt lgkmcnt({3 - t})")
            for c in range(8):
                mfma16(224 + 4 * c, 32 + 4 * t, 96 + 32 * t + 4 * c, None if t == 0 else 224 + 4 * c)
        a("s_waitcnt lgkmcnt(0)")
        for c in range(8):
            for t in (2, 3):
                mfma16(224 + 4 * c, 32 + 4 * t, 96 + 32 * t + 4 * c, 224 + 4 * c)
            if c >= 2:
                x3_tail(c - 2)
        x3_tail(6)
        x3_tail(7)
    else:
        for t in range(4):
            a(f"s_waitcnt lgkmcnt({3 - t})")
            for c in range(8):
                mfma16(224 + 4 * c, 32 + 4 * t, 96 + 32 * t + 4 * c, None if t == 0 else 224 + 4 * c)
        for c in range(8):
            x3_tail(c)
    a(f"buffer_store_dwordx4 v[20:23], v31, {WS}, 0 offen sc1")
    TS(6)
    END(7)

    a.label("L_A_fin")
    a(f"s_lshl_b32 s10, s{S_J}, 10")
    a(f"s_lshl_b32 s56, s{S_H}, 5")
    a("s_add_u32 s10, s10, s56")
    a("v_lshrrev_b32 v4, 1, v2")
    a("v_lshl_add_u32 v4, v3, 3, v4")
    a("v_and_b32 v5, 1, v2")
    a("v_lshlrev_b32 v5, 4, v5")
    a("v_lshl_add_u32 v6, v3, 3, v5")
    a("v_add_u32 v6, s10, v6")
    a(f"s_add_u32 s11, s10, {WS_FP}")
    a("v_lshl_add_u32 v8, v4, 12, v5")
    a("v_add_u32 v8, s11, v8")
    a(f"v_add_u32 v9, {64 * 4096}, v8")
    a("s_lshl_b32 s10, s10, 2")
    a(f"s_add_u32 s10, s10, {WS_H}")
    a("v_add_u32 v10, s10, v5")
    a(f"v_cmp_eq_u32 vcc, {NSLICE - 64}, v4")
    a("v_cndmask_b32 v9, v9, v10, vcc")
    a(f"v_cmp_ge_u32 s[56:57], {NSLICE - 64}, v4")
    for k in range(4):
        a(f"v_mov_b32 v{40 + k}, 0")
        a(f"v_and_b32 v{16 + k}, 0x3f803f80, v{MK + k}")
    a(f"s_mov_b32 s11, {32 * 4096}")
    srd(SRD_A, S_OUT, 4096)
    canary(8, 32, False)
    mpoll_data([(32, f"buffer_load_dwordx4 v[32:35], v8, {WS}, 0 offen sc1"),
                (36, f"buffer_load_dwordx4 v[36:39], v8, {WS}, s11 offen sc1"),
                (40, f"buffer_load_dwordx4 v[40:43], v9, {WS}, 0 offen sc1")], 24, 7, ["-1", "-1", "s[56:57]"])
    for i in range(3):
        mfma16(D, 16, 32 + 4 * i, None if i == 0 else D)
    dpp_ror_reduce(range(D, D + 4), (2, 4, 8))
    a(f"v_cvt_pk_bf16_f32 v14, v{D}, v{D + 1}")
    a(f"v_cvt_pk_bf16_f32 v15, v{D + 2}, v{D + 3}")
    a("s_mov_b64 exec, 0x00030003")
    a(f"buffer_store_dwordx2 v[14:15], v6, {RA}, 0 offen{' sc1' if cfg.out_sc1 else ''}")
    a(f"s_cmp_eq_u32 s{S_A}, 0")
    a("s_cbranch_scc0 L_A_done")
    a("s_mov_b64 exec, 1")
    a("v_mov_b32 v9, s44")
    a("v_mov_b32 v10, 0")
    a(f"buffer_store_dword v9, v10, {WS}, 0 offen offset:{WS_EPOCH} sc1")
    a.label("L_A_done")
    if cfg.dbg >= 2:
        a.label("L_dbg_spin")
        a(f"s_memrealtime s[{S_TS + 2}:{S_TS + 3}]")
        a("s_waitcnt lgkmcnt(0)")
        a(f"s_sub_u32 s10, s{S_TS + 2}, s{S_TS}")
        a(f"s_cmp_lt_u32 s10, {cfg.dbg * 100}")
        a("s_cbranch_scc1 L_dbg_spin")
    if cfg.dbg:
        a(f"s_memrealtime s[{S_TS + 2}:{S_TS + 3}]")
        a("s_waitcnt lgkmcnt(0)")
        a("s_mov_b64 exec, 1")
        a(f"v_mov_b32 v12, s{S_TS}")
        a(f"v_mov_b32 v13, s{S_TS + 2}")
        a(f"s_lshl_b32 s10, s{S_A}, 3")
        a(f"s_add_u32 s10, s10, {WS_DBG}")
        a("v_mov_b32 v10, s10")
        a(f"buffer_store_dwordx2 v[12:13], v10, {WS}, 0 offen")
    TS(7)
    END(8)

    a.label("L_B")
    inA[0] = False
    S_BB, S_CH, S_R, S_SL = 6, 7, 9, 51
    QB = 131072
    a(f"s_and_b32 s{S_I16}, s{S_I16}, 15")
    a(f"s_lshl_b32 s{S_R}, s{S_XCD}, 4")
    a(f"s_add_u32 s{S_R}, s{S_R}, s{S_I16}")
    a(f"s_lshr_b32 s{S_BB}, s{S_R}, 5")
    a(f"s_and_b32 s{S_CH}, s{S_R}, 31")
    MXB, PB, SB, STG = QB, QB + 1024, QB + 9728, 0
    for k in range(4):
        a(f"v_mov_b32 v{26 + k}, -1")
    a(f"s_mul_i32 s{S_SL}, s{S_XCD}, 11")
    a(f"s_add_u32 s{S_SL}, s{S_SL}, s{S_I16}")
    a(f"s_cmp_lt_u32 s{S_I16}, 11")
    a(f"s_cselect_b32 s{S_SL}, s{S_SL}, 127")
    a(f"s_lshl_b32 s10, s{S_SL}, 12")
    a(f"s_lshl_b32 s11, s{S_W}, 7")
    a("s_add_u32 s10, s10, s11")
    a(f"s_add_u32 s10, s10, {WS_FP}")
    a("v_and_b32 v31, 3, v2")
    a("v_lshlrev_b32 v31, 10, v31")
    a("v_lshrrev_b32 v12, 2, v2")
    a("v_lshl_add_u32 v31, v12, 5, v31")
    a("v_lshl_add_u32 v31, v3, 3, v31")
    a("v_add_u32 v31, s10, v31")
    a("v_and_b32 v12, 31, v1")
    a("v_lshrrev_b32 v13, 5, v1")
    a(f"s_cmp_ge_u32 s{S_W}, 4")
    a("s_cbranch_scc1 L_B_pv")

    a(f"s_lshl_b32 s8, s{S_R}, 17")
    a(f"s_lshl_b32 s10, s{S_W}, 15")
    a("s_add_u32 s8, s8, s10")
    a("v_lshlrev_b32 v4, 2, v3")
    a("v_xor_b32 v4, v4, v2")
    a("v_lshlrev_b32 v4, 4, v4")
    a("v_lshl_add_u32 v4, v3, 10, v4")
    for k in range(1, 4):
        a(f"v_xor_b32 v{4 + k}, {G(k) * 16}, v4")
    a("v_lshrrev_b32 v8, 2, v2")
    a("v_lshlrev_b32 v8, 1, v8")
    a("v_mov_b32 v9, 0x78")
    a("v_lshrrev_b32 v8, v8, v9")
    a("v_and_b32 v8, 3, v8")
    a("v_and_b32 v9, 3, v2")
    a("v_lshl_add_u32 v8, v9, 2, v8")
    a("v_xor_b32 v8, v8, v13")
    a("v_lshlrev_b32 v8, 4, v8")
    a("v_lshl_add_u32 v8, v12, 8, v8")
    a("v_add_u32 v8, s10, v8")
    for tt in range(8):
        a(f"v_xor_b32 v{48 + tt}, {tt * 32}, v8")
    a("s_waitcnt lgkmcnt(0)")
    epoch_load()
    srd(SRD_A, S_CKV, 16 << 20)
    srd(SRD_WS, S_WS, WS_SIZE)
    a(f"buffer_store_dwordx2 v[26:27], v31, {WS}, 0 offen sc1")
    if cfg.b_delay == 1:
        a("s_waitcnt lgkmcnt(0)")
    if cfg.b_delay == 2:
        a("s_waitcnt vmcnt(0) lgkmcnt(0)")
    if cfg.b_delay >= 3:
        a(f"s_sleep {cfg.b_delay}")
    DD = cfg.dma_depth
    assert DD <= 8

    def go_store():
        a(f"s_cmp_eq_u32 s{S_W}, 3")
        a("s_cbranch_scc0 L_B_nogo")
        a(f"s_lshl_b32 s12, s{S_R}, 7")
        a(f"s_add_u32 s12, s12, {WS_GO}")
        a("v_mov_b32 v24, s12")
        a("s_mov_b64 exec, 1")
        a(f"buffer_store_dwordx4 v[26:29], v24, {WS}, 0 offen sc1")
        a("s_mov_b64 exec, -1")
        a.label("L_B_nogo")

    def afrag_reads(q):
        for tt in range(8):
            a(f"ds_read_b128 {vr(128 + 32 * q + 4 * tt, 4)}, v{48 + tt} offset:{8192 * q}")

    for i in range(32):
        q, rr = i // 8, i % 8
        if i == cfg.bs_at:
            a("s_barrier")
        if i >= DD:
            a(f"s_waitcnt vmcnt({DD - 1})")
        a(f"s_add_u32 m0, s10, {1024 * i}")
        a(f"s_add_u32 s11, s8, {rr * 4096 + q * 256}")
        a(f"buffer_load_dwordx4 v{4 + rr % 4}, {RA}, s11 offen{' nt' if cfg.nt_ckv else ''} lds")
        if i == 1:
            a("v_xor_b32 v8, v2, v13")
            a("v_lshlrev_b32 v8, 4, v8")
            a("v_lshl_add_u32 v8, v12, 10, v8")
            a(f"v_add_u32 v8, {QB}, v8")
            for tt in range(8):
                a(f"v_xor_b32 v{56 + tt}, {tt * 32}, v8")
            a("v_lshlrev_b32 v65, 4, v12")
            a(f"v_add_u32 v65, {MXB}, v65")
            a(f"s_lshl_b32 s12, s{S_W}, 2")
            a("v_add_u32 v64, s12, v65")
            a("v_mul_u32_u24 v66, 272, v12")
            a("v_lshl_add_u32 v66, v13, 3, v66")
            a(f"s_lshl_b32 s12, s{S_W}, 6")
            a(f"s_add_u32 s12, s12, {PB}")
            a("v_add_u32 v66, s12, v66")
            a("v_lshlrev_b32 v68, 5, v12")
            a(f"v_add_u32 v68, {SB}, v68")
            a("v_lshl_add_u32 v67, v13, 2, v68")
            a(f"s_lshl_b32 s12, s{S_W}, 3")
            a("v_add_u32 v67, s12, v67")
            a(f"s_lshl_b32 s12, s{S_R}, 9")
            a(f"s_add_u32 s12, s12, {WS_ST}")
            a("v_lshlrev_b32 v25, 4, v12")
            a("v_add_u32 v25, s12, v25")
        if i == 3 and cfg.ffnpf2:
            a("v_lshrrev_b32 v69, 1, v1")
            a("v_mul_u32_u24 v69, 2752, v69")
            a("v_and_b32 v70, 1, v1")
            a("v_lshl_add_u32 v69, v70, 6, v69")
            a(f"s_and_b32 s56, s{S_SL}, 3")
            a("s_lshl_b32 s56, s56, 2")
            a(f"s_add_u32 s56, s56, s{S_W}")
            a(f"s_mul_i32 s56, s56, {32 * 2752}")
            a(f"s_lshr_b32 s57, s{S_SL}, 2")
            a("s_lshl_b32 s57, s57, 7")
            a("s_add_u32 s56, s56, s57")
            srd(SRD_B, S_WG, 512 * 2752)
            srd(20, S_WU, 512 * 2752)
        if i == 3 and cfg.fe:
            a("v_lshrrev_b32 v69, 1, v1")
            a("v_mul_u32_u24 v69, 2752, v69")
            a("v_and_b32 v70, 1, v1")
            a("v_lshl_add_u32 v69, v70, 4, v69")
            a(f"s_lshl_b32 s56, s{S_SL}, 1")
            a(f"s_add_u32 s56, s56, s{S_W}")
            a("s_and_b32 s56, s56, 7")
            a(f"s_mul_i32 s56, s56, {64 * 2752}")
            a(f"s_lshl_b32 s57, s{S_SL}, 5")
            a("s_add_u32 s56, s56, s57")
            a(f"s_add_u32 s57, s56, {32 * 2752}")
            srd(SRD_B, S_WG, 512 * 2752)
            srd(20, S_WU, 512 * 2752)
        if i == 9:
            a("s_waitcnt lgkmcnt(0)")
            tags()
            a("v_mov_b32 v28, s48")
            a("v_mov_b32 v29, s49")
        if cfg.xgate and i == cfg.go_at:
            go_store()
        if i in (16, 24):
            afrag_reads(i // 8 - 2)
        if i == cfg.b0_at:
            a("s_barrier")
    TS(1)
    if cfg.xgate and cfg.go_at == 32:
        go_store()
    if cfg.b0_at > 32:
        a(f"s_waitcnt vmcnt({40 - cfg.b0_at})")
        a("s_barrier")
    a("s_waitcnt vmcnt(8)")
    afrag_reads(2)
    a("s_waitcnt lgkmcnt(0)")
    TS(2)
    a("s_barrier")
    if cfg.xgate and cfg.go_at == 33:
        go_store()
    TS(1, 3)
    if cfg.ts == 3:
        a(f"s_memtime s[{S_TS + 6}:{S_TS + 7}]")
        a("s_waitcnt lgkmcnt(0)")
    pend = []

    def lds(tag, text):
        a(text)
        pend.append(tag)

    def need_lds(*tags_):
        idxs = [pend.index(t_) for t_ in tags_ if t_ in pend]
        if not idxs:
            return
        idx = max(idxs)
        assert len(pend) - 1 - idx <= 15
        a(f"s_waitcnt lgkmcnt({len(pend) - 1 - idx})")
        del pend[:idx + 1]

    def qread(t):
        lds(("q", t), f"ds_read_b128 {vr(96 + 4 * (t % 8), 4)}, v{56 + t % 8} offset:{256 * (t // 8)}")

    QD = 6
    for t in range(QD):
        qread(t)
    for t in range(32):
        if t == cfg.q3_at:
            a("s_waitcnt vmcnt(0)")
            for tt in range(8):
                lds(("a", 24 + tt), f"ds_read_b128 {vr(224 + 4 * tt, 4)}, v{48 + tt} offset:{8192 * 3}")
            if cfg.fe:
                a(f"s_cmp_ge_u32 s{S_SL}, {NSLICE}")
                a("s_cbranch_scc1 L_B_nofe")
                lst = [(RB, "s56"), (RB, "s57"), ("s[20:23]", "s56"), ("s[20:23]", "s57")]
                for k in range(cfg.fe):
                    a(f"buffer_load_dwordx4 {vr(72 + 4 * k, 4)}, v69, {lst[k][0]}, {lst[k][1]} offen{' nt' if cfg.nt_ffn else ''}")
                a.label("L_B_nofe")
            if cfg.ffnpf2:
                a(f"s_cmp_ge_u32 s{S_SL}, {NSLICE}")
                a("s_cbranch_scc1 L_B_nopf2")
                a(f"buffer_load_dword v70, v69, {RB}, s56 offen")
                a("buffer_load_dword v71, v69, s[20:23], s56 offen")
                a.label("L_B_nopf2")
        need_lds(("a", t), ("q", t))
        cin = "0" if t == 0 else "v[32:47]"
        a(f"v_mfma_f32_32x32x16_bf16 v[32:47], {vr(128 + 4 * t, 4)}, {vr(96 + 4 * (t % 8), 4)}, {cin}")
        if t + QD < 32:
            qread(t + QD)
    a("s_barrier")
    a("v_max3_f32 v22, v32, v33, v34")
    a("v_max3_f32 v23, v35, v36, v37")
    TS(2, 3)
    if cfg.ts == 3:
        a(f"s_memtime s[{S_TS + 10}:{S_TS + 11}]")
        a("s_waitcnt lgkmcnt(0)")
    for k in range(38, 46, 4):
        a(f"v_max3_f32 v22, v22, v{k}, v{k + 1}")
        a(f"v_max3_f32 v23, v23, v{k + 2}, v{k + 3}")
    a("v_max3_f32 v22, v22, v46, v47")
    a("v_max_f32 v22, v22, v23")
    swap_reduce(22, 23, 32, "v_max_f32")
    a("ds_write_b32 v64, v22")
    a("s_waitcnt lgkmcnt(0)")
    a("s_barrier")
    TS(6, 3)
    a("ds_read_b128 v[96:99], v65")
    a("s_waitcnt lgkmcnt(0)")
    a("v_max3_f32 v26, v96, v97, v98")
    a("v_max_f32 v26, v26, v99")
    for g4 in range(4):
        x = 32 + 4 * g4
        for r in range(4):
            a(f"v_sub_f32 v{x + r}, v{x + r}, v26")
        for r in range(4):
            a(f"v_exp_f32 v{x + r}, v{x + r}")
        a(f"v_cvt_pk_bf16_f32 v{8 + 2 * (g4 % 2)}, v{x}, v{x + 1}")
        a(f"v_cvt_pk_bf16_f32 v{9 + 2 * (g4 % 2)}, v{x + 2}, v{x + 3}")
        a(f"ds_write_b64 v66, {vr(8 + 2 * (g4 % 2), 2)} offset:{16 * g4}")
    a("s_waitcnt lgkmcnt(0)")
    a("s_barrier")
    TS(4)
    for k in range(8):
        a(f"v_add_f32 v{32 + k}, v{32 + k}, v{40 + k}")
    for k in range(4):
        a(f"v_add_f32 v{32 + k}, v{32 + k}, v{36 + k}")
    a("v_add_f32 v32, v32, v34")
    a("v_add_f32 v33, v33, v35")
    a("v_add_f32 v32, v32, v33")
    a("ds_write_b32 v67, v32")
    a("s_waitcnt lgkmcnt(0)")
    a("s_barrier")
    a("ds_read_b128 v[32:35], v68")
    a("ds_read_b128 v[36:39], v68 offset:16")
    a("s_waitcnt lgkmcnt(0)")
    for k in range(4):
        a(f"v_add_f32 v{32 + k}, v{32 + k}, v{36 + k}")
    a("v_add_f32 v32, v32, v34")
    a("v_add_f32 v33, v33, v35")
    a("v_add_f32 v27, v32, v33")
    if not (cfg.fl or cfg.direct or cfg.ck):
        a("s_barrier")
    a(f"s_cmp_eq_u32 s{S_W}, {0 if cfg.ck < 3 else 99}")
    a("s_cbranch_scc0 L_B_nost")
    a("s_mov_b32 exec_hi, 0")
    a(f"buffer_store_dwordx4 v[26:29], v25, {WS}, 0 offen sc1")
    a("s_mov_b64 exec, -1")
    a.label("L_B_nost")
    if cfg.fl or cfg.direct or cfg.ck:
        a("s_barrier")
    a.haz_flush(3)
    a("s_branch L_B_post")

    a.label("L_B_pv")
    a(f"s_sub_u32 s12, s{S_W}, 4")
    a(f"s_lshl_b32 s11, s{S_BB}, 16")
    a("s_lshl_b32 s10, s12, 10")
    a("s_add_u32 s11, s11, s10")
    a(f"s_add_u32 s11, s11, {WS_QL}")
    a("v_lshlrev_b32 v7, 4, v1")
    a("v_add_u32 v7, s11, v7")
    a("v_add_u32 v6, 4096, v7")
    a("s_waitcnt lgkmcnt(0)")
    epoch_load()
    srd(SRD_WS, S_WS, WS_SIZE)

    def q_load(i):
        a(f"buffer_load_dwordx4 {vr(128 + 4 * i, 4)}, v{7 - i % 2}, {WS}, {k8(i // 2)} offen sc1")

    if cfg.uk_delay:
        a("s_waitcnt lgkmcnt(0)")
    if cfg.ukpf:
        srd(SRD_B, S_WUK, 4 << 20)
        a(f"s_and_b32 s11, s{S_R}, 3")
        a("s_lshl_b32 s11, s11, 20")
        a("s_lshl_b32 s10, s12, 18")
        a("s_add_u32 s11, s11, s10")
        a(f"s_lshr_b32 s10, s{S_R}, 2")
        a("s_lshl_b32 s10, s10, 8")
        a("s_add_u32 s11, s11, s10")
        a(f"s_add_u32 s11, s11, {(8 - cfg.ukpf_n) * 32768}")
        a("v_lshlrev_b32 v8, 13, v3")
        a("v_lshl_add_u32 v8, v2, 4, v8")
        for k in range(cfg.ukpf_n):
            a(f"buffer_load_dwordx4 {vr(32 + 4 * k, 4)}, v8, {RB}, s11 offen{' nt' if cfg.nt_front else ''}")
            a("s_add_u32 s11, s11, 32768")
    if cfg.bs_at >= 0 and cfg.bs_mode == 1:
        a("s_barrier")
    if cfg.pretouch:
        a(f"s_lshl_b32 s11, s{S_I16}, 12")
        a(f"buffer_load_dwordx4 v[128:131], v7, {WS}, s11 offen sc1")
    a(f"buffer_store_dwordx2 v[26:27], v31, {WS}, 0 offen sc1")
    a("s_lshr_b32 s10, s12, 1")
    a("s_and_b32 s11, s12, 1")
    a("s_lshl_b32 s11, s11, 5")
    a("s_xor_b32 s11, s11, s10")
    a("v_lshrrev_b32 v8, 1, v1")
    a("v_xor_b32 v8, s11, v8")
    a("v_lshlrev_b32 v8, 4, v8")
    a("v_and_b32 v9, 1, v1")
    a("v_lshl_add_u32 v8, v9, 3, v8")
    a("s_lshl_b32 s10, s10, 10")
    a(f"s_add_u32 s10, s10, {QB}")
    a("v_add_u32 v8, s10, v8")
    for k in range(8):
        a(f"v_xor_b32 v{64 + k}, {k * 32}, v8")
    a("v_lshrrev_b32 v22, 2, v2")
    a("v_lshl_add_u32 v23, v13, 3, v22")
    a("v_lshlrev_b32 v23, 8, v23")
    a("v_lshl_add_u32 v23, v9, 3, v23")
    a("v_and_b32 v24, 1, v3")
    a("v_bfe_u32 v10, v1, 1, 1")
    a("v_lshl_add_u32 v24, v24, 1, v10")
    a("v_lshlrev_b32 v22, 2, v22")
    a("v_xor_b32 v24, v24, v22")
    a("v_mul_u32_u24 v22, 3, v13")
    a("v_xor_b32 v24, v24, v22")
    a("v_lshl_add_u32 v23, v24, 4, v23")
    a("s_lshl_b32 s10, s12, 13")
    a("v_add_u32 v23, s10, v23")
    a("v_xor_b32 v24, 32, v23")
    a("v_add_u32 v24, 1024, v24")
    for ct in range(4):
        for u in range(2):
            a(f"v_xor_b32 v{72 + 2 * ct + u}, {ct * 64}, v{23 + u}")
            a(f"v_add_u32 v{80 + 2 * ct + u}, 0x10000, v{72 + 2 * ct + u}")
    a("v_mul_u32_u24 v88, 272, v12")
    a("v_lshl_add_u32 v88, v13, 4, v88")
    a(f"v_add_u32 v88, {PB}, v88")
    a("s_lshl_b32 s10, s12, 14")
    a("v_mul_u32_u24 v89, 144, v12")
    a("v_lshl_add_u32 v89, v13, 3, v89")
    a("v_add_u32 v89, s10, v89")
    a("v_lshrrev_b32 v22, 3, v1")
    a("v_and_b32 v23, 7, v1")
    a("v_mul_u32_u24 v90, 144, v22")
    a("v_lshl_add_u32 v90, v23, 4, v90")
    a("v_add_u32 v90, s10, v90")
    a("s_lshl_b32 s10, s12, 15")
    a(f"s_lshl_b32 s11, s{S_R}, 8")
    a("s_add_u32 s10, s10, s11")
    a(f"s_add_u32 s10, s10, {WS_OP}")
    a("v_lshlrev_b32 v30, 17, v22")
    a("v_lshl_add_u32 v30, v23, 4, v30")
    a("v_add_u32 v30, s10, v30")
    if cfg.tlb:
        a("v_lshlrev_b32 v10, 17, v12")
        a("v_add_u32 v10, s10, v10")
        a(f"buffer_load_dword v11, v10, {WS}, 0 offen nt")
    for i in range(1, 4):
        a(f"s_mov_b32 s{52 + i}, {i << 20}")
    a("s_lshl_b32 s10, s12, 14")
    a(f"s_lshl_b32 s11, s{S_R}, 7")
    a("s_add_u32 s10, s10, s11")
    a(f"s_add_u32 s10, s10, {WS_FL}")
    a("v_mov_b32 v25, s10")
    if cfg.ck:
        a(f"s_lshl_b32 s10, s{S_R}, 11")
        a("s_lshl_b32 s11, s12, 9")
        a("s_add_u32 s10, s10, s11")
        a(f"s_add_u32 s10, s10, {WS_CK}")
        a("v_lshlrev_b32 v25, 4, v12")
        a("v_add_u32 v25, s10, v25")
        if cfg.ck >= 3:
            a(f"s_sub_u32 s10, s10, {WS_CK}")
            a("s_lshl_b32 s10, s10, 1")
            a(f"s_add_u32 s10, s10, {WS_CK}")
            a("v_lshlrev_b32 v25, 5, v12")
            a("v_lshl_add_u32 v25, v13, 4, v25")
            a("v_add_u32 v25, s10, v25")
            a("v_lshlrev_b32 v5, 5, v12")
            a(f"v_add_u32 v5, {SB}, v5")
            a("v_lshlrev_b32 v4, 4, v12")
            a(f"v_add_u32 v4, {MXB}, v4")
    a("s_waitcnt lgkmcnt(0)")
    tags()
    a("v_mov_b32 v28, s48")
    a("v_mov_b32 v29, s49")
    TS(1)
    if cfg.bs_at >= 0 and cfg.bs_mode == 0:
        a("s_waitcnt vmcnt(0)")
        a("s_barrier")
    if cfg.scout:
        a(f"s_lshl_b32 s11, s{S_BB}, 16")
        a("s_lshl_b32 s10, s12, 10")
        a("s_add_u32 s11, s11, s10")
        a(f"s_add_u32 s11, s11, {WS_QL + 496}")
        a("v_lshrrev_b32 v10, 1, v12")
        a("v_lshlrev_b32 v10, 12, v10")
        a("v_and_b32 v11, 1, v1")
        a("v_lshl_add_u32 v10, v11, 9, v10")
        a("v_add_u32 v10, s11, v10")
        a("s_mov_b32 s56, -1")
        a("s_mov_b32 s57, 0")
    a("s_barrier")
    if cfg.scout:
        mpoll_tag(10, 128, "s[56:57]", cfg.ssleep)
    TS(2)
    for i in range(16):
        q_load(i)
    a("s_mov_b32 s60, 0")
    for i in range(16):
        a(f"s_waitcnt vmcnt({15 - i})")
        a(f"v_cmp_ne_u64 vcc, s[48:49], {vr(130 + 4 * i, 2)}")
        a(f"ds_write_b64 v{64 + i % 8}, {vr(128 + 4 * i, 2)} offset:{2048 * i}")
        a("s_cmp_lg_u64 vcc, 0")
        a("s_addc_u32 s60, s60, s60")
    a("s_cmp_eq_u32 s60, 0")
    a("s_cbranch_scc1 L_B_gotq")
    if cfg.qslot:
        NS = cfg.qslot
        a.label("L_B_qretry")
        a("s_mov_b32 s61, s60")
        for k in range(NS):
            if k:
                a("s_cmp_eq_u32 s61, 0")
                a(f"s_cbranch_scc1 L_B_qs_issued{k}")
            a(f"s_ff1_i32_b32 s{20 + k}, s61")
            a(f"s_bitset0_b32 s61, s{20 + k}")
            a(f"s_sub_u32 s10, 15, s{20 + k}")
            a("s_lshl_b32 s11, s10, 12")
            a(f"buffer_load_dwordx4 {vr(128 + 4 * k, 4)}, v7, {WS}, s11 offen sc1")
            a("s_and_b32 s11, s10, 7")
            a("s_lshl_b32 s11, s11, 5")
            a("s_lshl_b32 s10, s10, 11")
            a(f"v_xor_b32 v{192 + k}, s11, v64")
            a(f"v_add_u32 v{192 + k}, s10, v{192 + k}")
        for n in range(NS, 0, -1):
            a.label(f"L_B_qs_issued{n}")
            k = n - 1
            lab = a.newlabel("Lqs")
            a("s_waitcnt vmcnt(0)")
            a(f"v_cmp_ne_u64 vcc, s[48:49], {vr(130 + 4 * k, 2)}")
            a(f"s_cbranch_vccnz {lab}")
            a(f"ds_write_b64 v{192 + k}, {vr(128 + 4 * k, 2)}")
            a(f"s_bitset0_b32 s60, s{20 + k}")
            a.label(lab)
    else:
        a.label("L_B_qretry")
        if cfg.qsleep:
            a(f"s_sleep {cfg.qsleep}")
        for i in range(16):
            lab = a.newlabel("Lq")
            a(f"s_bitcmp1_b32 s60, {15 - i}")
            a(f"s_cbranch_scc0 {lab}")
            q_load(i)
            a.label(lab)
        a("s_waitcnt vmcnt(0)")
        for i in range(16):
            lab = a.newlabel("Lq")
            a(f"s_bitcmp1_b32 s60, {15 - i}")
            a(f"s_cbranch_scc0 {lab}")
            a(f"v_cmp_ne_u64 vcc, s[48:49], {vr(130 + 4 * i, 2)}")
            a(f"s_cbranch_vccnz {lab}")
            a(f"ds_write_b64 v{64 + i % 8}, {vr(128 + 4 * i, 2)} offset:{2048 * i}")
            a(f"s_bitset0_b32 s60, {15 - i}")
            a.label(lab)
    a("s_cmp_eq_u32 s60, 0")
    a("s_cbranch_scc1 L_B_gotq")
    a("s_sub_u32 s13, s13, 1")
    a("s_cbranch_scc0 L_B_qretry")
    a("s_mov_b32 s13, 0")
    a.label("L_B_gotq")
    a("s_waitcnt lgkmcnt(0)")
    TS(3)
    a("s_barrier")
    TS(1, 3)
    if cfg.direct:
        a("s_lshl_b32 s10, s12, 12")
        a(f"s_add_u32 s10, s10, {WS_CLR}")
        a("v_lshlrev_b32 v10, 7, v12")
        a("v_add_u32 v10, s10, v10")
        mpoll_tag(10, 96)
    a("s_cmp_lt_u32 s12, 3")
    a("s_cbranch_scc1 L_B_trr")
    a("s_barrier")
    a.label("L_B_trr")
    for ct in range(4):
        for s in range(8):
            for u in range(2):
                base = (72 if s < 4 else 80) + 2 * ct + u
                a(f"ds_read_b64_tr_b16 {vr(128 + (ct * 8 + s) * 4 + 2 * u, 2)}, v{base} offset:{32768 * ((s // 2) % 2) + 4096 * (s % 2)}")
    a("s_cmp_lt_u32 s12, 3")
    a("s_cbranch_scc0 L_B_trd")
    a("s_barrier")
    a.label("L_B_trd")
    a("s_barrier")
    a("s_waitcnt lgkmcnt(0)")
    a("s_barrier")
    TS(4)
    for s in range(8):
        a(f"ds_read_b128 {vr(96 + 4 * s, 4)}, v88 offset:{32 * s}")
    ACC = [32, 48, 32, 48]
    ACC = [32, 48, 64 - 0, 0]
    a("v_mov_b32 v22, v89")
    a("v_mov_b32 v23, v90")
    ACC = [32, 48, 64, 80]

    def stage_w(ct, g4):
        x = ACC[ct] + 4 * g4
        d = 14 + 2 * (g4 % 4)
        a(f"v_cvt_pk_bf16_f32 v{d}, v{x}, v{x + 1}")
        a(f"v_cvt_pk_bf16_f32 v{d + 1}, v{x + 2}, v{x + 3}")
        if cfg.ck and cfg.ckm:
            a(f"v_xor_b32 v{d}, s48, v{d}")
            a(f"v_xor_b32 v{d + 1}, s49, v{d + 1}")
        a(f"ds_write_b64 v22, {vr(d, 2)} offset:{8192 * (ct // 2) + 64 * (ct % 2) + 16 * g4}")
        if cfg.ck:
            if ct == 0 and g4 == 0:
                a(f"v_mov_b32 v26, v{d}")
                a(f"v_mov_b32 v27, v{d + 1}")
            else:
                a(f"{CKOP} v26, v26, v{d}")
                a(f"{CKOP} v27, v27, v{d + 1}")

    def stage_r(pair, dst):
        for i in range(4):
            a(f"ds_read_b128 {vr(dst + 4 * i, 4)}, v23 offset:{8192 * pair + 1152 * i}")

    def op_store(pair, dst, i):
        so = "0" if i == 0 else f"s{52 + i}"
        a(f"buffer_store_dwordx4 {vr(dst + 4 * i, 4)}, v30, {WS}, {so} offen offset:{128 * pair} sc1")

    for ct in range(4):
        for s in range(8):
            if ct == 0:
                a(f"s_waitcnt lgkmcnt({7 - s})")
            cin = "0" if s == 0 else vr(ACC[ct], 16)
            a(f"v_mfma_f32_32x32x16_bf16 {vr(ACC[ct], 16)}, {vr(128 + (ct * 8 + s) * 4, 4)}, {vr(96 + 4 * s, 4)}, {cin}")
            if ct >= 1 and 3 <= s <= 6:
                stage_w(ct - 1, s - 3)
            if ct == 1 and s == 0:
                a("s_barrier")
            if cfg.ck >= 3 and ct == 1 and s == 1:
                a("ds_read_b128 v[128:131], v5")
                a("ds_read_b128 v[132:135], v5 offset:16")
                a("ds_read_b128 v[136:139], v4")
            if cfg.ck >= 3 and ct == 2 and s == 0:
                a("s_waitcnt lgkmcnt(4)")
                for k in range(4):
                    a(f"v_add_f32 v{128 + k}, v{128 + k}, v{132 + k}")
            if cfg.ck >= 3 and ct == 2 and s == 1:
                a("v_add_f32 v128, v128, v130")
                a("v_add_f32 v129, v129, v131")
                a("v_add_f32 v9, v128, v129")
                a("v_max3_f32 v8, v136, v137, v138")
                a("v_max_f32 v8, v8, v139")
            if ct == 2 and s == 7:
                stage_r(0, 128)
            if ct == 3 and s < 2:
                a(f"s_waitcnt lgkmcnt({2 - 2 * s})")
                op_store(0, 128, 2 * s)
                op_store(0, 128, 2 * s + 1)
    for g4 in range(4):
        stage_w(3, g4)
    stage_r(1, 144)
    if cfg.ck:
        swap_reduce(26, 10, 32, CKOP)
        swap_reduce(27, 11, 32, CKOP)
        a("s_mov_b32 exec_hi, 0")
        if cfg.ck >= 3:
            a("v_mov_b32 v26, v8")
            a("v_mov_b32 v27, v9")
            a("s_mov_b64 exec, -1")
            if cfg.ck == 3:
                a(f"buffer_store_dwordx4 v[26:29], v25, {WS}, 0 offen sc1")
        else:
            a(f"buffer_store_dwordx4 v[26:29], v25, {WS}, 0 offen sc1")
            a("s_mov_b64 exec, -1")
    TS(7, 3)
    for i in range(4):
        a(f"s_waitcnt lgkmcnt({3 - i})")
        op_store(1, 144, i)
    if cfg.ck == 4:
        a(f"buffer_store_dwordx4 v[26:29], v25, {WS}, 0 offen sc1")
    TS(5)
    a("s_mov_b64 exec, 1")
    if cfg.direct != 2 and cfg.ck != 2 and not (cfg.ck >= 3 and cfg.noack):
        a("s_waitcnt vmcnt(0)")
    if cfg.fl:
        a(f"buffer_store_dwordx4 v[26:29], v25, {WS}, 0 offen sc1")
    a("s_mov_b64 exec, -1")
    a("s_barrier")
    a.label("L_B_post")
    if cfg.hold == 29:
        TS(9)
    if cfg.ts:
        TS(1)

    GW, UW, DW = 0, 16384, 32768
    GP, AB, ZB = 65536, 65536 + 4096, 65536 + 8192
    S1B, S2B = GP + 2048, GP + 2048 + 64
    a(f"s_cmp_ge_u32 s{S_SL}, {NSLICE}")
    a("s_cbranch_scc1 L_B_red")
    srd(SRD_A, S_WG, 512 * 2752)
    srd(SRD_B, S_WU, 512 * 2752)
    a("v_lshrrev_b32 v4, 1, v1")
    a("v_mul_u32_u24 v4, 2752, v4")
    a("v_and_b32 v5, 1, v1")
    a("v_lshl_add_u32 v4, v5, 4, v4")
    a(f"s_lshl_b32 s12, s{S_SL}, 1")
    a(f"s_add_u32 s12, s12, s{S_W}")
    a("s_and_b32 s12, s12, 7")
    a(f"s_mul_i32 s10, s12, {64 * 2752}")
    a(f"s_lshl_b32 s11, s{S_SL}, 5")
    a("s_add_u32 s10, s10, s11")
    a(f"s_add_u32 s11, s10, {32 * 2752}")
    a("s_lshl_b32 s12, s12, 11")
    pieces = [(RA, GW, 0), (RA, GW, 1), (RB, UW, 0), (RB, UW, 1)]

    def gu_dma(lst):
        for (R, base, k) in lst:
            a(f"s_add_u32 m0, s12, {base + 1024 * k}")
            a("s_nop 0")
            a(f"buffer_load_dwordx4 v4, {R}, s{10 + k} offen{' nt' if cfg.nt_ffn else ''} lds")

    if cfg.fe:
        a(f"s_cmp_ge_u32 s{S_W}, 4")
        a("s_cbranch_scc1 L_B_fulldma")
        a("v_lshlrev_b32 v5, 4, v1")
        a("v_add_u32 v5, s12, v5")
        a("s_waitcnt vmcnt(0)")
        for k in range(cfg.fe):
            a(f"ds_write_b128 v5, {vr(72 + 4 * k, 4)} offset:{pieces[k][1] + 1024 * pieces[k][2]}")
        a("s_branch L_B_restdma")
        a.label("L_B_fulldma")
        gu_dma(pieces[:cfg.fe])
        a.label("L_B_restdma")
        gu_dma(pieces[cfg.fe:])
    else:
        gu_dma(pieces)
    srd(SRD_A, S_WD, 1376 * 1024)
    a("v_lshlrev_b32 v4, 4, v1")
    a(f"s_lshl_b32 s10, s{S_SL}, 14")
    a("s_add_u32 s10, s10, s12")
    a("s_add_u32 s11, s10, 1024")
    for k in range(2):
        a(f"s_add_u32 m0, s12, {DW + 1024 * k}")
        a("s_nop 0")
        a(f"buffer_load_dwordx4 v4, {RA}, s{10 + k} offen{' nt' if cfg.nt_ffn else ''} lds")
    a("v_mov_b32 v4, 0")
    a("v_mov_b32 v5, 0")
    a(f"v_mov_b32 v6, {ZB}")
    a("ds_write_b64 v6, v[4:5]")
    a(f"s_and_b32 s10, s{S_W}, 3")
    a("s_lshl_b32 s11, s10, 12")
    a("v_lshlrev_b32 v8, 8, v3")
    a("v_lshl_add_u32 v8, v2, 3, v8")
    a("v_add_u32 v8, s11, v8")
    a("v_lshrrev_b32 v9, 2, v2")
    a("v_lshl_add_u32 v10, v3, 2, v9")
    a("v_lshlrev_b32 v10, 10, v10")
    a("v_and_b32 v11, 3, v2")
    a("v_lshl_add_u32 v10, v11, 3, v10")
    a(f"s_lshl_b32 s11, s{S_W}, 7")
    a(f"s_add_u32 s12, s11, {DW}")
    a("v_add_u32 v10, s12, v10")
    a("v_lshlrev_b32 v12, 12, v9")
    a("v_lshrrev_b32 v13, 1, v3")
    a("v_lshl_add_u32 v12, v13, 7, v12")
    a("v_and_b32 v13, 1, v3")
    a("v_lshl_add_u32 v12, v13, 4, v12")
    a("s_lshl_b32 s12, s10, 10")
    a(f"s_add_u32 s12, s12, {WS_H}")
    a("v_add_u32 v12, s12, v12")
    a("s_lshl_b32 s12, s10, 2")
    a("v_lshlrev_b32 v13, 4, v1")
    a(f"v_add_u32 v13, {GP}, v13")
    a("v_add_u32 v14, s12, v13")
    a("v_lshlrev_b32 v15, 4, v3")
    a(f"v_add_u32 v15, {S1B}, v15")
    a("v_add_u32 v16, s12, v15")
    a("v_cmp_eq_u32 s[56:57], v9, v3")
    a(f"s_add_u32 s11, s11, {AB}")
    a("v_lshlrev_b32 v17, 1, v1")
    a("v_add_u32 v17, s11, v17")
    a("v_lshlrev_b32 v18, 5, v11")
    a("v_lshl_add_u32 v18, v3, 3, v18")
    a("v_add_u32 v18, s11, v18")
    for tau in range(4):
        a(f"v_cmp_eq_u32 vcc, {tau}, v9")
        a(f"v_cndmask_b32 v{20 + tau}, v6, v18, vcc")
    a("s_waitcnt vmcnt(0) lgkmcnt(0)")
    a("s_barrier")
    for tau in range(4):
        a(f"ds_read_b64_tr_b16 {vr(64 + 2 * tau, 2)}, v10 offset:{32 * tau}")
    for mtx in range(2):
        for t in range(4):
            for u in range(2):
                a(f"ds_read_b64_tr_b16 {vr(32 + 16 * mtx + 4 * t + 2 * u, 2)}, v8 offset:{UW * mtx + 1024 * t + 128 * u}")
    for p in range(4):
        a(f"v_mov_b32 v{72 + p}, 0x3f803f80")
    a("s_waitcnt lgkmcnt(0)")
    for t in range(4):
        for mtx in range(2):
            mfma16(76 + 4 * mtx, 72, 32 + 16 * mtx + 4 * t, None if t == 0 else 76 + 4 * mtx)
    a("ds_write_b32 v14, v76")
    a("ds_write_b32 v14, v80 offset:1024")
    a("s_waitcnt lgkmcnt(0)")
    a("s_barrier")
    a("ds_read_b128 v[76:79], v13")
    a("ds_read_b128 v[80:83], v13 offset:1024")
    a("s_waitcnt lgkmcnt(0)")
    for x, o in ((76, 24), (80, 25)):
        a(f"v_add_f32 v{x}, v{x}, v{x + 1}")
        a(f"v_add_f32 v{x + 2}, v{x + 2}, v{x + 3}")
        a(f"v_add_f32 v{o}, v{x}, v{x + 2}")
    a("s_barrier")

    TS(6)
    a("s_branch L_B_hcan")
    a.label("L_B_red")
    TS(6)
    a(f"s_cmp_lt_u32 s{S_I16}, 12")
    END_IF("scc1", 8)
    a(f"s_cmp_ge_u32 s{S_W}, 4")
    END_IF("scc1", 8)
    a(f"s_lshl_b32 s{S_R}, s{S_XCD}, 2")
    a(f"s_add_u32 s{S_R}, s{S_R}, s{S_I16}")
    a(f"s_sub_u32 s{S_R}, s{S_R}, 12")
    a(f"s_lshl_b32 s{S_R}, s{S_R}, 2")
    a(f"s_add_u32 s{S_R}, s{S_R}, s{S_W}")
    a(f"s_lshr_b32 s{S_BB}, s{S_R}, 5")
    a(f"s_and_b32 s{S_CH}, s{S_R}, 31")
    MK2, D2 = 112, 116
    sel_masks(MK2, 4)
    for k in range(4):
        a(f"v_and_b32 v{MK2 + k}, 0x3f803f80, v{MK2 + k}")
    a("v_lshrrev_b32 v4, 1, v2")
    a("v_lshl_add_u32 v4, v3, 3, v4")
    a("v_and_b32 v5, 1, v2")
    a("v_lshlrev_b32 v5, 4, v5")
    a("v_lshl_add_u32 v26, v3, 3, v5")
    a(f"s_lshl_b32 s10, s{S_R}, 5")
    a("v_and_b32 v27, 31, v26")
    a("v_add_u32 v27, s10, v27")
    a(f"global_load_dwordx2 v[28:29], v27, s[{S_X}:{S_X + 1}]")
    a(f"s_lshl_b32 s10, s{S_BB}, 17")
    a(f"s_lshl_b32 s11, s{S_CH}, 5")
    a("s_add_u32 s10, s10, s11")
    a(f"s_add_u32 s10, s10, {WS_AO}")
    a("v_lshl_add_u32 v4, v4, 10, v5")
    a("v_add_u32 v4, s10, v4")
    a(f"s_lshl_b32 s10, s{S_R}, 7")
    a(f"s_add_u32 s10, s10, {WS_H}")
    a("v_add_u32 v26, s10, v26")
    a("s_mov_b32 s10, 65536")
    a("s_mov_b32 s11, 98304")
    a("v_cmp_gt_u32 vcc, 2, v2")
    a("s_waitcnt vmcnt(0)")
    a("v_cndmask_b32 v28, 0, v28, vcc")
    a("v_cndmask_b32 v29, 0, v29, vcc")
    a("v_lshlrev_b32 v120, 16, v28")
    a("v_and_b32 v121, 0xffff0000, v28")
    a("v_lshlrev_b32 v122, 16, v29")
    a("v_and_b32 v123, 0xffff0000, v29")
    canary(4, 96, False)
    mpoll_data([(96 + 4 * i, f"buffer_load_dwordx4 {vr(96 + 4 * i, 4)}, v4, {WS}, {['0', k8(4), 's10', 's11'][i]} offen sc1") for i in range(4)], 20, 5)
    for i in range(4):
        mfma16(D2, MK2, 96 + 4 * i, 120 if i == 0 else D2)
    dpp_ror_reduce(range(D2, D2 + 4), (2, 4, 8))
    a(f"v_cvt_pk_bf16_f32 v28, v{D2}, v{D2 + 1}")
    a(f"v_cvt_pk_bf16_f32 v29, v{D2 + 2}, v{D2 + 3}")
    a("s_mov_b64 exec, 0x00030003")
    a(f"buffer_store_dwordx2 v[28:29], v26, {WS}, 0 offen sc1")
    TS(7)
    END(8)

    a.label("L_B_hcan")
    canary(12, 96, False)
    mpoll_data([(96 + 4 * t, f"buffer_load_dwordx4 {vr(96 + 4 * t, 4)}, v12, {WS}, 0 offen offset:{256 * t} sc1") for t in range(4)], 20, 5)
    TS(7)
    a(f"s_cmp_ge_u32 s{S_W}, 4")
    a("s_cbranch_scc1 L_B_stats")
    for t in range(4):
        for mtx in range(2):
            mfma16(76 + 4 * mtx, 96 + 4 * t, 32 + 16 * mtx + 4 * t, None if t == 0 else 76 + 4 * mtx)
    a("ds_write_b32 v14, v76")
    a("ds_write_b32 v14, v80 offset:1024")
    a("s_branch L_B_f1done")
    a.label("L_B_stats")
    for t in range(4):
        mfma16(76, 96 + 4 * t, 72, None if t == 0 else 76)
        mfma16(80, 96 + 4 * t, 96 + 4 * t, None if t == 0 else 80)
    a("s_mov_b64 exec, s[56:57]")
    a("ds_write_b32 v16, v76")
    a("ds_write_b32 v16, v80 offset:64")
    a("s_mov_b64 exec, -1")
    a.label("L_B_f1done")
    a("s_waitcnt lgkmcnt(0)")
    a("s_barrier")
    a("ds_read_b128 v[84:87], v15")
    a("ds_read_b128 v[88:91], v15 offset:64")
    a("ds_read_b128 v[76:79], v13")
    a("ds_read_b128 v[80:83], v13 offset:1024")
    a("s_waitcnt lgkmcnt(2)")
    for x in (84, 88):
        a(f"v_add_f32 v{x}, v{x}, v{x + 1}")
        a(f"v_add_f32 v{x + 2}, v{x + 2}, v{x + 3}")
        a(f"v_add_f32 v{x}, v{x}, v{x + 2}")
    a(f"v_mul_f32 v84, {hex(f32(1.0 / 512))}, v84")
    a(f"v_mul_f32 v88, {hex(f32(1.0 / 512))}, v88")
    a("v_fma_f32 v88, -v84, v84, v88")
    a("v_max_f32 v88, 0, v88")
    a(f"v_add_f32 v88, {hex(f32(1e-5))}, v88")
    a("v_rsq_f32 v88, v88")
    a("s_waitcnt lgkmcnt(0)")
    for x in (76, 80):
        a(f"v_add_f32 v{x}, v{x}, v{x + 1}")
        a(f"v_add_f32 v{x + 2}, v{x + 2}, v{x + 3}")
        a(f"v_add_f32 v{x}, v{x}, v{x + 2}")
    a("v_fma_f32 v76, -v84, v24, v76")
    a("v_fma_f32 v80, -v84, v25, v80")
    a("v_mul_f32 v76, v76, v88")
    a("v_mul_f32 v80, v80, v88")
    a(f"v_mul_f32 v77, {hex(f32(-math.log2(math.e)))}, v76")
    a("v_exp_f32 v77, v77")
    a("v_mul_f32 v76, v76, v80")
    a("v_add_f32 v77, 1.0, v77")
    a("v_rcp_f32 v77, v77")
    a("v_mul_f32 v76, v76, v77")
    a("v_cvt_pk_bf16_f32 v76, v76, v76")
    a("ds_write_b16 v17, v76")
    a("s_waitcnt lgkmcnt(0)")
    for tau in range(4):
        a(f"ds_read_b64 {vr(84 + 2 * tau, 2)}, v{20 + tau}")
    for tau in range(4):
        a(f"s_waitcnt lgkmcnt({3 - tau})")
        cin = "0" if tau == 0 else "v[76:79]"
        a(f"v_mfma_f32_16x16x16_bf16 v[76:79], {vr(64 + 2 * tau, 2)}, {vr(84 + 2 * tau, 2)}, {cin}")
    a("v_cvt_pk_bf16_f32 v80, v76, v77")
    a("v_cvt_pk_bf16_f32 v81, v78, v79")
    a(f"buffer_store_dwordx2 v[80:81], v31, {WS}, 0 offen sc1")
    TS(2)
    if cfg.ts:
        END(8)
    a.label("L_end")
    if cfg.hold:
        a("s_cmp_eq_u32 s100, 0")
        a("s_cbranch_scc1 L_end2")
        a.label("L_hold")
        a("s_memrealtime s[96:97]")
        a("s_waitcnt lgkmcnt(0)")
        a("s_sub_u32 s96, s96, s98")
        a("s_cmp_lt_u32 s96, 3000")
        a("s_cbranch_scc1 L_hold")
        a.label("L_end2")
    a("s_endpgm")
    a.label("L_code_end")

    body = a.render()
    hdr = open("sequential_preLN__compressed_kv_cla__swiglu_ffn__decode.s.ref").read().split("\n")
    head = []
    for line in hdr:
        if line.startswith("; @launch"):
            head.append("; @launch grid=(256,1,1) block=(512,1,1) lds=163840")
            break
        head.append(line)
    doc = """
; Generated by a hand-written Python emitter (instruction selection, layouts and scheduling are all manual)."""
    text = "\n".join(head) + doc + f"""
.amdgcn_target "amdgcn-amd-amdhsa--gfx950"
.text
.globl {KNAME}
.p2align 8
.type {KNAME},@function
{KNAME}:
{body}.section .rodata,"a"
.p2align 6
.amdhsa_kernel {KNAME}
  .amdhsa_next_free_vgpr 256
  .amdhsa_next_free_sgpr 102
  .amdhsa_accum_offset 256
  .amdhsa_group_segment_fixed_size 0
  .amdhsa_kernarg_size 104
  .amdhsa_user_sgpr_count 2
  .amdhsa_user_sgpr_kernarg_segment_ptr 1
  .amdhsa_system_sgpr_workgroup_id_x 1
.end_amdhsa_kernel
"""
    return text


if __name__ == "__main__":
    cfg = Cfg()
    out = "sequential_preLN__compressed_kv_cla__swiglu_ffn__decode.s"
    for arg in sys.argv[1:]:
        if arg.startswith("out="):
            out = arg[4:]
        else:
            k, v = arg.split("=")
            assert hasattr(cfg, k), k
            setattr(cfg, k, int(v))
    open(out, "w").write(gen(cfg))
    print("wrote", out)
```
